```python
import torch

def _softmax(x, axis=-1):
    return torch.softmax(x, dim=axis)
def _gelu(x):
    return torch.nn.functional.gelu(x, approximate="tanh")
def _silu(x):
    return torch.nn.functional.silu(x)
def _sigmoid(x):
    return torch.sigmoid(x)
def _layernorm(x, axis=-1, eps=1e-5):
    m = x.mean(dim=axis, keepdim=True)
    v = x.var(dim=axis, keepdim=True, unbiased=False)
    return (x - m) / torch.sqrt(v + eps)
def _scatter_add(tgt, idx, src, axis=0):
    return tgt.clone().index_add_(axis, idx, src)
def _segment_sum(src, seg, n):
    out = torch.zeros((n,) + src.shape[1:], dtype=src.dtype)
    return out.index_add_(0, seg, src)
def _pad(x, pw):
    flat = tuple(v for pair in reversed(pw) for v in pair)
    return torch.nn.functional.pad(x, flat)

kernel_name = 'sequential_preLN__compressed_kv_cla__glu_gated_swiglu__prompt'

def setup_inputs():

    _w = (lambda a: (lambda t: t.to(torch.bfloat16) if t.is_floating_point() else t)(torch.as_tensor(a)))
    def _A_setup():
        B, H, Sq, Sk, D, M = 1, 16, 2048, 2048, 256, 448
        Dc = 4 * D
        return {
            "x": _w((lambda *s: torch.randn(*s, dtype=torch.bfloat16) * 0.05)(B, Sq, M)),
            "c_kv": _w((lambda *s: torch.randn(*s, dtype=torch.bfloat16) * 0.4)(B, Sk, Dc)),
            "w_q": _w((lambda *s: torch.randn(*s, dtype=torch.bfloat16) * 1.6)(M, H, D) * (M ** -0.5)),
            "w_uk": _w((lambda *s: torch.randn(*s, dtype=torch.bfloat16) * 1.6)(Dc, H, D) * (Dc ** -0.5)),
            "w_uv": _w((lambda *s: torch.randn(*s, dtype=torch.bfloat16) * 0.4)(Dc, H, D) * (Dc ** -0.5)),
            "w_o": _w((lambda *s: torch.randn(*s, dtype=torch.bfloat16) * 0.4)(H, D, M) * ((H * D) ** -0.5)),
        }
    _A_in = _A_setup()

    def _B_setup():
        B, S, D, F = 1, 2048, 448, 1792
        return {
            "x": _w((lambda *s: torch.randn(*s, dtype=torch.bfloat16) * 0.05)(B, S, D)),
            "w1": _w((lambda *s: torch.randn(*s, dtype=torch.bfloat16) * 0.2)(D, F) * (2.0 / D) ** 0.5),
            "w3": _w((lambda *s: torch.randn(*s, dtype=torch.bfloat16) * 0.2)(D, F) * (2.0 / D) ** 0.5),
            "w2": _w((lambda *s: torch.randn(*s, dtype=torch.bfloat16) * 0.2)(F, D) * (2.0 / F) ** 0.5),
        }
    _B_in = _B_setup()

    return {
        "A_x": _A_in["x"],
        "A_c_kv": _A_in["c_kv"],
        "A_w_q": _A_in["w_q"],
        "A_w_uk": _A_in["w_uk"],
        "A_w_uv": _A_in["w_uv"],
        "A_w_o": _A_in["w_o"],
        "B_x": _B_in["x"],
        "B_w1": _B_in["w1"],
        "B_w3": _B_in["w3"],
        "B_w2": _B_in["w2"],
    }

def reference(A_x, A_c_kv, A_w_q, A_w_uk, A_w_uv, A_w_o, B_x, B_w1, B_w3, B_w2):
    def _A_ref(x, c_kv, w_q, w_uk, w_uv, w_o):
        B, Sq, M = x.shape[0], x.shape[1], x.shape[2]
        Sk = c_kv.shape[1]
        H, D = w_q.shape[1], w_q.shape[2]
        q = torch.einsum("bqm,mhd->bhqd", x, w_q)
        k = torch.einsum("bkc,chd->bhkd", c_kv, w_uk)
        v = torch.einsum("bkc,chd->bhkd", c_kv, w_uv)
        scores = torch.einsum("bhqd,bhkd->bhqk", q, k) * (D ** -0.5)
        off = Sk - Sq
        qi = torch.arange(Sq)[:, None]
        kj = torch.arange(Sk)[None, :]
        cmask = kj <= (qi + off)
        scores = torch.where(cmask[None, None], scores, -1e9)
        p = _softmax(scores, axis=-1)
        ctx = torch.einsum("bhqk,bhkd->bhqd", p, v)
        return torch.einsum("bhqd,hdm->bqm", ctx, w_o)

    def _B_ref(x, w1, w3, w2):
        gate = torch.einsum("bsd,df->bsf", x, w1)
        up = torch.einsum("bsd,df->bsf", x, w3)
        h = _silu(gate) * up
        out = torch.einsum("bsf,fd->bsd", h, w2)
        return out

    x = A_x
    h = x + _A_ref(_layernorm(x, axis=-1), A_c_kv, A_w_q, A_w_uk, A_w_uv, A_w_o)
    h2 = h + _B_ref(_layernorm(h, axis=-1), B_w1, B_w3, B_w2)
    return h2
```

```python
def rng(p, i, n=1):
    return f"{p}{i}" if n == 1 else f"{p}[{i}:{i+n-1}]"
def v(i, n=1): return rng("v", i, n)
def a(i, n=1): return rng("a", i, n)
def s(i, n=1): return rng("s", i, n)
def r(i, n=1):
    if i >= 256:
        return a(i - 256, n)
    assert i + n <= 256
    return v(i, n)

class Asm:
    def __init__(self):
        self.lines = []
        self.nlab = 0
    def __call__(self, text):
        for l in text.split("\n"):
            l = l.strip()
            if l:
                self.lines.append(("" if l.endswith(":") else " ") + l)
    def c(self, text):
        self.lines.append("    ; " + text)
    def label(self, name):
        self.lines.append(name + ":")
    def newlabel(self, base="L"):
        self.nlab += 1
        return f"{base}_{self.nlab}"
    def text(self):
        return "\n".join(self.lines) + "\n"
    def extend(self, lst):
        for x in lst:
            self(x)

def interleave(mfmas, fillers, start=0, per_gap=None):
    out = []
    byg = {}
    for g, t in fillers:
        byg.setdefault(g, []).append(t)
    out += byg.pop(-1, [])
    for i, m in enumerate(mfmas):
        out.append(m)
        out += byg.pop(i, [])
    assert not byg, f"fillers beyond mfma list: {sorted(byg)}"
    return out

def spread(items, g0, g1):
    n = len(items)
    out = []
    span = g1 - g0
    for i, it in enumerate(items):
        out.append((g0 + (i * span) // n, it))
    return out

def kernel_header(name):
    return f""".text
.globl {name}
.p2align 8
.type {name},@function
{name}:
"""

def kernel_desc(name, vgpr=512, sgpr=102, accum=256, extra=""):
    return f""".section .rodata,"a"
.p2align 6
.amdhsa_kernel {name}
  .amdhsa_next_free_vgpr {vgpr}
  .amdhsa_next_free_sgpr {sgpr}
  .amdhsa_accum_offset {accum}
  .amdhsa_group_segment_fixed_size 0
  .amdhsa_kernarg_size 104
  .amdhsa_user_sgpr_count 2
  .amdhsa_user_sgpr_kernarg_segment_ptr 1
  .amdhsa_system_sgpr_workgroup_id_x 1
  .amdhsa_float_denorm_mode_32 3
  .amdhsa_float_denorm_mode_16_64 3
  .amdhsa_ieee_mode 0
  .amdhsa_dx10_clamp 0
{extra}.end_amdhsa_kernel
"""

def srd(A, d, base, nbytes):
    A(f"s_mov_b32 s{d}, s{base}")
    A(f"s_and_b32 s{d+1}, s{base+1}, 0xffff")
    A(f"s_mov_b32 s{d+2}, {nbytes}")
    A(f"s_mov_b32 s{d+3}, 0x00020000")
```

```python
from asmlib import *

WS_K = 0
WS_V = 16 << 20
WS_Q = 32 << 20
WS_Y = 48 << 20
WS_PART = 80 << 20
WS_H = 120 << 20
WS_HN = 124 << 20
WS_H1 = 128 << 20
WS_XN = 140 << 20
WS_STAMP = 200 << 20

class Stamps:
    def __init__(self, enable, base=60, n=8):
        self.en = enable; self.base = base; self.n = n
    def mark(self, A, i):
        if self.en:
            b = self.base + 4 * i
            A(f"s_memtime s[{b}:{b+1}]")
            A(f"s_memrealtime s[{b+2}:{b+3}]")
    def marks(self, i):
        if not self.en: return []
        b = self.base + 4 * i
        return [f"s_memtime s[{b}:{b+1}]", f"s_memrealtime s[{b+2}:{b+3}]"]
    def write(self, A, wsreg, kidx, swave=3, vt=0):
        if not self.en: return
        A("s_waitcnt lgkmcnt(0) vmcnt(0)")
        A(f"s_add_u32 s96, s{wsreg}, {WS_STAMP + kidx * (1 << 20)}")
        A(f"s_addc_u32 s97, s{wsreg+1}, 0")
        A(f"s_lshl_b32 s98, s2, 10")
        A(f"s_lshl_b32 s99, s{swave}, 7")
        A(f"s_add_u32 s98, s98, s99")
        A(f"v_mov_b32 v{vt}, s98")
        for i in range(self.n):
            b = self.base + 4 * i
            for j in range(4):
                A(f"v_mov_b32 v{vt+2+j}, s{b+j}")
            A(f"global_store_dwordx4 v{vt}, v[{vt+2}:{vt+5}], s[96:97] offset:{16*i}")
            A("s_waitcnt vmcnt(0)")

def mfma16(c, a_, b_, cin=None):
    cc = r(c, 4)
    ci = cc if cin is None else (cin if isinstance(cin, str) else r(cin, 4))
    return f"v_mfma_f32_16x16x32_bf16 {cc}, {r(a_, 4)}, {r(b_, 4)}, {ci}"
```

```python
from common import *
import sched
import math

QSCALE = math.log2(math.e) / 16.0
def f2u(x):
    import struct
    return struct.unpack("<I", struct.pack("<f", x))[0]

def gen_k1(name, opt):
    A = Asm()
    ST = Stamps(opt.get("stamps", 0), base=60)
    rep = []
    VX, VW, DX, DW = 2, 6, 10, 12
    def acc(which, hx, ti, hw, tj):
        i = (hx * 2 + hw) * 16 + (ti * 4 + tj if which == 0 else tj * 4 + ti)
        return 16 + 4 * i
    FX = [272, 304]; FW = [336, 368]
    XH = 400
    def fx(hx, ti, s_): return FX[hx] + (ti * 2 + s_) * 4
    def fw(bank, tj, s_): return FW[bank] + (tj * 2 + s_) * 4
    SX, SW, SO, SQ, SXI = 8, 12, 16, 40, 44
    P = []
    def E(t): P.append(t)
    A("s_cmp_ge_u32 s2, 256")
    A("s_cbranch_scc1 L_k1_end")
    ST.mark(A, 0)
    E("s_load_dwordx4 s[52:55], s[0:1], 0")
    E("s_load_dwordx2 s[56:57], s[0:1], 16")
    E("s_load_dwordx4 s[20:23], s[0:1], 24")
    E("s_load_dwordx4 s[4:7], s[0:1], 88")
    E("v_lshrrev_b32 v1, 6, v0")
    E("v_and_b32 v0, 63, v0")
    E("v_readfirstlane_b32 s3, v1")
    E("s_and_b32 s24, s2, 7")
    E("s_lshr_b32 s25, s2, 3")
    E("s_and_b32 s26, s25, 1")
    E("s_lshl_b32 s24, s24, 1")
    E("s_add_u32 s24, s24, s26")
    E("s_bfe_u32 s26, s25, 0x10001")
    E("s_lshr_b32 s27, s25, 2")
    E("s_lshr_b32 s50, s25, 1")
    E("s_lshl_b32 s28, s2, 3")
    E("s_lshl_b32 s29, s3, 1")
    E("s_add_u32 s28, s28, s29")
    E("v_and_b32 v20, 1, v0")
    E("v_add_u32 v20, s28, v20")
    E("v_mul_u32_u24 v21, 896, v20")
    E("v_lshrrev_b32 v22, 1, v0")
    E("v_lshl_add_u32 v21, v22, 4, v21")
    E("v_lshrrev_b32 v23, 4, v20")
    E("v_mul_u32_u24 v23, 14336, v23")
    E("v_lshl_add_u32 v23, v22, 8, v23")
    E("v_and_b32 v20, 15, v20")
    E("v_lshl_add_u32 v23, v20, 4, v23")
    E("s_lshl_b32 s28, s27, 8")
    E("s_lshl_b32 s29, s3, 5")
    E("s_add_u32 s28, s28, s29")
    E("v_lshrrev_b32 v1, 3, v0")
    E("v_add_u32 v1, s28, v1")
    E("v_lshlrev_b32 v1, 11, v1")
    E("v_lshrrev_b32 v16, 4, v0")
    E("v_and_b32 v17, 7, v0")
    E("v_xor_b32 v17, v17, v16")
    E("v_lshlrev_b32 v17, 4, v17")
    for i in range(4):
        E(f"v_xor_b32 v18, {64 if i & 1 else 0}, v17")
        E(f"v_add_u32 v18, v18, v1")
        E(f"v_add_u32 v{VX+i}, {i * (8 * 2048 - 1024)}, v18")
    E("s_lshl_b32 s28, s3, 4")
    E("v_add_u32 v1, s28, v16")
    E("v_lshlrev_b32 v1, 13, v1")
    E("s_lshl_b32 s28, s24, 9")
    E("v_add_u32 v1, s28, v1")
    E("v_and_b32 v17, 15, v0")
    E("v_lshlrev_b32 v18, 1, v16")
    E("v_xor_b32 v17, v17, v18")
    E("v_lshlrev_b32 v17, 4, v17")
    for i in range(4):
        E(f"v_xor_b32 v18, {128 if i & 2 else 0}, v17")
        E(f"v_add_u32 v18, v18, v1")
        E(f"v_add_u32 v{VW+i}, {i * (4 * 8192 - 1024)}, v18")
    E("s_lshl_b32 s32, s3, 12")
    E("s_mov_b32 s33, 0")
    E("s_mov_b32 s34, 0")
    E("s_waitcnt lgkmcnt(0)")
    srd(E, SX, 54, 2048 * 1024 * 2)
    E("s_cmp_eq_u32 s26, 0")
    E("s_cselect_b32 s20, s20, s22")
    E("s_cselect_b32 s21, s21, s23")
    srd(E, SW, 20, 1024 * 4096 * 2)
    srd(E, SXI, 52, 2048 * 448 * 2)
    def dma_setup(n):
        j = (n >> 2) & 1; t = n & 3
        if t in (0, 3):
            hx = 0 if t == 0 else 1
            slot = (2 * j + hx) * 16384
            setup = [f"s_add_u32 m0, s32, {slot}", f"s_add_u32 s35, s33, {j * 128 + hx * 128 * 2048}"]
            d = [f"buffer_load_dwordx4 v{VX+i}, s[{SX}:{SX+3}], s35 offen offset:{i*1024} lds @tag=ht{n}" for i in range(4)]
        else:
            hw = t - 1
            slot = 65536 + (2 * j + hw) * 16384
            setup = [f"s_add_u32 m0, s32, {slot}", f"s_add_u32 s35, s34, {j * 64 * 8192 + hw * 256}"]
            d = [f"buffer_load_dwordx4 v{VW+i}, s[{SW}:{SW+3}], s35 offen offset:{i*1024} lds @tag=ht{n}" for i in range(4)]
        return setup, d
    def reads(n):
        j = (n >> 2) & 1; t = n & 3
        out = []
        if t in (0, 3):
            hx = 0 if t == 0 else 1
            slot = (2 * j + hx) * 16384
            for ti in range(4):
                for s_ in range(2):
                    out.append(f"ds_read_b128 {r(fx(hx, ti, s_), 4)}, v{DX+s_} offset:{slot + ti * 2048}")
        else:
            hw = t - 1
            bank = hw ^ j
            slot = (2 * j + hw) * 16384
            for tj in range(4):
                for s_ in range(2):
                    for h2 in range(2):
                        out.append(f"ds_read_b64_tr_b16 {r(fw(bank, tj, s_) + 2 * h2, 2)}, v{DW+tj} offset:{slot + s_ * 8192 + h2 * 1024}")
        return out
    def dma_block(n):
        su, d = dma_setup(n)
        return su + d
    for i in range(28, 32): E(f"v_mov_b32 v{i}, 0")
    E(f"buffer_load_dwordx4 v[24:27], v21, s[{SXI}:{SXI+3}], 0 offen")
    E("s_mov_b32 exec_hi, 0xffff")
    E(f"buffer_load_dwordx4 v[28:31], v21, s[{SXI}:{SXI+3}], 0 offen offset:512")
    E("s_mov_b32 exec_hi, -1")
    for n in range(4):
        P.extend(dma_block(n))
    srd(E, SO, 6, 160 << 20)
    srd(E, SQ, 56, 448 * 4096 * 2)
    E("s_lshr_b32 s28, s3, 1")
    E("s_and_b32 s29, s3, 1")
    E("s_lshl_b32 s30, s28, 13")
    E("v_and_b32 v1, 15, v0")
    E("v_lshlrev_b32 v1, 7, v1")
    E("v_add_u32 v1, s30, v1")
    E("v_bfe_u32 v18, v0, 1, 3")
    E("v_xor_b32 v17, v16, v18")
    E("v_lshlrev_b32 v17, 4, v17")
    E(f"v_add_u32 v{DX}, v17, v1")
    E(f"v_xor_b32 v{DX+1}, 64, v{DX}")
    E("v_lshlrev_b32 v1, 3, v16")
    E("v_bfe_u32 v17, v0, 2, 2")
    E("v_add_u32 v1, v1, v17")
    E("v_lshlrev_b32 v1, 8, v1")
    E("v_bfe_u32 v18, v0, 4, 1")
    E("v_lshlrev_b32 v18, 2, v18")
    E("v_or_b32 v17, v17, v18")
    E("v_lshlrev_b32 v17, 1, v17")
    E("v_bfe_u32 v19, v0, 1, 1")
    E("s_lshl_b32 s30, s29, 3")
    E("v_add_u32 v19, s30, v19")
    E("v_xor_b32 v19, v19, v17")
    E("v_lshlrev_b32 v19, 4, v19")
    E("v_and_b32 v18, 1, v0")
    E("v_lshlrev_b32 v18, 3, v18")
    E("v_add3_u32 v1, v1, v18, v19")
    E(f"v_add_u32 v{DW}, 0x10000, v1")
    for tj in range(1, 4):
        E(f"v_xor_b32 v{DW+tj}, {tj << 5}, v{DW}")
    E("v_lshlrev_b32 v1, 4, v0")
    E("s_lshl_b32 s58, s24, 20")
    E("s_lshl_b32 s38, s27, 17")
    E("s_add_u32 s58, s58, s38")
    E("s_lshl_b32 s38, s28, 15")
    E("s_add_u32 s58, s58, s38")
    E("s_add_u32 s38, s26, 11")
    E("s_lshl_b32 s38, s29, s38")
    E("s_add_u32 s58, s58, s38")
    E("s_lshl_b32 s38, s26, 24")
    E("s_add_u32 s58, s58, s38")
    E("s_cmp_eq_u32 s26, 0")
    E("s_mov_b32 s59, 16384")
    E(f"s_mov_b32 s51, {(1024 - 16384) & 0xffffffff}")
    E("s_mov_b32 s39, 8192")
    E("s_cselect_b32 s59, 1024, s59")
    E(f"s_cselect_b32 s51, {8192 - 1024}, s51")
    E("s_cselect_b32 s39, 4096, s39")
    E("s_lshl_b32 s49, s24, 20")
    E("s_lshl_b32 s38, s50, 16")
    E("s_add_u32 s49, s49, s38")
    E("s_lshl_b32 s38, s3, 14")
    E("s_add_u32 s49, s49, s38")
    E(f"s_add_u32 s49, s49, {WS_Q}")
    E("s_lshl_b32 s48, s50, 3")
    E("s_lshl_b32 s38, s3, 1")
    E("s_add_u32 s48, s48, s38")
    E("s_mul_i32 s48, s48, 14336")
    E(f"s_add_u32 s48, s48, {WS_XN}")
    Z = [f"v_mov_b32 v{i}, 0" for i in range(64, 256)] + [f"v_accvgpr_write_b32 a{i}, 0" for i in range(16)]
    rest = []
    for n in range(4, 8): rest += dma_block(n)
    k = 0
    for i, z in enumerate(Z):
        E(z)
        if i % 8 == 7 and k < len(rest):
            E(rest[k]); k += 1
    while k < len(rest): E(rest[k]); k += 1
    E("s_add_u32 s33, s33, 256")
    E(f"s_add_u32 s34, s34, {128 * 8192}")
    P += ST.marks(1)
    for i in range(8):
        E(f"v_lshlrev_b32 v{32+2*i}, 16, v{24+i}")
        E(f"v_and_b32 v{33+2*i}, 0xffff0000, v{24+i}")
    def reduce32(x, t):
        E(f"v_add_f32_dpp v{x}, v{x}, v{x} row_ror:2 row_mask:0xf bank_mask:0xf")
        E(f"v_add_f32_dpp v{x}, v{x}, v{x} row_ror:4 row_mask:0xf bank_mask:0xf")
        E(f"v_add_f32_dpp v{x}, v{x}, v{x} row_ror:8 row_mask:0xf bank_mask:0xf")
        E(f"v_mov_b32 v{t}, v{x}")
        E(f"v_permlane16_swap_b32 v{x}, v{t}")
        E(f"v_add_f32 v{x}, v{x}, v{t}")
        E(f"v_mov_b32 v{t}, v{x}")
        E(f"v_permlane32_swap_b32 v{x}, v{t}")
        E(f"v_add_f32 v{x}, v{x}, v{t}")
    E("v_pk_add_f32 v[48:49], v[32:33], v[34:35]")
    for i in range(2, 8):
        E(f"v_pk_add_f32 v[48:49], v[48:49], v[{32+2*i}:{33+2*i}]")
    E("v_add_f32 v48, v48, v49")
    reduce32(48, 50)
    E(f"v_mul_f32 v48, {hex(f2u(-1.0/448))}, v48")
    E("v_mov_b32 v49, v48")
    for i in range(4):
        E(f"v_pk_add_f32 v[{32+2*i}:{33+2*i}], v[{32+2*i}:{33+2*i}], v[48:49]")
    E("s_mov_b32 exec_hi, 0xffff")
    for i in range(4, 8):
        E(f"v_pk_add_f32 v[{32+2*i}:{33+2*i}], v[{32+2*i}:{33+2*i}], v[48:49]")
    E("s_mov_b32 exec_hi, -1")
    E("v_pk_mul_f32 v[50:51], v[32:33], v[32:33]")
    for i in range(1, 8):
        E(f"v_pk_fma_f32 v[50:51], v[{32+2*i}:{33+2*i}], v[{32+2*i}:{33+2*i}], v[50:51]")
    E("v_add_f32 v50, v50, v51")
    reduce32(50, 52)
    E(f"v_mov_b32 v51, {hex(f2u(1e-5))}")
    E(f"v_fmac_f32 v51, {hex(f2u(1.0/448))}, v50")
    E("v_rsq_f32 v50, v51")
    E(f"v_mul_f32 v50, {hex(f2u(QSCALE))}, v50")
    E("v_mov_b32 v51, v50")
    for i in range(8):
        E(f"v_pk_mul_f32 v[{32+2*i}:{33+2*i}], v[{32+2*i}:{33+2*i}], v[50:51]")
    for i in range(8):
        E(f"v_cvt_pk_bf16_f32 v{24+i}, v{32+2*i}, v{33+2*i}")
    E("WAITVM @need=ht0,ht1")
    E(f"s_mov_b32 s38, {WS_XN}")
    E(f"buffer_store_dwordx4 v[24:27], v23, s[{SO}:{SO+3}], s38 offen sc1")
    E(f"s_mov_b32 s38, {WS_XN + 8192}")
    E("s_mov_b32 exec_hi, 0xffff")
    E(f"buffer_store_dwordx4 v[28:31], v23, s[{SO}:{SO+3}], s38 offen sc1")
    E("s_mov_b32 exec_hi, -1")
    P += ST.marks(2)
    E("s_barrier")
    P.extend(reads(0)); P.extend(reads(1))
    for i in range(16, 64): E(f"v_mov_b32 v{i}, 0")
    E("WAITVM @need=ht2,ht3")
    E("s_waitcnt lgkmcnt(0)")
    E("s_barrier")
    P += ST.marks(3)
    E("s_mov_b32 s36, 0")
    E("s_cmp_eq_u32 s26, 0")
    pro = sched.finish(P, sched.State(), report=rep)
    A.extend(sched.texts(pro))
    A("s_cbranch_scc0 L_k1_loopV")
    dma_gaps = opt.get("dma_gaps", [17, 21, 25, 29])

    def phase_mfmas(which, g):
        j = (g >> 2) & 1; p = g & 3
        hx = 0 if p < 2 else 1
        hw = [0, 1, 1, 0][p]
        bank = hw ^ j
        m = []
        for ti in range(4):
            for tj in range(4):
                for s_ in range(2):
                    c_ = acc(which, hx, ti, hw, tj); X = fx(hx, ti, s_); W = fw(bank, tj, s_)
                    m.append(mfma16(c_, W, X) if which == 0 else mfma16(c_, X, W))
        return m

    def drain_quad(hx, hw):
        items = []
        for n in range(8):
            base = 16 + (hx * 2 + hw) * 64 + 8 * n
            it = []
            if base >= 256:
                tb = 80 + 8 * (n & 1)
                it += [f"v_accvgpr_read_b32 v{tb+i}, a{base-256+i}" for i in range(8)]
                base = tb
            it += [f"v_cvt_pk_bf16_f32 v{base+i}, v{base+2*i}, v{base+2*i+1}" for i in range(4)]
            if n == 0:
                it.append(f"s_mul_i32 s37, s39, {hw}")
                it.append(f"s_add_u32 s37, s37, s58")
                if hx: it.append(f"s_add_u32 s37, s37, 65536")
            elif n & 1:
                it.append("s_add_u32 s37, s37, s59")
            else:
                it.append("s_add_u32 s37, s37, s51")
            it.append(f"buffer_store_dwordx4 v[{base}:{base+3}], v1, s[{SO}:{SO+3}], s37 offen" + opt.get("stflag", ""))
            items += it
        return items
    QV = 2
    QD = 4
    REGION = [131072, 65536, 0, 98304, 32768]
    def region(sb): return REGION[sb % 5]
    QF = [FX[0], FW[0]]
    QACC = [16, 48]
    def q_dma(sb, u):
        cb, kh = sb >> 1, sb & 1
        ks = kh * 7 + u
        return [f"s_add_u32 m0, s31, {region(sb) + u * 4096}",
                f"s_mov_b32 s35, {ks * 32 * 8192 + cb * 128}",
                f"buffer_load_dwordx4 v{QV}, s[{SQ}:{SQ+3}], s35 offen lds @tag=sb{sb}"]
    def q_reads(sb, dtl):
        n = sb * 4 + dtl
        out = []
        for u in range(7):
            for h2 in range(2):
                out.append(f"ds_read_b64_tr_b16 {r(QF[n & 1] + 4 * u + 2 * h2, 2)}, v{QD+dtl} offset:{u * 4096 + h2 * 512}")
        return out
    def q_setup():
        L = []
        L.append("s_lshl_b32 s31, s3, 10")
        L.append("s_lshl_b32 s38, s3, 3")
        L.append("v_lshrrev_b32 v3, 3, v0")
        L.append("v_add_u32 v3, s38, v3")
        L.append("v_lshlrev_b32 v3, 13, v3")
        L.append("s_lshl_b32 s38, s24, 9")
        L.append("v_add_u32 v3, s38, v3")
        L.append("v_bfe_u32 v8, v0, 4, 1")
        L.append("s_lshl_b32 s38, s29, 1")
        L.append("v_or_b32 v8, s38, v8")
        L.append("v_lshlrev_b32 v8, 1, v8")
        L.append("v_and_b32 v9, 7, v0")
        L.append("v_xor_b32 v8, v8, v9")
        L.append(f"v_lshl_add_u32 v{QV}, v8, 4, v3")
        return L
    def q_setup2():
        L = []
        L.append("v_lshrrev_b32 v8, 4, v0")
        L.append("v_lshlrev_b32 v8, 3, v8")
        L.append("v_bfe_u32 v9, v0, 2, 2")
        L.append("v_add_u32 v8, v8, v9")
        L.append("v_lshlrev_b32 v8, 7, v8")
        L.append("v_bfe_u32 v9, v0, 3, 2")
        L.append("v_lshlrev_b32 v9, 5, v9")
        L.append("v_add_u32 v8, v8, v9")
        L.append("v_and_b32 v9, 3, v0")
        L.append("v_lshl_add_u32 v8, v9, 3, v8")
        L.append(f"v_add_u32 v{QD}, {region(0)}, v8")
        for d in range(1, 4):
            L.append(f"v_xor_b32 v{QD+d}, {d << 5}, v{QD}")
        return L

    for which in (0, 1):
        lab = "L_k1_loopK" if which == 0 else "L_k1_loopV"
        A(".p2align 6")
        A.label(lab)
        body = []
        for g in range(8):
            m = phase_mfmas(which, g)
            f = []
            su, d = dma_setup(g)
            f += [(dma_gaps[0] - 1, x) for x in su]
            f += [(dma_gaps[i], d[i]) for i in range(4)]
            f += spread(reads(g + 2), 0, 16)
            if g == 7:
                f += [(29, "s_add_u32 s33, s33, 256"), (29, f"s_add_u32 s34, s34, {128 * 8192}"),
                      (29, "s_add_u32 s36, s36, 1")]
            if g & 1:
                f += [(30, "s_waitcnt vmcnt(16) lgkmcnt(0)"), (30, "s_barrier")]
            else:
                f += [(31, "s_waitcnt lgkmcnt(0)")]
            f.sort(key=lambda x: x[0])
            body += interleave(m, f)
        st = sched.State()
        lp = sched.finish_loop(body, st, prev=pro, report=rep)
        A.extend(sched.texts(lp))
        A("s_lshl_b32 s38, s3, 4")
        A("s_add_u32 s38, s38, s36")
        A("s_cmp_eq_u32 s38, 1")
        A(f"s_cbranch_scc1 {lab}_sig")
        A.label(lab + "_back")
        A("s_cmp_lt_u32 s36, 7")
        A(f"s_cbranch_scc1 {lab}")
        st = sched.State()
        st.vm = [(set(), f"ht{n}") for n in range(60, 64) for _ in range(4)]
        L = []
        L += ST.marks(4)
        xl = [[f"s_add_u32 s38, s48, {tt * 14336 + ks * 1024}",
               f"buffer_load_dwordx4 {r(XH + (tt * 14 + ks) * 4, 4)}, v1, s[{SO}:{SO+3}], s38 offen sc1"]
              for ks in range(14) for tt in range(2)]
        dq0 = drain_quad(0, 0)
        for g in range(56, 64):
            m = phase_mfmas(which, g)
            f = []
            if g + 2 < 64:
                f += spread(reads(g + 2), 0, 16)
            def put(groups, g0, g1):
                return [(gp, "\n".join(x)) for gp, x in spread(groups, g0, g1)]
            if g == 56:
                f += [(-1, "s_lshl_b32 s38, s50, 2"), (-1, "v_mov_b32 v5, s38"), (0, "global_load_dword v4, v5, s[4:5] sc1 @tag=poll")]
                f += spread(q_setup(), 1, 15)
                f += put([q_dma(0, u) for u in range(7)], 16, 30)
            if g == 57: f += put([q_dma(1, u) for u in range(4)], 16, 30)
            if g == 58:
                f += [(0, f"v_readfirstlane_b32 s38, v4\ns_nop 0\ns_cmp_ge_u32 s38, 16\ns_cbranch_scc0 {lab}_spin\n{lab}_spun:")]
                f += put([q_dma(1, u) for u in range(4, 7)], 2, 14)
                f += put(xl[0:7], 16, 30)
            if g == 59:
                f += put([q_dma(2, u) for u in range(4)], 2, 14)
                f += put(xl[7:14], 16, 30)
            if g == 60:
                f += put([q_dma(2, u) for u in range(4, 7)], 2, 14)
                f += put(xl[14:21], 16, 30)
            if g == 61:
                f += put([q_dma(3, u) for u in range(4)], 2, 14)
                f += put(xl[21:28], 16, 30)
            if g == 62:
                f += put([q_dma(3, u) for u in range(4, 7)], 2, 14)
                f += spread(q_setup2(), 0, 16)
                f += spread(dq0[:len(dq0) // 2], 4, 32)
            if g == 63:
                f += put([q_dma(4, u) for u in range(7)], 0, 14)
                f += spread(dq0[len(dq0) // 2:], 0, 28)
                f += [(17, "WAITVM @need=sb0"), (17, "s_barrier")]
                f += spread(q_reads(0, 0), 18, 32)
            if g in (57, 59):
                f += [(30, f"WAITVM @need=ht{g+3},ht{g+4}"), (30, "s_waitcnt lgkmcnt(0)"), (30, "s_barrier")]
            elif g == 61:
                f += [(30, "s_waitcnt lgkmcnt(0)"), (30, "s_barrier")]
            f.sort(key=lambda x: x[0])
            L += interleave(m, f)
        pe = sched.finish(L, st, prev=lp, report=rep)
        A.extend(sched.texts(pe))
        if which == 0:
            A("s_branch L_k1_q")
        stq = st
    A.label("L_k1_q")
    L = ST.marks(5)
    drain = drain_quad(0, 1) + drain_quad(1, 1) + drain_quad(1, 0)
    ng = 32
    per = {}
    for gi, it in spread(drain, 14 * 1, 14 * 28):
        per.setdefault(gi // 14, []).append((gi % 14, it))
    def q_drain(cb):
        out = []
        for pr in range(2):
            for tt in range(2):
                a0 = QACC[cb & 1] + ((2 * pr) * 2 + tt) * 4; a1 = QACC[cb & 1] + ((2 * pr + 1) * 2 + tt) * 4
                out += [f"v_cvt_pk_bf16_f32 v{a0}, v{a0}, v{a0+1}", f"v_cvt_pk_bf16_f32 v{a0+1}, v{a0+2}, v{a0+3}",
                        f"v_cvt_pk_bf16_f32 v{a0+2}, v{a1}, v{a1+1}", f"v_cvt_pk_bf16_f32 v{a0+3}, v{a1+2}, v{a1+3}",
                        f"s_add_u32 s38, s49, {tt * 8192 + (cb * 2 + pr) * 1024}\n"
                        f"buffer_store_dwordx4 v[{a0}:{a0+3}], v1, s[{SO}:{SO+3}], s38 offen" + opt.get("stflag", "")]
        return out
    for n in range(ng):
        sb, dtl = n >> 2, n & 3
        cb, kh = sb >> 1, sb & 1
        m = []
        for tt in range(2):
            for u in range(7):
                c_ = QACC[cb & 1] + (dtl * 2 + tt) * 4
                m.append(mfma16(c_, QF[n & 1] + 4 * u, XH + (tt * 14 + kh * 7 + u) * 4, "0" if (kh == 0 and u == 0) else None))
        f = []
        if n + 1 < ng:
            sb2, d2 = (n + 1) >> 2, (n + 1) & 3
            if d2 == 0:
                f += [(-1, f"WAITVM @need=sb{sb2}"), (-1, "s_barrier")]
            if sb2 > 0:
                delta = (region(sb2) - region(sb2 - 1)) & 0xffffffff
                f += [(-1, f"v_add_u32 v{QD+d2}, {hex(delta)}, v{QD+d2}")]
            f += spread(q_reads(sb2, d2), 0, 14)
        if sb >= 2 and sb + 3 < 8 and dtl < 3:
            us = [[0, 1, 2], [3, 4], [5, 6]][dtl]
            f += [(gp, "\n".join(x)) for gp, x in spread([q_dma(sb + 3, u) for u in us], 1, 13)]
        f += per.get(n, [])
        if kh == 0 and cb > 0 and dtl < 2:
            qd = q_drain(cb - 1)
            f += spread(qd[dtl * 10:(dtl + 1) * 10], 2, 14)
        f.sort(key=lambda x: x[0])
        L += interleave(m, f)
    L += q_drain(3)
    L += ST.marks(6)
    qq = sched.finish(L, stq, prev=pe, report=rep)
    A.extend(sched.texts(qq))
    if ST.en:
        A("s_waitcnt vmcnt(0)")
        ST.mark(A, 7)
        ST.write(A, 6, 0)
    A.label("L_k1_end")
    A("s_endpgm")
    for which in (0, 1):
        lab = "L_k1_loopK" if which == 0 else "L_k1_loopV"
        A.label(lab + "_sig")
        A("s_mov_b64 exec, 1")
        A("s_lshr_b32 s38, s2, 4")
        A("s_lshl_b32 s38, s38, 2")
        A("s_add_u32 s22, s4, s38")
        A("s_addc_u32 s23, s5, 0")
        A("v_mov_b32 v1, 1")
        A("global_atomic_add v0, v1, s[22:23] sc1")
        A("s_nop 1")
        A("v_mov_b32 v1, 0")
        A("s_mov_b64 exec, -1")
        A(f"s_branch {lab}_back")
        A.label(lab + "_spin")
        A("s_sleep 4")
        A("global_load_dword v4, v5, s[4:5] sc1")
        A("s_waitcnt vmcnt(0)")
        A("v_readfirstlane_b32 s38, v4")
        A("s_nop 0")
        A("s_cmp_ge_u32 s38, 16")
        A(f"s_cbranch_scc0 {lab}_spin")
        A(f"s_branch {lab}_spun")
    if opt.get("report"):
        for x in rep: print("HAZ", x)
    return kernel_header(name) + A.text() + kernel_desc(name, vgpr=512, accum=256)
```

```python
from common import *
import sched
from k1 import f2u

B0 = 6.0
NA = 17

def gen_k2(name, opt):
    A = Asm()
    ST = Stamps(opt.get("stamps", 0), base=60)
    rep = []
    NEGM = 4; TMP = 12; ORA = 24
    S0 = 32; P0 = 64; LS = 96; ONES = 104; O0 = 128
    QR = 256; FR = 320
    def S(kt, tt): return S0 + (kt * 2 + tt) * 4
    def Pf(b, ks, tt): return P0 + 16 * b + (ks * 2 + tt) * 4
    def O(dt, tt): return O0 + (dt * 2 + tt) * 4
    def Q(tt, ds): return QR + (tt * 8 + ds) * 4
    def F(bank, i): return FR + bank * 32 + i * 4
    SW, SWO = 8, 12
    P = []
    def E(t): P.append(t)
    A("s_cmp_ge_u32 s2, 256")
    A("s_cbranch_scc1 L_k2_end")
    ST.mark(A, 0)
    E("s_load_dwordx2 s[20:21], s[0:1], 40")
    E("s_load_dwordx4 s[4:7], s[0:1], 88")
    E("v_lshrrev_b32 v1, 6, v0")
    E("v_and_b32 v0, 63, v0")
    E("v_readfirstlane_b32 s3, v1")
    E("s_and_b32 s24, s2, 7")
    E("s_lshr_b32 s25, s2, 3")
    E("s_and_b32 s26, s25, 1")
    E("s_lshl_b32 s24, s24, 1")
    E("s_add_u32 s24, s24, s26")
    E("s_lshr_b32 s26, s25, 2")
    E("s_bfe_u32 s25, s25, 0x10001")
    E("v_lshlrev_b32 v1, 4, v0")
    E("v_add_u32 v2, 0x10000, v1")
    E("v_lshrrev_b32 v12, 4, v0")
    E("v_lshlrev_b32 v12, 2, v12")
    E("v_and_b32 v13, 15, v0")
    E("v_sub_u32 v3, v13, v12")
    for i in range(4): E(f"v_mov_b32 v{ONES+i}, 0x3f803f80")
    E("s_lshl_b32 s32, s3, 13")
    E("s_sub_u32 s27, 15, s26")
    E("s_lshl_b32 s38, s26, 1")
    E(f"s_sub_u32 s39, {32 - NA}, s38")
    E("s_cmp_eq_u32 s25, 0")
    E("s_cselect_b32 s28, s39, 0")
    E(f"s_cselect_b32 s29, {NA}, s39")
    E("s_cselect_b32 s36, 1, 0")
    E("s_cselect_b32 s37, 2, 0")
    E("s_waitcnt lgkmcnt(0)")
    srd(E, SW, 6, 160 << 20)
    srd(E, SWO, 20, 4096 * 448 * 2)
    A.extend(sched.texts(sched.finish(P, report=rep)))

    def dma4(kind, slot, half):
        sreg = 30 if kind == "K" else 31
        base = (0 if kind == "K" else 65536) + slot * 32768 + half * 4096
        su = [f"s_add_u32 m0, s32, {base}", f"s_add_u32 s35, s{sreg}, {half * 4096}"]
        d = [f"buffer_load_dwordx4 v1, s[{SW}:{SW+3}], s35 offen offset:{i*1024} lds" for i in range(4)]
        return su, d
    def dma_adv(kind):
        sreg = 30 if kind == "K" else 31; cnt = 33 if kind == "K" else 34
        return [f"s_add_u32 s{sreg}, s{sreg}, 32768", f"s_sub_u32 s{cnt}, s{cnt}, 1", f"s_cmp_gt_i32 s{cnt}, 0",
                f"s_cselect_b32 s{sreg}, s{sreg}, 0x70000000"]
    def dma_block(kind, slot):
        out = []
        for half in range(2):
            su, d = dma4(kind, slot, half); out += su + d
        return out + dma_adv(kind)
    def kreads(slot, kt, bank):
        return [f"ds_read_b128 {r(F(bank, ds), 4)}, v1 offset:{slot * 32768 + (kt * 8 + ds) * 1024}" for ds in range(8)]
    def vreads(slot, grp, bank):
        return [f"ds_read_b128 {r(F(bank, d * 2 + ks), 4)}, v2 offset:{slot * 32768 + (ks * 16 + 4 * grp + d) * 1024}"
                for d in range(4) for ks in range(2)]
    def qk_group(kt, bank, cinit):
        m = []
        for tt in range(2):
            for ds in range(8):
                ci = None if ds else ("0" if cinit == 0 else NEGM + 4 * tt)
                m.append(mfma16(S(kt, tt), F(bank, ds), Q(tt, ds), ci))
        return m
    def pv_group(grp, bank, pb):
        m = []
        for d in range(4):
            for tt in range(2):
                for ks in range(2):
                    m.append(mfma16(O(4 * grp + d, tt), F(bank, d * 2 + ks), Pf(pb, ks, tt)))
        return m
    def l_mfmas(pb):
        return [mfma16(LS + 4 * tt, ONES, Pf(pb, ks, tt)) for tt in range(2) for ks in range(2)]
    def softmax(pb):
        out = []
        n = 0
        for kt in range(4):
            for tt in range(2):
                t = TMP + 4 * (n % 3); s_ = S(kt, tt); d = Pf(pb, kt >> 1, tt) + 2 * (kt & 1)
                out += [f"v_exp_f32 v{t+i}, v{s_+i}" for i in range(4)]
                out += [f"v_cvt_pk_bf16_f32 v{d}, v{t}, v{t+1}", f"v_cvt_pk_bf16_f32 v{d+1}, v{t+2}, v{t+3}"]
                out += [f"v_or_b32 v{ORA}, v{d}, v{d+1}" if n == 0 else f"v_or3_b32 v{ORA}, v{ORA}, v{d}, v{d+1}"]
                n += 1
        return out
    def mask_code():
        L = ["s_lshl_b32 s38, s28, 6", "s_sub_u32 s38, s40, s38",
             "v_add_u32 v12, s38, v3", "v_cvt_f32_i32 v12, v12", "v_add_f32 v12, 0.5, v12",
             f"v_mul_f32 v12, {hex(f2u(1e30))}, v12"]
        n = 0
        for dd in range(-1, 4):
            for rr in range(4):
                c = rr + 16 * dd
                t = 13 + (n % 4); n += 1
                L.append(f"v_add_f32 v{t}, {hex(f2u(-c * 1e30))}, v12")
                for tt in range(2):
                    kt = dd + tt
                    if 0 <= kt < 4:
                        L.append(f"v_min_f32 v{S(kt, tt)+rr}, v{S(kt, tt)+rr}, v{t}")
        return L
    def rescale(init, pb):
        L = []
        for tt in range(2):
            m_ = 12 + 2 * tt; t = m_ + 1
            regs = [S(kt, tt) + i for kt in range(4) for i in range(4)]
            L.append(f"v_max3_f32 v{m_}, v{regs[0]}, v{regs[1]}, v{regs[2]}")
            for k in range(3, 15, 2):
                L.append(f"v_max3_f32 v{m_}, v{m_}, v{regs[k]}, v{regs[k+1]}")
            L.append(f"v_max_f32 v{m_}, v{m_}, v{regs[15]}")
        for sw in ("v_permlane16_swap_b32", "v_permlane32_swap_b32"):
            for tt in range(2): L.append(f"v_mov_b32 v{13+2*tt}, v{12+2*tt}")
            for tt in range(2): L.append(f"{sw} v{12+2*tt}, v{13+2*tt}")
            for tt in range(2): L.append(f"v_max_f32 v{12+2*tt}, v{12+2*tt}, v{13+2*tt}")
        for tt in range(2):
            m_ = 12 + 2 * tt
            L.append(f"v_add_f32 v{m_}, {hex(f2u(B0))}, v{m_}")
            if not init: L.append(f"v_max_f32 v{m_}, 0, v{m_}")
        for tt in range(2):
            m_ = 12 + 2 * tt
            if init:
                for i in range(4): L.append(f"v_sub_f32 v{NEGM+4*tt+i}, 0, v{m_}")
            else:
                for i in range(4): L.append(f"v_sub_f32 v{NEGM+4*tt+i}, v{NEGM+4*tt+i}, v{m_}")
            for kt in range(4):
                for i in range(4): L.append(f"v_sub_f32 v{S(kt,tt)+i}, v{S(kt,tt)+i}, v{m_}")
        if not init:
            for tt in range(2):
                m_ = 12 + 2 * tt
                L.append(f"v_exp_f32 v{m_}, -v{m_}")
                L.append(f"v_mov_b32 v{m_+1}, v{m_}")
                for rg in [O(dt, tt) + 2 * i for dt in range(16) for i in range(2)] + [LS + 4 * tt, LS + 4 * tt + 2]:
                    L.append(f"v_pk_mul_f32 v[{rg}:{rg+1}], v[{rg}:{rg+1}], v[{m_}:{m_+1}]")
        L += softmax(pb)
        return L

    A.label("L_k2_unit")
    U = []
    def E(t): U.append(t)
    E("s_lshl_b32 s30, s24, 20")
    E("s_lshl_b32 s38, s28, 15")
    E("s_add_u32 s30, s30, s38")
    E("s_add_u32 s30, s30, s32")
    E(f"s_add_u32 s31, s30, {WS_V}")
    E("s_mov_b32 s33, s29")
    E("s_mov_b32 s34, s29")
    U += dma_block("K", 0)
    E("s_lshl_b32 s38, s24, 20")
    E("s_lshl_b32 s39, s27, 16")
    E("s_add_u32 s38, s38, s39")
    E("s_lshl_b32 s39, s3, 14")
    E("s_add_u32 s38, s38, s39")
    E(f"s_add_u32 s38, s38, {WS_Q}")
    for k4 in range(4):
        if k4: E(f"s_add_u32 s38, s38, 4096")
        for i in range(4):
            n = k4 * 4 + i
            E(f"buffer_load_dwordx4 {r(QR + 4 * n, 4)}, v1, s[{SW}:{SW+3}], s38 offen offset:{i*1024}")
    U += dma_block("K", 1)
    U += dma_block("V", 0)
    E("s_lshl_b32 s40, s27, 7")
    E("s_lshl_b32 s38, s3, 5")
    E("s_add_u32 s40, s40, s38")
    for i in range(O0, O0 + 128): E(f"v_mov_b32 v{i}, 0")
    for i in range(LS, LS + 8): E(f"v_mov_b32 v{i}, 0")
    E("s_waitcnt vmcnt(16)")
    E("s_barrier")
    E("s_lshl_b32 s38, s3, 2")
    E("s_add_u32 s38, s38, s37")
    E("s_cmp_eq_u32 s38, 1")
    E("s_cbranch_scc1 L_k2_sig")
    E("L_k2_sigback:")
    U += ST.marks(1)
    U += kreads(0, 0, 0)
    for kt in range(4):
        m = qk_group(kt, kt & 1, 0)
        f = spread(kreads(0, kt + 1, (kt + 1) & 1), 0, 8) if kt < 3 else []
        U += interleave(m, f)
    E("s_waitcnt vmcnt(8)")
    E("s_barrier")
    U += dma_block("K", 0)
    su, d = dma4("V", 1, 0); U += su + d
    U += kreads(1, 0, 0)
    E("s_nop 7")
    u1 = sched.finish(U, sched.State(), report=rep)
    A.extend(sched.texts(u1))
    A("s_cmp_le_u32 s29, 2")
    A("s_cselect_b32 s38, s36, 0")
    A("s_cmp_eq_u32 s38, 0")
    A("s_cbranch_scc1 L_k2_nomask0")
    A.extend(sched.texts(sched.finish(mask_code(), report=rep)))
    A.label("L_k2_nomask0")
    A.extend(sched.texts(sched.finish(rescale(True, 0), report=rep)))
    ST.mark(A, 2)
    A("s_waitcnt lgkmcnt(0)")
    def phaseA(par):
        ks_ = (par + 1) & 1
        L = []
        for kt in range(4):
            m = qk_group(kt, kt & 1, 1)
            f = []
            if kt < 3:
                f += spread(kreads(ks_, kt + 1, (kt + 1) & 1), 0, 8)
            else:
                f += [(-1, "s_waitcnt vmcnt(16) lgkmcnt(0)"), (-1, "s_barrier")]
                f += spread(vreads(par, 0, 0), 0, 8)
                su, d = dma4("K", ks_, 0)
                f += [(8, x) for x in su] + [(9 + 2 * i, d[i]) for i in range(4)]
            if kt == 0:
                su, d = dma4("V", ks_, 1)
                f += [(8, x) for x in su] + [(9 + 2 * i, d[i]) for i in range(4)]
                f += [(15, x) for x in dma_adv("V")]
            f.sort(key=lambda x: x[0])
            L += interleave(m, f)
        return L
    def phaseB(par):
        L = []
        sm = softmax(par ^ 1)
        mm = l_mfmas(par)
        for grp in range(4): mm += pv_group(grp, grp & 1, par)
        f = []
        for grp in range(3):
            f += spread(vreads(par, grp + 1, (grp + 1) & 1), 4 + 16 * grp, 4 + 16 * grp + 10)
        f += [(51, "s_waitcnt vmcnt(16) lgkmcnt(0)"), (51, "s_barrier")]
        f += spread(kreads(par, 0, 0), 52, 62)
        su, d = dma4("K", (par + 1) & 1, 1)
        f += [(14, x) for x in su] + [(15, d[0]), (17, d[1]), (31, d[2]), (33, d[3])] + [(34, x) for x in dma_adv("K")]
        su, d = dma4("V", par, 0)
        f += [(60, x) for x in su] + [(61 + 2 * i, d[i]) for i in range(4)]
        f += spread(sm, 1, 66)
        f += [(66, f"v_and_b32 v{ORA}, 0x40004000, v{ORA}"), (67, f"v_cmp_ne_u32 vcc, 0, v{ORA}")]
        f.sort(key=lambda x: x[0])
        return interleave(mm, f)
    bodyA = [phaseA(0), phaseA(1)]; bodyB = [phaseB(0), phaseB(1)]
    st = sched.State()
    whole = bodyA[0] + ["LBL_B0:"] + bodyB[0] + ["LBL_A1:"] + bodyA[1] + ["LBL_B1:"] + bodyB[1]
    lp = sched.texts(sched.finish_loop(whole, st, report=rep))
    iB0 = lp.index("LBL_B0:"); iA1 = lp.index("LBL_A1:"); iB1 = lp.index("LBL_B1:")
    seg = {("A", 0): lp[:iB0], ("B", 0): lp[iB0 + 1:iA1], ("A", 1): lp[iA1 + 1:iB1], ("B", 1): lp[iB1 + 1:]}
    for par in range(2):
        if par == 0: A(".p2align 6")
        A.label(f"L_k2_top{par}")
        A("s_cmp_eq_u32 s29, 1")
        A(f"s_cbranch_scc1 L_k2_skip{par}")
        A.extend(seg[("A", par)])
        A("s_add_u32 s28, s28, 1")
        A("s_cmp_le_u32 s29, 3")
        A("s_cselect_b32 s38, s36, 0")
        A("s_cmp_lg_u32 s38, 0")
        A(f"s_cbranch_scc1 L_k2_mask{par}")
        A.label(f"L_k2_B{par}")
        A.extend(seg[("B", par)])
        A("s_sub_u32 s29, s29, 1")
        A("s_cmp_eq_u32 s29, 0")
        A("s_cbranch_scc1 L_k2_exit")
        A(f"s_cbranch_vccnz L_k2_rare{par}")
        A.label(f"L_k2_cont{par}")
        if par == 1: A("s_branch L_k2_top0")
    for par in range(2):
        A.label(f"L_k2_skip{par}")
        A("s_waitcnt vmcnt(12) lgkmcnt(0)")
        A("s_barrier")
        A.extend(vreads(par, 0, 0))
        A("s_waitcnt lgkmcnt(0)")
        A(f"s_branch L_k2_B{par}")
        A.label(f"L_k2_mask{par}")
        A("s_nop 7")
        A.extend(sched.texts(sched.finish(mask_code(), report=rep)))
        A(f"s_branch L_k2_B{par}")
        A.label(f"L_k2_rare{par}")
        A("s_nop 7")
        A.extend(sched.texts(sched.finish(rescale(False, par ^ 1), report=rep)))
        A(f"s_branch L_k2_cont{par}")
    A.label("L_k2_sig")
    A("s_mov_b64 exec, 1")
    A("s_lshl_b32 s38, s24, 2")
    A("s_lshl_b32 s39, 1, s26")
    A("v_mov_b32 v12, s38")
    A("v_mov_b32 v13, s39")
    A("global_atomic_or v12, v13, s[4:5] sc1")
    A("s_mov_b64 exec, -1")
    A("s_branch L_k2_sigback")
    A.label("L_k2_exit")
    ST.mark(A, 3)
    A("s_waitcnt vmcnt(0) lgkmcnt(0)")
    A("s_barrier")
    A("s_lshl_b32 s41, s24, 3")
    A("s_add_u32 s41, s41, s26")
    A("s_lshl_b32 s42, s41, 12")
    A("s_lshl_b32 s38, s3, 10")
    A("s_add_u32 s42, s42, s38")
    A(f"s_add_u32 s42, s42, {WS_PART + (8 << 20)}")
    A("s_lshl_b32 s41, s41, 16")
    A("s_lshl_b32 s38, s3, 14")
    A("s_add_u32 s41, s41, s38")
    A(f"s_add_u32 s41, s41, {WS_PART}")
    A("s_cmp_lg_u32 s37, 0")
    A("s_cbranch_scc1 L_k2_final")
    CT = 32
    def ctx(tt, ds): return CT + (tt * 8 + ds) * 4
    def pack_plain(store):
        L = []
        for tt in range(2):
            L.append(f"v_rcp_f32 v{12+2*tt}, v{LS+4*tt}")
        for tt in range(2):
            L.append(f"v_mov_b32 v{13+2*tt}, v{12+2*tt}")
        n = 0
        for tt in range(2):
            for ds in range(8):
                for h in range(2):
                    o = O(2 * ds + h, tt)
                    for i in range(2):
                        L.append(f"v_pk_mul_f32 v[{o+2*i}:{o+2*i+1}], v[{o+2*i}:{o+2*i+1}], v[{12+2*tt}:{13+2*tt}]")
                    for i in range(2):
                        L.append(f"v_cvt_pk_bf16_f32 v{ctx(tt, ds)+2*h+i}, v{o+2*i}, v{o+2*i+1}")
                if store:
                    if n and n % 4 == 0: L.append("s_add_u32 s41, s41, 4096")
                    L.append(f"buffer_store_dwordx4 v[{ctx(tt, ds)}:{ctx(tt, ds)+3}], v1, s[{SW}:{SW+3}], s41 offen offset:{(n % 4) * 1024} sc1")
                n += 1
        return L
    L = [f"v_mov_b32 v108, v{NEGM}", f"v_mov_b32 v109, v{LS}", f"v_mov_b32 v110, v{NEGM+4}", f"v_mov_b32 v111, v{LS+4}",
         f"buffer_store_dwordx4 v[108:111], v1, s[{SW}:{SW+3}], s42 offen sc1"]
    L += pack_plain(True)
    L += ["s_mov_b32 s27, s26", "s_mov_b32 s28, 0", "s_lshl_b32 s29, s26, 1", "s_add_u32 s29, s29, 2", "s_mov_b32 s36, 1", "s_mov_b32 s37, 1"]
    A.extend(sched.texts(sched.finish(L, report=rep)))
    A("s_branch L_k2_unit")
    A.label("L_k2_final")
    WV = 112
    WD = 119
    def region(sb): return (sb % 5) * 28672
    def w_dma(sb):
        c, kh = sb >> 1, sb & 1
        out = []
        for p in range(7):
            it = []
            if p % 4 == 0:
                it.append(f"s_add_u32 m0, s43, {region(sb) + p * 1024}")
                it.append(f"s_add_u32 s35, s44, {kh * 4 * 32 * 896 + c * 224}")
            it.append(f"buffer_load_dwordx4 v{WV+p}, s[{SWO}:{SWO+3}], s35 offen offset:{(p % 4) * 1024} lds @tag=wb{sb}")
            out.append("\n".join(it))
        return out
    L = []
    L.append("s_mul_i32 s43, s3, 7168")
    L.append("s_mul_i32 s44, s24, 229376")
    L.append(f"s_mul_i32 s38, s3, {32 * 896}")
    L.append("s_add_u32 s44, s44, s38")
    L.append("s_mov_b32 s38, 0x12492493")
    for p in range(7):
        L.append(f"v_add_u32 v12, {p * 64}, v0")
        L.append("v_mul_hi_u32 v13, v12, s38")
        L.append("v_mul_u32_u24 v14, 14, v13")
        L.append("v_sub_u32 v12, v12, v14")
        L.append("v_mul_u32_u24 v13, 896, v13")
        L.append(f"v_lshl_add_u32 v12, v12, 4, v13")
        L.append(f"v_subrev_u32 v{WV+p}, {(p % 4) * 1024}, v12")
    L.append("v_lshrrev_b32 v12, 2, v0")
    L.append("v_mul_u32_u24 v12, 224, v12")
    L.append("v_and_b32 v13, 3, v0")
    L.append(f"v_lshl_add_u32 v{WD}, v13, 3, v12")
    L.append("s_lshl_b32 s45, s24, 7")
    L.append("s_lshl_b32 s38, s27, 3")
    L.append("s_add_u32 s45, s45, s38")
    L.append("s_lshl_b32 s38, s3, 1")
    L.append("s_add_u32 s45, s45, s38")
    L.append("s_mul_i32 s45, s45, 14336")
    L.append(f"s_add_u32 s45, s45, {WS_Y}")
    A.extend(sched.texts(sched.finish(L, report=rep)))
    A("s_cmp_eq_u32 s37, 2")
    A("s_cbranch_scc1 L_k2_comb")
    stN = sched.State()
    L = []
    dm = []
    for sb in range(5): dm += w_dma(sb)
    pk = pack_plain(False)
    L += dm[:14]
    k = 14
    for i, x in enumerate(pk):
        L.append(x)
        if i % 6 == 5 and k < len(dm): L.append(dm[k]); k += 1
    L += dm[k:]
    A.extend(sched.texts(sched.finish(L, stN, report=rep)))
    A("s_branch L_k2_oproj")
    A.label("L_k2_comb")
    A("s_lshl_b32 s38, s24, 2")
    A("v_mov_b32 v12, s38")
    A.label("L_k2_poll")
    A("global_load_dword v13, v12, s[4:5] sc1")
    A("s_waitcnt vmcnt(0)")
    A("v_readfirstlane_b32 s38, v13")
    A("s_nop 0")
    A("s_bitcmp1_b32 s38, s26")
    A("s_cbranch_scc1 L_k2_polled")
    A("s_sleep 4")
    A("s_branch L_k2_poll")
    A.label("L_k2_polled")
    stC = sched.State()
    L = [f"buffer_load_dwordx4 v[108:111], v1, s[{SW}:{SW+3}], s42 offen sc1"]
    for n in range(16):
        if n and n % 4 == 0: L.append("s_add_u32 s41, s41, 4096")
        L.append(f"buffer_load_dwordx4 v[{CT+4*n}:{CT+4*n+3}], v1, s[{SW}:{SW+3}], s41 offen offset:{(n % 4) * 1024} sc1")
    L += dm[:14]
    cb = []
    for tt in range(2):
        nb, lb = 108 + 2 * tt, 109 + 2 * tt
        cA, cB = 12 + 4 * tt, 14 + 4 * tt
        cb += [f"v_min_f32 v20, v{NEGM+4*tt}, v{nb}",
               f"v_sub_f32 v21, v20, v{NEGM+4*tt}", f"v_sub_f32 v22, v20, v{nb}",
               "v_exp_f32 v21, v21", "v_exp_f32 v22, v22",
               f"v_mul_f32 v22, v22, v{lb}",
               f"v_fma_f32 v20, v21, v{LS+4*tt}, v22",
               "v_rcp_f32 v20, v20",
               f"v_mul_f32 v{cA}, v21, v20", f"v_mul_f32 v{cB}, v22, v20",
               f"v_mov_b32 v{cA+1}, v{cA}", f"v_mov_b32 v{cB+1}, v{cB}"]
    n = 0
    for tt in range(2):
        cA, cB = 12 + 4 * tt, 14 + 4 * tt
        for ds in range(8):
            for h in range(2):
                o = O(2 * ds + h, tt)
                for i in range(2):
                    c_ = ctx(tt, ds) + 2 * h + i
                    t = 20 + 2 * (n % 4); n += 1
                    cb += [f"v_lshlrev_b32 v{t}, 16, v{c_}", f"v_and_b32 v{t+1}, 0xffff0000, v{c_}",
                           f"v_pk_mul_f32 v[{o+2*i}:{o+2*i+1}], v[{o+2*i}:{o+2*i+1}], v[{cA}:{cA+1}]",
                           f"v_pk_fma_f32 v[{t}:{t+1}], v[{t}:{t+1}], v[{cB}:{cB+1}], v[{o+2*i}:{o+2*i+1}]",
                           f"v_cvt_pk_bf16_f32 v{c_}, v{t}, v{t+1}"]
    k = 14
    for i, x in enumerate(cb):
        L.append(x)
        if i % 12 == 11 and k < len(dm): L.append(dm[k]); k += 1
    L += dm[k:]
    A.extend(sched.texts(sched.finish(L, stC, report=rep)))
    A.label("L_k2_oproj")
    st = sched.State()
    st.vm = [(set(), f"wb{sb}") for sb in range(5) for _ in range(7)]
    YA = [128, 184]
    def ya(c, mt, tt): return YA[c & 1] + (mt * 2 + tt) * 4
    def wf(n, u): return FR + (n & 3) * 16 + u * 4
    groups = [(sb, mt) for sb in range(8) for mt in range(7)]
    def w_reads(n):
        sb, mt = groups[n]
        pre = []
        if mt == 0:
            pre += [f"WAITVM @need=wb{sb}", "s_barrier"]
            if sb > 0:
                pre.append(f"v_add_u32 v{WD}, {hex((region(sb) - region(sb - 1)) & 0xffffffff)}, v{WD}")
        return pre, [f"ds_read_b64_tr_b16 {r(wf(n, u) + 2 * h2, 2)}, v{WD} offset:{u * 7168 + h2 * 16 * 224 + mt * 32}"
                     for u in range(4) for h2 in range(2)]
    def y_drain(pair):
        out = []
        t0, t1 = 2 * pair, 2 * pair + 1
        for tt in range(2):
            a0 = ya(t0 // 7, t0 % 7, tt); a1 = ya(t1 // 7, t1 % 7, tt)
            out += [f"v_cvt_pk_bf16_f32 v{a0}, v{a0}, v{a0+1}", f"v_cvt_pk_bf16_f32 v{a0+1}, v{a0+2}, v{a0+3}",
                    f"v_cvt_pk_bf16_f32 v{a0+2}, v{a1}, v{a1+1}", f"v_cvt_pk_bf16_f32 v{a0+3}, v{a1+2}, v{a1+3}",
                    f"s_add_u32 s38, s45, {tt * 14336 + pair * 1024}\n"
                    f"buffer_store_dwordx4 v[{a0}:{a0+3}], v1, s[{SW}:{SW+3}], s38 offen"]
        return out
    L = ST.marks(4)
    for n in range(2):
        pre, rd = w_reads(n); L += pre + rd
    pend = []
    for n, (sb, mt) in enumerate(groups):
        c, kh = sb >> 1, sb & 1
        m = []
        for tt in range(2):
            for u in range(4):
                m.append(mfma16(ya(c, mt, tt), wf(n, u), ctx(tt, kh * 4 + u), "0" if (kh == 0 and u == 0) else None))
        f = []
        if n + 2 < len(groups):
            pre, rd = w_reads(n + 2)
            f += [(-1, x) for x in pre] + spread(rd, 0, 8)
        if 2 <= sb < 5 and mt < 5:
            dd = w_dma(sb + 3)
            sel = [[0, 1], [2, 3], [4], [5], [6]][mt]
            f += spread([dd[i] for i in sel], 2, 8)
        take = pend[:5]; pend = pend[5:]
        if take: f += spread(take, 3, 8)
        if kh == 1 and (7 * c + mt) & 1:
            pend += y_drain((7 * c + mt) >> 1)
        f.sort(key=lambda x: x[0])
        L += interleave(m, f)
    L += pend
    L += ST.marks(5)
    A.extend(sched.texts(sched.finish(L, st, report=rep)))
    if ST.en:
        A("s_waitcnt vmcnt(0)")
        ST.mark(A, 6)
        ST.n = 7
        ST.write(A, 6, 1)
    A.label("L_k2_end")
    A("s_endpgm")
    if opt.get("report"):
        for x in rep: print("HAZ", x)
    return kernel_header(name) + A.text() + kernel_desc(name, vgpr=512, accum=256)
```

```python
from common import *
import sched
from k1 import f2u
import math

def reduce_g(L, x, t, op="v_add_f32"):
    L += [f"v_mov_b32 v{t}, v{x}", f"v_permlane16_swap_b32 v{x}, v{t}", f"{op} v{x}, v{x}, v{t}",
          f"v_mov_b32 v{t}, v{x}", f"v_permlane32_swap_b32 v{x}, v{t}", f"{op} v{x}, v{x}, v{t}"]

def gen_k3(name, opt):
    A = Asm(); ST = Stamps(opt.get("stamps", 0), base=60, n=3)
    A("s_cmp_ge_u32 s2, 128")
    A("s_cbranch_scc1 L_k3_end")
    ST.mark(A, 0)
    L = []
    E = L.append
    E("s_load_dwordx2 s[4:5], s[0:1], 0")
    E("s_load_dwordx2 s[6:7], s[0:1], 96")
    E("v_lshrrev_b32 v1, 6, v0")
    E("v_and_b32 v0, 63, v0")
    E("v_readfirstlane_b32 s3, v1")
    E("v_lshlrev_b32 v1, 4, v0")
    E("s_mul_i32 s20, s2, 14336")
    E("s_lshl_b32 s21, s3, 11")
    E("s_add_u32 s20, s20, s21")
    E(f"s_add_u32 s22, s20, {WS_Y}")
    E("s_lshl_b32 s21, s2, 4")
    E("v_and_b32 v2, 15, v0")
    E("v_add_u32 v3, s21, v2")
    E("v_mul_u32_u24 v3, 896, v3")
    E("v_lshrrev_b32 v4, 4, v0")
    E("v_lshl_add_u32 v3, v4, 3, v3")
    E("s_lshl_b32 s21, s3, 7")
    E("v_add_u32 v3, s21, v3")
    E("s_waitcnt lgkmcnt(0)")
    srd(E, 8, 6, 160 << 20); srd(E, 12, 4, 2048 * 448 * 2)
    YB = 32
    for h in range(16):
        for p in range(2):
            E(f"buffer_load_dwordx4 v[{YB+(h*2+p)*4}:{YB+(h*2+p)*4+3}], v1, s[8:11], s22 offen offset:{p*1024}")
        if h < 15: E(f"s_add_u32 s22, s22, {128 * 14336}")
    for q in range(4):
        E(f"buffer_load_dwordx2 v[{8+2*q}:{9+2*q}], v3, s[12:15], 0 offen offset:{q*32}")
    AC = 16
    E("s_mov_b32 s23, 0x00003f80"); E("s_mov_b32 s24, 0x3f800000")
    for h in range(16):
        for p in range(2):
            for d in range(4):
                y = YB + (h * 2 + p) * 4 + d; a_ = AC + p * 8 + 2 * d
                if h == 0:
                    E(f"v_lshlrev_b32 v{a_}, 16, v{y}"); E(f"v_and_b32 v{a_+1}, 0xffff0000, v{y}")
                else:
                    E(f"v_dot2_f32_bf16 v{a_}, v{y}, s23, v{a_}"); E(f"v_dot2_f32_bf16 v{a_+1}, v{y}, s24, v{a_+1}")
    for d in range(8):
        E(f"v_cvt_pk_bf16_f32 v{32+d}, v{AC+2*d}, v{AC+2*d+1}")
    for d in range(8):
        E(f"v_lshlrev_b32 v{AC+2*d}, 16, v{32+d}"); E(f"v_and_b32 v{AC+2*d+1}, 0xffff0000, v{32+d}")
        E(f"v_lshlrev_b32 v{40+2*d}, 16, v{8+d}"); E(f"v_and_b32 v{41+2*d}, 0xffff0000, v{8+d}")
    for d in range(8):
        E(f"v_pk_add_f32 v[{AC+2*d}:{AC+2*d+1}], v[{AC+2*d}:{AC+2*d+1}], v[{40+2*d}:{41+2*d}]")
    for d in range(8):
        E(f"v_cvt_pk_bf16_f32 v{32+d}, v{AC+2*d}, v{AC+2*d+1}")
    E(f"s_add_u32 s22, s20, {WS_H}")
    E("buffer_store_dwordx4 v[32:35], v1, s[8:11], s22 offen")
    E("buffer_store_dwordx4 v[36:39], v1, s[8:11], s22 offen offset:1024")
    for d in range(8):
        E(f"v_lshlrev_b32 v{AC+2*d}, 16, v{32+d}"); E(f"v_and_b32 v{AC+2*d+1}, 0xffff0000, v{32+d}")
    E("v_lshlrev_b32 v2, 2, v2")
    E("s_lshl_b32 s21, s3, 6")
    E("v_add_u32 v5, s21, v2")
    def cross(x, off):
        reduce_g(L, x, 6)
        E(f"ds_write_b32 v5, v{x} offset:{off}")
        E("s_waitcnt lgkmcnt(0)")
        E("s_barrier")
        for k in range(7): E(f"ds_read_b32 v{48+k}, v2 offset:{off + k*64}")
        E(f"v_add_f32 v{x}, v48, v49")
        for k in range(2, 7): E(f"v_add_f32 v{x}, v{x}, v{48+k}")
    E(f"v_pk_add_f32 v[40:41], v[{AC}:{AC+1}], v[{AC+2}:{AC+3}]")
    for d in range(2, 8): E(f"v_pk_add_f32 v[40:41], v[40:41], v[{AC+2*d}:{AC+2*d+1}]")
    E("v_add_f32 v40, v40, v41")
    cross(40, 0)
    E(f"v_mul_f32 v40, {hex(f2u(-1.0/448))}, v40")
    E("v_mov_b32 v41, v40")
    for d in range(8): E(f"v_pk_add_f32 v[{AC+2*d}:{AC+2*d+1}], v[{AC+2*d}:{AC+2*d+1}], v[40:41]")
    E(f"v_pk_mul_f32 v[42:43], v[{AC}:{AC+1}], v[{AC}:{AC+1}]")
    for d in range(1, 8): E(f"v_pk_fma_f32 v[42:43], v[{AC+2*d}:{AC+2*d+1}], v[{AC+2*d}:{AC+2*d+1}], v[42:43]")
    E("v_add_f32 v42, v42, v43")
    cross(42, 512)
    E(f"v_mov_b32 v43, {hex(f2u(1e-5))}")
    E(f"v_fmac_f32 v43, {hex(f2u(1.0/448))}, v42")
    E("v_rsq_f32 v42, v43")
    E("v_mov_b32 v43, v42")
    for d in range(8): E(f"v_pk_mul_f32 v[{AC+2*d}:{AC+2*d+1}], v[{AC+2*d}:{AC+2*d+1}], v[42:43]")
    for d in range(8): E(f"v_cvt_pk_bf16_f32 v{56+d}, v{AC+2*d}, v{AC+2*d+1}")
    E(f"s_add_u32 s22, s20, {WS_HN}")
    E("buffer_store_dwordx4 v[56:59], v1, s[8:11], s22 offen")
    E("buffer_store_dwordx4 v[60:63], v1, s[8:11], s22 offen offset:1024")
    A.extend(sched.texts(sched.finish(L)))
    if ST.en:
        ST.mark(A, 1); A("s_waitcnt vmcnt(0)"); ST.mark(A, 2)
        A("s_cmp_lt_u32 s3, 4"); A("s_cbranch_scc0 L_k3_end")
        ST.write(A, 6, 2)
    A.label("L_k3_end")
    A("s_endpgm")
    return kernel_header(name) + A.text() + kernel_desc(name, vgpr=160, accum=160)

def w7_voffs(L, WV, rowstride, tmp=12):
    L.append("s_mov_b32 s38, 0x12492493")
    for p in range(7):
        L.append(f"v_add_u32 v{tmp}, {p * 64}, v0")
        L.append(f"v_mul_hi_u32 v{tmp+1}, v{tmp}, s38")
        L.append(f"v_mul_u32_u24 v{tmp+2}, 14, v{tmp+1}")
        L.append(f"v_sub_u32 v{tmp}, v{tmp}, v{tmp+2}")
        L.append(f"v_mul_u32_u24 v{tmp+1}, {rowstride}, v{tmp+1}")
        L.append(f"v_lshl_add_u32 v{tmp}, v{tmp}, 4, v{tmp+1}")
        L.append(f"v_subrev_u32 v{WV+p}, {(p % 4) * 1024}, v{tmp}")

def gen_k4(name, opt):
    A = Asm(); ST = Stamps(opt.get("stamps", 0), base=60, n=5)
    A("s_cmp_ge_u32 s2, 256")
    A("s_cbranch_scc1 L_k4_end")
    ST.mark(A, 0)
    L = []; E = L.append
    E("s_load_dwordx4 s[20:23], s[0:1], 56")
    E("s_load_dwordx2 s[6:7], s[0:1], 96")
    E("v_lshrrev_b32 v1, 6, v0")
    E("v_and_b32 v0, 63, v0")
    E("v_readfirstlane_b32 s3, v1")
    E("v_lshlrev_b32 v1, 4, v0")
    E("s_and_b32 s24, s2, 7")
    E("s_lshr_b32 s25, s2, 3")
    E("s_and_b32 s26, s25, 1")
    E("s_lshl_b32 s24, s24, 1")
    E("s_add_u32 s24, s24, s26")
    E("s_lshr_b32 s27, s25, 1")
    WV, WD = 2, 9
    w7_voffs(L, WV, 3584)
    E("v_lshrrev_b32 v12, 2, v0")
    E("v_mul_u32_u24 v12, 224, v12")
    E("v_and_b32 v13, 3, v0")
    E(f"v_lshl_add_u32 v{WD}, v13, 3, v12")
    E("s_mul_i32 s43, s3, 7168")
    E("s_and_b32 s38, s3, 1")
    E(f"s_mul_i32 s44, s38, {32 * 3584}")
    E("s_mul_i32 s38, s24, 224")
    E("s_add_u32 s44, s44, s38")
    E("s_lshl_b32 s45, s27, 3")
    E("s_lshl_b32 s38, s3, 1")
    E("s_add_u32 s45, s45, s38")
    E("s_mul_i32 s46, s45, 14336")
    E(f"s_add_u32 s46, s46, {WS_HN}")
    E("s_waitcnt lgkmcnt(0)")
    E("s_cmp_lt_u32 s3, 2")
    E("s_cselect_b32 s20, s20, s22")
    E("s_cselect_b32 s21, s21, s23")
    srd(E, 12, 20, 448 * 1792 * 2); srd(E, 8, 6, 160 << 20)
    def region(sb): return (sb % 5) * 28672
    def w_dma(sb):
        out = []
        for p in range(7):
            it = []
            if p % 4 == 0:
                it.append(f"s_add_u32 m0, s43, {region(sb) + p * 1024}")
                it.append(f"s_add_u32 s35, s44, {sb * 64 * 3584}")
            it.append(f"buffer_load_dwordx4 v{WV+p}, s[12:15], s35 offen offset:{(p % 4) * 1024} lds @tag=wb{sb}")
            out.append("\n".join(it))
        return out
    XH = 256 + 64
    def xh(tt, ks): return XH + (tt * 14 + ks) * 4
    def xload(ks):
        return [f"s_add_u32 s38, s46, {tt * 14336 + ks * 1024}\nbuffer_load_dwordx4 {r(xh(tt, ks), 4)}, v1, s[8:11], s38 offen" for tt in range(2)]
    for sb in range(5):
        L += w_dma(sb) + xload(2 * sb) + xload(2 * sb + 1)
    for ks in range(10, 14): L += xload(ks)
    L += ST.marks(1)
    AC = 16
    def ac(mat, ft, tt): return AC + ((mat * 7 + ft) * 2 + tt) * 4
    def wf(n, u): return 256 + (n & 3) * 16 + u * 4
    groups = [(sb, ft) for sb in range(7) for ft in range(7)]
    def w_reads(n):
        sb, ft = groups[n]
        pre = []
        if ft == 0:
            pre += [f"WAITVM @need=wb{sb}", "s_barrier"]
            if sb > 0: pre.append(f"v_add_u32 v{WD}, {hex((region(sb) - region(sb - 1)) & 0xffffffff)}, v{WD}")
        return pre, [f"ds_read_b64_tr_b16 {r(wf(n, u) + 2 * h2, 2)}, v{WD} offset:{u * 7168 + h2 * 16 * 224 + ft * 32}"
                     for u in range(4) for h2 in range(2)]
    for n in range(2):
        pre, rd = w_reads(n); L += pre + rd
    L += ST.marks(2)
    def epi(ft):
        out = []
        T = 128 + (ft & 1) * 16
        for tt in range(2):
            g = ac(0, ft, tt); u = ac(1, ft, tt); t = T + tt * 8
            for i in range(4): out.append(f"v_mul_f32 v{t+i}, {hex(f2u(-math.log2(math.e)))}, v{g+i}")
            for i in range(4): out.append(f"v_exp_f32 v{t+i}, v{t+i}")
            for i in range(4): out.append(f"v_mul_f32 v{g+i}, v{g+i}, v{u+i}")
            for i in range(4): out.append(f"v_add_f32 v{t+i}, 1.0, v{t+i}")
            for i in range(4): out.append(f"v_rcp_f32 v{t+i}, v{t+i}")
            for i in range(4): out.append(f"v_mul_f32 v{g+i}, v{g+i}, v{t+i}")
            out.append(f"v_cvt_pk_bf16_f32 v{t+4}, v{g}, v{g+1}")
            out.append(f"v_cvt_pk_bf16_f32 v{t+5}, v{g+2}, v{g+3}")
            out.append(f"s_add_u32 s38, s47, {ft}\ns_lshr_b32 s39, s38, 1\ns_lshl_b32 s39, s39, 10\ns_and_b32 s38, s38, 1\ns_lshl_b32 s38, s38, 3\n"
                       f"s_add_u32 s38, s38, s39\ns_add_u32 s38, s38, s48\ns_add_u32 s38, s38, {tt * 57344}\n"
                       f"buffer_store_dwordx2 v[{t+4}:{t+5}], v1, s[8:11], s38 offen")
        return out
    L += ["s_mul_i32 s47, s24, 7", "s_mul_i32 s48, s45, 57344", f"s_add_u32 s48, s48, {WS_H1}"]
    pend = []
    for n, (sb, ft) in enumerate(groups):
        m = []
        for mat in range(2):
            for tt in range(2):
                for k in range(2):
                    m.append(mfma16(ac(mat, ft, tt), wf(n, mat * 2 + k), xh(tt, 2 * sb + k), "0" if (sb == 0 and k == 0) else None))
        f = []
        if n + 2 < len(groups):
            pre, rd = w_reads(n + 2)
            f += [(-1, x) for x in pre] + spread(rd, 0, 8)
        if 2 <= sb < 4 and ft < 5:
            dd = w_dma(sb + 3)
            sel = [[0, 1], [2, 3], [4], [5], [6]][ft]
            f += spread([dd[i] for i in sel], 2, 8)
        take = pend[:12]; pend = pend[12:]
        if take: f += spread(take, 2, 8)
        if sb == 6: pend += epi(ft)
        f.sort(key=lambda x: x[0])
        L += interleave(m, f)
    L += ST.marks(3)
    L += pend
    A.extend(sched.texts(sched.finish(L)))
    if ST.en:
        A("s_waitcnt vmcnt(0)"); ST.mark(A, 4)
        ST.write(A, 6, 3)
    A.label("L_k4_end")
    A("s_endpgm")
    return kernel_header(name) + A.text() + kernel_desc(name, vgpr=512, accum=256)

def gen_k5(name, opt):
    A = Asm(); ST = Stamps(opt.get("stamps", 0), base=60, n=4)
    A("s_cmp_ge_u32 s2, 256")
    A("s_cbranch_scc1 L_k5_end")
    ST.mark(A, 0)
    L = []; E = L.append
    E("s_load_dwordx4 s[20:23], s[0:1], 72")
    E("s_load_dwordx2 s[6:7], s[0:1], 96")
    E("v_lshrrev_b32 v1, 6, v0")
    E("v_and_b32 v0, 63, v0")
    E("v_readfirstlane_b32 s3, v1")
    E("v_lshlrev_b32 v1, 4, v0")
    E("s_and_b32 s24, s2, 7")
    E("s_lshr_b32 s25, s2, 3")
    E("s_and_b32 s26, s25, 3")
    E("s_lshr_b32 s25, s25, 2")
    E("s_lshl_b32 s24, s24, 3")
    E("s_add_u32 s27, s24, s25")
    WV, WD = 2, 9
    w7_voffs(L, WV, 896)
    E("s_mul_i32 s43, s3, 40960")
    E("v_lshrrev_b32 v12, 2, v0")
    E("v_mul_u32_u24 v12, 224, v12")
    E("v_and_b32 v13, 3, v0")
    E(f"v_lshl_add_u32 v{WD}, v13, 3, v12")
    E(f"v_add_u32 v{WD}, s43, v{WD}")
    E(f"s_mul_i32 s44, s3, {14 * 32 * 896}")
    E("s_mul_i32 s38, s26, 224")
    E("s_add_u32 s44, s44, s38")
    E(f"s_mul_i32 s46, s27, {2 * 57344}")
    E(f"s_mul_i32 s38, s3, {14 * 1024}")
    E("s_add_u32 s46, s46, s38")
    E(f"s_add_u32 s46, s46, {WS_H1}")
    E("s_waitcnt lgkmcnt(0)")
    srd(E, 12, 20, 448 * 1792 * 2); srd(E, 8, 6, 160 << 20); srd(E, 16, 22, 2048 * 448 * 2)
    def w_dma(u):
        out = []
        for p in range(7):
            it = []
            if p % 4 == 0:
                it.append(f"s_add_u32 m0, s43, {(u % 5) * 7168 + p * 1024}")
                it.append(f"s_add_u32 s35, s44, {u * 32 * 896}")
            it.append(f"buffer_load_dwordx4 v{WV+p}, s[12:15], s35 offen offset:{(p % 4) * 1024} lds @tag=wu{u}")
            out.append("\n".join(it))
        return out
    XH = 128
    def xh(tt, ks): return XH + (tt * 14 + ks) * 4
    def xload(ks):
        return [f"s_add_u32 s38, s46, {tt * 57344 + ks * 1024}\nbuffer_load_dwordx4 {r(xh(tt, ks), 4)}, v1, s[8:11], s38 offen" for tt in range(2)]
    for u in range(5): L += xload(u) + w_dma(u)
    L += ST.marks(1)
    AC = 16
    def ac(mt, tt): return AC + (mt * 2 + tt) * 4
    def wf(u, mt): return 72 + (u & 1) * 28 + mt * 4
    def reads(u):
        return [f"WAITVM @need=wu{u}"] + [f"ds_read_b64_tr_b16 {r(wf(u, mt) + 2 * h2, 2)}, v{WD} offset:{(u % 5) * 7168 + h2 * 16 * 224 + mt * 32}"
                for mt in range(7) for h2 in range(2)]
    L += reads(0)
    for u in range(14):
        L.append("s_waitcnt lgkmcnt(0)")
        if u + 5 < 14: L += xload(u + 5) + w_dma(u + 5)
        m = [mfma16(ac(mt, tt), wf(u, mt), xh(tt, u), "0" if u == 0 else None) for mt in range(7) for tt in range(2)]
        L += m
        if u + 1 < 14: L += reads(u + 1)
    L += ST.marks(2)
    E("s_and_b32 s30, s3, 1")
    E("s_lshr_b32 s31, s3, 1")
    E("s_mul_i32 s32, s26, 7")
    E("s_add_u32 s31, s31, s32")
    E("s_lshl_b32 s32, s27, 1")
    E("s_add_u32 s32, s32, s30")
    E("s_mul_i32 s33, s32, 14336")
    E(f"s_add_u32 s33, s33, {WS_H}")
    E("s_lshr_b32 s38, s31, 1")
    E("s_lshl_b32 s38, s38, 10")
    E("s_add_u32 s33, s33, s38")
    E("s_and_b32 s38, s31, 1")
    E("s_lshl_b32 s38, s38, 3")
    E("s_add_u32 s33, s33, s38")
    for k in range(4):
        E(f"buffer_load_dwordx2 v[{72+2*k}:{73+2*k}], v1, s[8:11], s33 offen offset:{k*1024}")
    E("s_lshl_b32 s32, s32, 4")
    E("v_and_b32 v12, 15, v0")
    E("v_add_u32 v12, s32, v12")
    E("v_mul_u32_u24 v12, 896, v12")
    E("v_lshrrev_b32 v13, 4, v0")
    E("v_lshl_add_u32 v12, v13, 3, v12")
    E("s_lshl_b32 s38, s31, 5")
    E("v_add_u32 v12, s38, v12")
    E("v_add_u32 v13, s43, v1")
    for t in range(14):
        E(f"ds_write_b128 v13, v[{AC+4*t}:{AC+4*t+3}] offset:{t*1024}")
    E("s_waitcnt lgkmcnt(0)")
    E("s_barrier")
    E("s_lshl_b32 s38, s3, 10")
    E("v_add_u32 v13, s38, v1")
    E("v_add_u32 v14, 81920, v13")
    for k in range(4):
        for w in range(4):
            E(f"ds_read_b128 v[{128+(k*4+w)*4}:{131+(k*4+w)*4}], v{13 + (w >> 1)} offset:{(w & 1) * 40960 + k * 4096}")
    for k in range(4):
        b = 128 + k * 16
        for w in range(1, 4):
            for i in range(2):
                E(f"v_pk_add_f32 v[{b+2*i}:{b+2*i+1}], v[{b+2*i}:{b+2*i+1}], v[{b+4*w+2*i}:{b+4*w+2*i+1}]")
        E(f"v_cvt_pk_bf16_f32 v{b+4}, v{b}, v{b+1}"); E(f"v_cvt_pk_bf16_f32 v{b+5}, v{b+2}, v{b+3}")
        for i in range(2):
            E(f"v_lshlrev_b32 v{b+2*i}, 16, v{b+4+i}"); E(f"v_and_b32 v{b+2*i+1}, 0xffff0000, v{b+4+i}")
            E(f"v_lshlrev_b32 v{b+8+2*i}, 16, v{72+2*k+i}"); E(f"v_and_b32 v{b+9+2*i}, 0xffff0000, v{72+2*k+i}")
        for i in range(2):
            E(f"v_pk_add_f32 v[{b+2*i}:{b+2*i+1}], v[{b+2*i}:{b+2*i+1}], v[{b+8+2*i}:{b+9+2*i}]")
        E(f"v_cvt_pk_bf16_f32 v{b+4}, v{b}, v{b+1}"); E(f"v_cvt_pk_bf16_f32 v{b+5}, v{b+2}, v{b+3}")
        if k == 3:
            E("s_cmp_ge_u32 s3, 2"); E("s_cbranch_scc1 L_k5_skip")
        E(f"buffer_store_dwordx2 v[{b+4}:{b+5}], v12, s[16:19], 0 offen offset:{k*64}")
    E("L_k5_skip:")
    A.extend(sched.texts(sched.finish(L)))
    if ST.en:
        A("s_waitcnt vmcnt(0)"); ST.mark(A, 3)
        ST.write(A, 6, 4)
    A.label("L_k5_end")
    A("s_endpgm")
    return kernel_header(name) + A.text() + kernel_desc(name, vgpr=256, accum=256)
```

```python
import re

REG = re.compile(r"^(-|\|)?(v|a|s)(\d+|\[(\d+):(\d+)\])\|?$")
def regset(tok):
    tok = tok.strip()
    if tok in ("vcc",): return {("s", 106), ("s", 107)}
    if tok in ("exec",): return {("s", 126), ("s", 127)}
    if tok == "m0": return {("s", 124)}
    if tok.startswith("abs(") or tok.startswith("neg("): tok = tok[4:-1]
    m = REG.match(tok)
    if not m: return set()
    f = m.group(2)
    if m.group(4) is not None:
        lo, hi = int(m.group(4)), int(m.group(5))
    else:
        lo = hi = int(m.group(3))
    if f == "a": return {("v", 256 + i) for i in range(lo, hi + 1)}
    return {(f, i) for i in range(lo, hi + 1)}

TRANS = ("v_exp_f32", "v_log_f32", "v_rcp_f32", "v_rsq_f32", "v_sqrt_f32", "v_sin_f32", "v_cos_f32")
class Ins:
    __slots__ = ("text", "op", "kind", "w", "rd", "srcC", "srcAB", "tag", "need", "passes")
    def __init__(self, text):
        self.tag = None; self.need = None
        if "@" in text:
            text, ann = text.split("@", 1)
            ann = ann.strip()
            for part in ann.split():
                k_, v_ = part.split("=")
                if k_ == "tag": self.tag = v_
                if k_ == "need": self.need = v_.split(",")
        self.text = text.strip()
        t = self.text.split(";")[0].strip()
        sp = t.split(None, 1)
        self.op = sp[0] if sp else ""
        ops = [x.strip() for x in sp[1].split(",")] if len(sp) > 1 else []
        ops2 = []
        for o in ops:
            ops2.append(o.split()[0] if o and not o.startswith("hwreg") else o)
        ops = ops2
        op = self.op
        self.w = set(); self.rd = set(); self.srcC = set(); self.srcAB = set(); self.passes = 0
        R = regset
        if op.endswith(":") or op.startswith("."):
            self.kind = "label"
        elif op == "WAITVM":
            self.kind = "waitvm"
        elif op.startswith("v_mfma"):
            self.kind = "mfma"; self.w = R(ops[0]); self.srcAB = R(ops[1]) | R(ops[2]); self.srcC = R(ops[3])
            self.rd = self.srcAB | self.srcC
            self.passes = 4 if "16x16x32" in op else 8
        elif op.startswith("ds_read") or op.startswith("ds_bpermute") or op.startswith("ds_swizzle"):
            self.kind = "ds"; self.w = R(ops[0])
            for o in ops[1:]: self.rd |= R(o)
        elif op.startswith("ds_"):
            self.kind = "ds"
            for o in ops: self.rd |= R(o)
        elif op.startswith("buffer_load") or op.startswith("global_load"):
            if " lds" in t or "_lds_" in op:
                self.kind = "dma"
                for o in ops: self.rd |= R(o)
                self.rd |= R("m0")
            else:
                self.kind = "vload"; self.w = R(ops[0])
                for o in ops[1:]: self.rd |= R(o)
        elif op.startswith("buffer_store") or op.startswith("global_store"):
            self.kind = "vstore"
            for o in ops: self.rd |= R(o)
        elif op.startswith("buffer_atomic") or op.startswith("global_atomic"):
            ret = " sc0" in t
            if ret and op.startswith("global"):
                self.kind = "vload"; self.w = R(ops[0])
                for o in ops[1:]: self.rd |= R(o)
            elif ret:
                self.kind = "vload"; self.w = R(ops[0])
                for o in ops: self.rd |= R(o)
            else:
                self.kind = "vstore"
                for o in ops: self.rd |= R(o)
        elif op.startswith("buffer_wbl2") or op.startswith("buffer_inv"):
            self.kind = "vstore"
        elif op.startswith("s_waitcnt"):
            self.kind = "wait"
        elif op.startswith("s_load") or op.startswith("s_memtime") or op.startswith("s_memrealtime") or op.startswith("s_buffer_load"):
            self.kind = "smem"; self.w = R(ops[0])
            for o in ops[1:]: self.rd |= R(o)
        elif op == "s_nop":
            self.kind = "nop"
        elif op.startswith("s_cbranch") or op in ("s_branch", "s_endpgm", "s_barrier", "s_setprio", "s_sleep", "s_setpc_b64"):
            self.kind = "ctl"
            if "vcc" in op: self.rd = R("vcc")
            if "exec" in op: self.rd = R("exec")
        elif op.startswith("s_"):
            self.kind = "salu"
            if op.startswith("s_cmp") or op.startswith("s_bitcmp"):
                for o in ops: self.rd |= R(o)
            else:
                self.w = R(ops[0])
                for o in ops[1:]: self.rd |= R(o)
                if "saveexec" in op: self.w |= R("exec"); self.rd |= R("exec")
                if op in ("s_addk_i32", "s_mulk_i32"): self.rd |= self.w
        elif op.startswith("v_"):
            self.kind = "valu"
            if op.startswith("v_cmp"):
                self.w = R(ops[0])
                if op.startswith("v_cmpx"): self.w |= R("exec")
                for o in ops[1:]: self.rd |= R(o)
            elif op.startswith("v_permlane") and "swap" in op:
                self.w = R(ops[0]) | R(ops[1]); self.rd = set(self.w)
            elif op.startswith("v_add_co") or op.startswith("v_addc_co") or op.startswith("v_sub_co"):
                self.w = R(ops[0]) | R(ops[1])
                for o in ops[2:]: self.rd |= R(o)
            else:
                self.w = R(ops[0])
                for o in ops[1:]: self.rd |= R(o)
                if op.startswith("v_fmac") or op.startswith("v_dot2c") or op.startswith("v_writelane") or "_dpp" in op:
                    self.rd |= self.w
                if op.startswith("v_cndmask") and len(ops) == 3: self.rd |= R("vcc")
        else:
            raise ValueError("unknown instr: " + self.text)
    def states(self):
        if self.kind in ("label", "waitvm"): return 0
        if self.kind == "nop": return int(self.text.split()[1], 0) + 1
        return 1

def parse(lines):
    out = []
    for l in lines:
        for x in l.split("\n"):
            x = x.strip()
            if x and not x.startswith(";"):
                out.append(Ins(x))
    return out

def parse_wait(text):
    vm = re.search(r"vmcnt\((\d+)\)", text); lg = re.search(r"lgkmcnt\((\d+)\)", text)
    return (int(vm.group(1)) if vm else None, int(lg.group(1)) if lg else None)

class State:
    def __init__(self):
        self.lg = []
        self.vm = []
        self.smem = 0
    def copy(self):
        s = State(); s.lg = list(self.lg); s.vm = list(self.vm); s.smem = self.smem; return s

def insert_waits(ins, st=None):
    if st is None: st = State()
    out = []
    for x in ins:
        needlg = None; needvm = None
        touch = x.rd | x.w
        if x.kind == "waitvm":
            idx = -1
            for i, (d, tag) in enumerate(st.vm):
                if tag in x.need: idx = i
            if idx >= 0:
                n = len(st.vm) - 1 - idx
                n = min(n, 63)
                out.append(Ins(f"s_waitcnt vmcnt({n})"))
                st.vm = st.vm[len(st.vm) - n:] if n else []
            continue
        if x.kind == "wait":
            vm, lg = parse_wait(x.text)
            if vm is not None and len(st.vm) > vm: st.vm = st.vm[len(st.vm) - vm:] if vm else []
            if lg is not None:
                if len(st.lg) > lg: st.lg = st.lg[len(st.lg) - lg:] if lg else []
                if lg == 0: st.smem = 0
            out.append(x); continue
        for i, d in enumerate(st.lg):
            if d & touch: needlg = len(st.lg) - 1 - i
        for i, (d, tag) in enumerate(st.vm):
            if d & touch: needvm = len(st.vm) - 1 - i
        if needlg is not None or needvm is not None:
            t = "s_waitcnt"
            if needvm is not None:
                needvm = min(needvm, 63)
                t += f" vmcnt({needvm})"; st.vm = st.vm[len(st.vm) - needvm:] if needvm else []
            if needlg is not None:
                if st.smem: needlg = 0
                needlg = min(needlg, 15)
                t += f" lgkmcnt({needlg})"; st.lg = st.lg[len(st.lg) - needlg:] if needlg else []
                if needlg == 0: st.smem = 0
            out.append(Ins(t))
        if x.kind == "ds": st.lg.append(set(x.w))
        elif x.kind == "smem":
            st.lg.append(set(x.w)); st.smem = 1
        elif x.kind in ("vload", "vstore", "dma"): st.vm.append((set(x.w), x.tag))
        out.append(x)
    return out

def required(p, c):
    n = 0
    isv = lambda S: {r for r in S if r[0] == "v"}
    iss = lambda S: {r for r in S if r[0] == "s"}
    if p.kind == "mfma":
        big = {4: 8, 8: 12}[p.passes]
        if c.kind == "mfma":
            if p.w & c.srcAB: n = max(n, big)
            if p.w & c.srcC and not (p.w == c.srcC and p.passes == c.passes): n = max(n, big - 2)
            if p.w & c.w and not (p.w == c.srcC and p.passes == c.passes): n = max(n, big - 2)
        elif c.kind in ("valu", "ds", "vload", "vstore", "dma"):
            if p.w & (c.rd | c.w): n = max(n, big)
        if c.kind == "valu" and p.srcC & c.w: n = max(n, {4: 3, 8: 7}[p.passes])
    if p.kind == "valu":
        if c.kind == "mfma" and isv(p.w) & c.rd: n = max(n, 2)
        if c.kind == "mfma" and ("s", 126) in p.w: n = max(n, 4)
        if c.kind == "valu":
            if p.op.replace("_e32", "").replace("_e64", "") in TRANS and p.w & c.rd: n = max(n, 1)
            if c.op.startswith("v_permlane") and isv(p.w) & c.rd: n = max(n, 2)
            if (c.op.startswith("v_readlane") or c.op.startswith("v_readfirstlane")) and isv(p.w) & c.rd: n = max(n, 1)
            if "_dpp" in c.op and isv(p.w) & c.rd: n = max(n, 2)
            if "_dpp" in c.op and ("s", 126) in p.w: n = max(n, 5)
            if iss(p.w) & c.rd: n = max(n, 4 if c.op.startswith("v_readlane") or c.op.startswith("v_writelane") else 2)
            if p.op.startswith("v_dot2") and p.w & (c.rd | c.w) and not (c.op == p.op): n = max(n, 3)
            if p.op.startswith("v_dot2") and c.op == p.op and p.w & c.rd:
                n = max(n, 3)
                toks = [t.strip().split()[0] for t in c.text.split(None, 1)[1].split(",")]
                ab = regset(toks[1]) | regset(toks[2])
                if not (p.w & ab): n = 0 if n == 3 else n
            if "_sdwa" in p.op and p.w & (c.rd | c.w): n = max(n, 1)
        if p.op.startswith("v_dot2") and c.kind in ("ds", "vload", "vstore", "mfma") and p.w & (c.rd | c.w): n = max(n, 3)
        if c.kind in ("vload", "vstore", "dma") and iss(p.w) & c.rd: n = max(n, 5)
        if c.kind == "ctl" and iss(p.w) & c.rd: n = max(n, 5 if False else 0)
    if p.kind == "salu":
        if ("s", 124) in p.w and c.kind == "dma": n = max(n, 1)
    if p.kind == "vstore" and ("x4" in p.op or "x3" in p.op):
        if isv(p.rd) & c.w and c.kind in ("valu", "mfma", "ds", "vload"): n = max(n, 2)
    return n

def pad_hazards(ins, prev=None, report=None):
    hist = list(prev or [])[-24:]
    out = []
    for x in ins:
        if x.kind not in ("label", "waitvm"):
            need = 0; d = 0
            for p in reversed(hist):
                rq = required(p, x)
                if rq - d > need: need = rq - d; why = p
                d += p.states()
                if d >= 20: break
            if need > 0:
                if report is not None: report.append((need, why.text, x.text))
                while need > 0:
                    k = min(need, 16)
                    nop = Ins(f"s_nop {k - 1}")
                    out.append(nop); hist.append(nop); need -= k
        out.append(x); hist.append(x)
        if len(hist) > 48: hist = hist[-24:]
    return out

def finish(lines, st=None, prev=None, report=None):
    ins = parse(lines)
    ins = insert_waits(ins, st)
    ins = pad_hazards(ins, prev, report)
    return ins

def finish_loop(body, st, prev=None, report=None):
    ins = parse(body)
    s1 = st.copy()
    first = insert_waits(ins, s1)
    s2 = s1.copy()
    second = insert_waits(parse(body), s2)
    s3 = st.copy()
    chk = insert_waits(parse([x.text + (f" @tag={x.tag}" if x.tag else "") for x in second]), s3)
    s4 = s3.copy()
    chk2 = insert_waits(parse([x.text + (f" @tag={x.tag}" if x.tag else "") for x in chk]), s4)
    assert len(chk2) == len(chk)
    res = chk
    a = pad_hazards(res, prev, report)
    b = pad_hazards(a, a, report)
    st.lg = s4.lg; st.vm = s4.vm; st.smem = s4.smem
    return b

def texts(ins):
    return [x.text for x in ins]
```

```python
import sys, json
sys.path.insert(0, "gen")
from asmlib import *
import k1, k2, k345
HDR = open("sequential_preLN__compressed_kv_cla__glu_gated_swiglu__prompt.s.ref").read().split("; Override launch")[0] if False else ""
def build(opt, path, kernels=("k1", "k2", "k3", "k4", "k5")):
    hdr = ""; body = ""
    if "k1" in kernels:
        hdr += "; @launch kernel=k1_kernel grid=(256,1,1) block=(256,1,1) lds=163840\n"; body += k1.gen_k1("k1_kernel", opt)
    if "k2" in kernels:
        hdr += "; @launch kernel=k2_kernel grid=(256,1,1) block=(256,1,1) lds=163840\n"; body += k2.gen_k2("k2_kernel", opt)
    if "k3" in kernels:
        hdr += "; @launch kernel=k3_kernel grid=(128,1,1) block=(448,1,1) lds=1024\n"; body += k345.gen_k3("k3_kernel", opt)
    if "k4" in kernels:
        hdr += "; @launch kernel=k4_kernel grid=(256,1,1) block=(256,1,1) lds=163840\n"; body += k345.gen_k4("k4_kernel", opt)
    if "k5" in kernels:
        hdr += "; @launch kernel=k5_kernel grid=(256,1,1) block=(256,1,1) lds=163840\n"; body += k345.gen_k5("k5_kernel", opt)
    txt = hdr + '.amdgcn_target "amdgcn-amd-amdhsa--gfx950"\n' + body
    open(path, "w").write(txt)
if __name__ == "__main__":
    opt = json.loads(sys.argv[2]) if len(sys.argv) > 2 else {}
    build(opt, sys.argv[1])
```

```python
from asmlib import *

WS_K = 0
WS_V = 16 << 20
WS_Q = 32 << 20
WS_Y = 48 << 20
WS_PART = 80 << 20
WS_H = 120 << 20
WS_HN = 124 << 20
WS_H1 = 128 << 20
WS_XN = 140 << 20
WS_STAMP = 200 << 20

class Stamps:
    def __init__(self, enable, base=60, n=8):
        self.en = enable; self.base = base; self.n = n
    def mark(self, A, i):
        if self.en:
            b = self.base + 4 * i
            A(f"s_memtime s[{b}:{b+1}]")
            A(f"s_memrealtime s[{b+2}:{b+3}]")
    def marks(self, i):
        if not self.en: return []
        b = self.base + 4 * i
        return [f"s_memtime s[{b}:{b+1}]", f"s_memrealtime s[{b+2}:{b+3}]"]
    def write(self, A, wsreg, kidx, swave=3, vt=0):
        if not self.en: return
        A("s_waitcnt lgkmcnt(0) vmcnt(0)")
        A(f"s_add_u32 s96, s{wsreg}, {WS_STAMP + kidx * (1 << 20)}")
        A(f"s_addc_u32 s97, s{wsreg+1}, 0")
        A(f"s_lshl_b32 s98, s2, 10")
        A(f"s_lshl_b32 s99, s{swave}, 7")
        A(f"s_add_u32 s98, s98, s99")
        A(f"v_mov_b32 v{vt}, s98")
        for i in range(self.n):
            b = self.base + 4 * i
            for j in range(4):
                A(f"v_mov_b32 v{vt+2+j}, s{b+j}")
            A(f"global_store_dwordx4 v{vt}, v[{vt+2}:{vt+5}], s[96:97] offset:{16*i}")
            A("s_waitcnt vmcnt(0)")

def mfma16(c, a_, b_, cin=None):
    cc = r(c, 4)
    ci = cc if cin is None else (cin if isinstance(cin, str) else r(cin, 4))
    return f"v_mfma_f32_16x16x32_bf16 {cc}, {r(a_, 4)}, {r(b_, 4)}, {ci}"

WS_FLAG = 144 << 20
WS_TFLAG = WS_FLAG + 65536

class Stamps2:
    def __init__(self, enable): self.en = enable
    def t(self, i): return [f"s_memrealtime s[{60+2*i}:{61+2*i}]"] if self.en else []
    def c(self, i): return [f"s_memtime s[{88+2*i}:{89+2*i}]"] if self.en else []
    def write(self, A, wsreg, kidx, swave=3, vt=0):
        if not self.en: return
        A("s_waitcnt lgkmcnt(0) vmcnt(0)")
        A(f"s_add_u32 s96, s{wsreg}, {WS_STAMP + kidx * (1 << 20)}")
        A(f"s_addc_u32 s97, s{wsreg+1}, 0")
        A(f"s_lshl_b32 s98, s2, 10")
        A(f"s_lshl_b32 s99, s{swave}, 8")
        A(f"s_add_u32 s98, s98, s99")
        A(f"v_mov_b32 v{vt}, s98")
        for i in range(9):
            for j in range(4): A(f"v_mov_b32 v{vt+4+4*i+j}, s{60+4*i+j}")
            A(f"global_store_dwordx4 v{vt}, v[{vt+4+4*i}:{vt+7+4*i}], s[96:97] offset:{16*i}")
```

```python
from common import *
import sched
import math, struct

QSCALE = math.log2(math.e) / 16.0
B0 = 6.0
OOB = 0x70000000
SPINMAX = 200000
def f2u(x): return struct.unpack("<I", struct.pack("<f", x))[0]

def gen_k12(name, opt):
    A = Asm()
    ST = Stamps2(opt.get("stamps", 0))
    rep = []
    NA = opt.get("NA", 19)
    CST = opt.get("cst", ["start", "att", "last", "end"])
    def cs(nm): return ST.c(CST.index(nm)) if nm in CST else []
    VB = opt.get("verbose")
    fin = lambda L, st=None, prev=None: sched.finish(L, st, prev, rep)
    emit = lambda L, st=None, prev=None: A.extend(sched.texts(fin(L, st, prev)))
    def codepf(lab, vt, dst, n):
        if not opt.get("jit", 1): return []
        return [f"s_getpc_b64 s[20:21]\nL_pcx{n}:\ns_add_u32 s20, s20, {lab}-L_pcx{n}\ns_addc_u32 s21, s21, 0",
                f"s_lshl_b32 s38, s3, 13\nv_lshl_add_u32 v{vt}, v0, 7, s38",
                f"v_min_u32 v{vt}, L_textend-{lab}-4, v{vt}",
                f"global_load_dword {dst}, v{vt}, s[20:21]"]
    VX, VW, DX, DW = 2, 6, 10, 12
    def acc(which, hx, ti, hw, tj):
        i = (hx * 2 + hw) * 16 + (ti * 4 + tj if which == 0 else tj * 4 + ti)
        return 16 + 4 * i if i < 60 else 256 + 64 + 4 * (i - 60)
    FX = [256 + 80, 256 + 0]; FW = [256 + 112, 256 + 32]
    XH = 400
    def fx(hx, ti, s_): return FX[hx] + (ti * 2 + s_) * 4
    def fw(bank, tj, s_): return FW[bank] + (tj * 2 + s_) * 4
    SX, SW, SO, SQ, SXI = 8, 12, 16, 40, 44
    SWO = 44
    P = []
    E = P.append
    A("s_cmp_ge_u32 s2, 256")
    A("s_cbranch_scc1 L_end")
    A.extend(ST.t(0) + cs('start'))
    E("s_load_dwordx4 s[52:55], s[0:1], 0")
    E("s_load_dwordx2 s[56:57], s[0:1], 16")
    E("s_load_dwordx4 s[20:23], s[0:1], 24")
    E("s_load_dwordx2 s[100:101], s[0:1], 40")
    E("s_load_dwordx4 s[4:7], s[0:1], 88")
    E("s_getpc_b64 s[30:31]")
    E("L_pc0:")
    E("v_lshrrev_b32 v1, 6, v0")
    E("s_lshr_b32 s25, s2, 3")
    E("s_and_b32 s38, s25, 3")
    E("s_min_u32 s38, s38, 2")
    E("s_lshl_b32 s38, s38, 15")
    E("v_lshlrev_b32 v16, 7, v0")
    E("v_add_u32 v16, s38, v16")
    E("v_min_u32 v16, L_textend-L_pc0-4, v16")
    if opt.get("codepf", 1): E("global_load_dword a255, v16, s[30:31]")
    E("v_and_b32 v0, 63, v0")
    E("v_readfirstlane_b32 s3, v1")
    E("s_and_b32 s24, s2, 7")
    E("s_and_b32 s26, s25, 1")
    E("s_lshl_b32 s24, s24, 1")
    E("s_add_u32 s24, s24, s26")
    E("s_bfe_u32 s26, s25, 0x10001")
    E("s_lshr_b32 s27, s25, 2")
    E("s_sub_u32 s50, 15, s27")
    E("s_cmp_eq_u32 s26, 0")
    E("s_cselect_b32 s50, s50, s27")
    E("s_lshl_b32 s28, s2, 3")
    E("s_lshl_b32 s29, s3, 1")
    E("s_add_u32 s28, s28, s29")
    E("v_and_b32 v20, 1, v0")
    E("v_add_u32 v20, s28, v20")
    E("v_mul_u32_u24 v21, 896, v20")
    E("v_lshrrev_b32 v22, 1, v0")
    E("v_lshl_add_u32 v21, v22, 4, v21")
    E("s_lshl_b32 s28, s27, 7")
    E("s_lshl_b32 s29, s3, 5")
    E("s_add_u32 s28, s28, s29")
    E("v_lshrrev_b32 v1, 3, v0")
    E("v_add_u32 v1, s28, v1")
    E("v_lshlrev_b32 v1, 11, v1")
    E("v_lshrrev_b32 v16, 4, v0")
    E("v_and_b32 v17, 7, v0")
    E("v_xor_b32 v17, v17, v16")
    E("v_lshlrev_b32 v17, 4, v17")
    for i in range(4):
        E(f"v_xor_b32 v18, {64 if i & 1 else 0}, v17")
        E(f"v_add_u32 v18, v18, v1")
        E(f"v_add_u32 v{VX+i}, {i * (8 * 2048 - 1024)}, v18")
    E("s_lshl_b32 s28, s3, 4")
    E("v_add_u32 v1, s28, v16")
    E("v_lshlrev_b32 v1, 13, v1")
    E("s_lshl_b32 s28, s24, 9")
    E("v_add_u32 v1, s28, v1")
    E("v_and_b32 v17, 15, v0")
    E("v_lshlrev_b32 v18, 1, v16")
    E("v_xor_b32 v17, v17, v18")
    E("v_lshlrev_b32 v17, 4, v17")
    for i in range(4):
        E(f"v_xor_b32 v18, {128 if i & 2 else 0}, v17")
        E(f"v_add_u32 v18, v18, v1")
        E(f"v_add_u32 v{VW+i}, {i * (4 * 8192 - 1024)}, v18")
    E("s_lshl_b32 s32, s3, 12")
    E("s_mov_b32 s33, 0")
    E("s_mov_b32 s34, 0")
    for i in range(28, 32): E(f"v_mov_b32 v{i}, 0")
    E("s_waitcnt lgkmcnt(0)")
    srd(E, SX, 54, 2048 * 1024 * 2)
    E("s_cmp_eq_u32 s26, 0")
    E("s_cselect_b32 s20, s20, s22")
    E("s_cselect_b32 s21, s21, s23")
    srd(E, SW, 20, 1024 * 4096 * 2)
    def dma_setup(n):
        j = (n >> 2) & 1; t = n & 3
        if t in (0, 3):
            hx = 0 if t == 0 else 1
            slot = (2 * j + hx) * 16384
            setup = [f"s_add_u32 m0, s32, {slot}", f"s_add_u32 s35, s33, {j * 128 + hx * 1024 * 2048}"]
            d = [f"buffer_load_dwordx4 v{VX+i}, s[{SX}:{SX+3}], s35 offen offset:{i*1024}{opt.get('xflag', '')} lds @tag=ht{n}" for i in range(4)]
        else:
            hw = t - 1
            slot = 65536 + (2 * j + hw) * 16384
            setup = [f"s_add_u32 m0, s32, {slot}", f"s_add_u32 s35, s34, {j * 64 * 8192 + hw * 256}"]
            d = [f"buffer_load_dwordx4 v{VW+i}, s[{SW}:{SW+3}], s35 offen offset:{i*1024}{opt.get('wflag', ' nt')} lds @tag=ht{n}" for i in range(4)]
        return setup, d
    def reads(n):
        j = (n >> 2) & 1; t = n & 3
        out = []
        if t in (0, 3):
            hx = 0 if t == 0 else 1
            slot = (2 * j + hx) * 16384
            for ti in range(4):
                for s_ in range(2):
                    out.append(f"ds_read_b128 {r(fx(hx, ti, s_), 4)}, v{DX+s_} offset:{slot + ti * 2048}")
        else:
            hw = t - 1
            bank = hw ^ j
            slot = (2 * j + hw) * 16384
            for tj in range(4):
                for s_ in range(2):
                    for h2 in range(2):
                        out.append(f"ds_read_b64_tr_b16 {r(fw(bank, tj, s_) + 2 * h2, 2)}, v{DW+tj} offset:{slot + s_ * 8192 + h2 * 1024}")
        return out
    def dma_block(n):
        su, d = dma_setup(n)
        return su + d
    srd(E, SXI, 52, 2048 * 448 * 2)
    E(f"buffer_load_dwordx4 v[24:27], v21, s[{SXI}:{SXI+3}], 0 offen")
    E("s_mov_b32 exec_hi, 0xffff")
    E(f"buffer_load_dwordx4 v[28:31], v21, s[{SXI}:{SXI+3}], 0 offen offset:512")
    E("s_mov_b32 exec_hi, -1")
    for n in range(2): P.extend(dma_block(n))
    srd(E, SO, 6, 160 << 20)
    srd(E, SQ, 56, 448 * 4096 * 2)
    srd(E, SWO, 100, 4096 * 448 * 2)
    E("s_lshr_b32 s38, s25, 1"); E("s_lshl_b32 s38, s38, 2"); E("s_add_u32 s38, s38, s3")
    E("s_mul_i32 s30, s38, 57344"); E("s_lshl_b32 s31, s24, 9"); E("s_add_u32 s30, s30, s31")
    E("s_add_u32 s56, s56, s30"); E("s_addc_u32 s57, s57, 0")
    E("s_mul_i32 s30, s24, 229376"); E("s_lshl_b32 s31, s38, 7"); E("s_add_u32 s30, s30, s31")
    E("s_add_u32 s100, s100, s30"); E("s_addc_u32 s101, s101, 0")
    E("v_and_b32 v62, 3, v0")
    E("v_lshlrev_b32 v60, 7, v62")
    E("v_add_co_u32 v60, vcc, s56, v60"); E("v_mov_b32 v61, s57"); E("v_addc_co_u32 v61, vcc, 0, v61, vcc")
    E("v_mul_u32_u24 v62, 57344, v62")
    E("v_add_co_u32 v62, vcc, s100, v62"); E("v_mov_b32 v63, s101"); E("v_addc_co_u32 v63, vcc, 0, v63, vcc")
    E("s_mov_b64 s[30:31], 0xf0")
    E("v_cndmask_b32 v60, v60, v62, s[30:31]"); E("v_cndmask_b32 v61, v61, v63, s[30:31]")
    E("s_load_dwordx4 s[52:55], s[0:1], 56")
    E("s_load_dwordx2 s[56:57], s[0:1], 72")
    W = []
    F_ = W.append
    F_("v_lshrrev_b32 v23, 4, v20")
    F_("v_mul_u32_u24 v23, 14336, v23")
    F_("v_lshl_add_u32 v23, v22, 8, v23")
    F_("v_and_b32 v20, 15, v20")
    F_("v_lshl_add_u32 v23, v20, 4, v23")
    F_("s_lshr_b32 s28, s3, 1")
    F_("s_and_b32 s29, s3, 1")
    F_("s_lshl_b32 s30, s28, 13")
    F_("v_and_b32 v1, 15, v0")
    F_("v_lshlrev_b32 v1, 7, v1")
    F_("v_add_u32 v1, s30, v1")
    F_("v_bfe_u32 v18, v0, 1, 3")
    F_("v_xor_b32 v17, v16, v18")
    F_("v_lshlrev_b32 v17, 4, v17")
    F_(f"v_add_u32 v{DX}, v17, v1")
    F_(f"v_xor_b32 v{DX+1}, 64, v{DX}")
    F_("v_lshlrev_b32 v1, 3, v16")
    F_("v_bfe_u32 v17, v0, 2, 2")
    F_("v_add_u32 v1, v1, v17")
    F_("v_lshlrev_b32 v1, 8, v1")
    F_("v_bfe_u32 v18, v0, 4, 1")
    F_("v_lshlrev_b32 v18, 2, v18")
    F_("v_or_b32 v17, v17, v18")
    F_("v_lshlrev_b32 v17, 1, v17")
    F_("v_bfe_u32 v19, v0, 1, 1")
    F_("s_lshl_b32 s30, s29, 3")
    F_("v_add_u32 v19, s30, v19")
    F_("v_xor_b32 v19, v19, v17")
    F_("v_lshlrev_b32 v19, 4, v19")
    F_("v_and_b32 v18, 1, v0")
    F_("v_lshlrev_b32 v18, 3, v18")
    F_("v_add3_u32 v1, v1, v18, v19")
    F_(f"v_add_u32 v{DW}, 0x10000, v1")
    for tj in range(1, 4): F_(f"v_xor_b32 v{DW+tj}, {tj << 5}, v{DW}")
    F_("v_lshlrev_b32 v1, 4, v0")
    F_("s_lshl_b32 s58, s24, 20\ns_lshl_b32 s38, s27, 16\ns_add_u32 s58, s58, s38\ns_lshl_b32 s38, s28, 15\ns_add_u32 s58, s58, s38")
    F_("s_add_u32 s38, s26, 11\ns_lshl_b32 s38, s29, s38\ns_add_u32 s58, s58, s38\ns_lshl_b32 s38, s26, 24\ns_add_u32 s58, s58, s38")
    F_(f"s_cmp_eq_u32 s26, 0\ns_mov_b32 s59, 16384\ns_mov_b32 s51, {(1024 - 16384) & 0xffffffff}\ns_mov_b32 s39, 8192\n"
       f"s_cselect_b32 s59, 1024, s59\ns_cselect_b32 s51, {8192 - 1024}, s51\ns_cselect_b32 s39, 4096, s39")
    F_(f"s_lshl_b32 s49, s24, 3\ns_add_u32 s49, s49, s27\ns_lshl_b32 s49, s49, 16\ns_lshl_b32 s38, s3, 14\ns_add_u32 s49, s49, s38\ns_add_u32 s49, s49, {WS_Q}")
    F_(f"s_lshl_b32 s48, s50, 3\ns_lshl_b32 s38, s3, 1\ns_add_u32 s48, s48, s38\ns_mul_i32 s48, s48, 14336\ns_add_u32 s48, s48, {WS_XN}")
    F_(f"s_lshl_b32 s22, s24, 8\ns_add_u32 s22, s22, {WS_FLAG}")
    W += [f"v_mov_b32 v{i}, 0" for i in range(64, 68)]
    F_("s_lshl_b32 s38, s2, 2\ns_add_u32 s38, s38, s3\ns_mul_i32 s38, s38, 6\ns_sub_u32 s38, s38, 8")
    F_("v_add_u32 v56, s38, v0")
    F_("v_min_u32 v56, 5375, v56")
    F_("v_lshrrev_b32 v57, 6, v56")
    F_("v_and_b32 v56, 63, v56")
    F_("v_lshlrev_b32 v56, 7, v56")
    F_("s_waitcnt lgkmcnt(0)")
    F_("v_mov_b32 v58, s52\nv_mov_b32 v59, s53\nv_mov_b32 v62, s54\nv_mov_b32 v63, s55")
    F_("v_cmp_le_u32 vcc, 28, v57\nv_subrev_u32 v54, 28, v57\ns_nop 0\nv_cndmask_b32 v58, v58, v62, vcc\nv_cndmask_b32 v59, v59, v63, vcc\nv_cndmask_b32 v57, v57, v54, vcc")
    F_("v_mov_b32 v62, s56\nv_mov_b32 v63, s57")
    F_("v_cmp_le_u32 vcc, 28, v57\nv_subrev_u32 v54, 28, v57\ns_nop 0\nv_cndmask_b32 v58, v58, v62, vcc\nv_cndmask_b32 v59, v59, v63, vcc\nv_cndmask_b32 v57, v57, v54, vcc")
    F_("v_mul_u32_u24 v57, 57344, v57")
    F_("v_add_u32 v56, v56, v57")
    F_("v_add_co_u32 v58, vcc, v58, v56\ns_nop 1\nv_addc_co_u32 v59, vcc, 0, v59, vcc")
    F_("s_mov_b64 s[30:31], 0x3f00\nv_cndmask_b32 v60, v60, v58, s[30:31]\nv_cndmask_b32 v61, v61, v59, s[30:31]")
    F_("s_mov_b32 s52, 8192\ns_mov_b32 s53, 0")
    rest = []
    for n in range(2, 4):
        su, d = dma_setup(n)
        rest += ["\n".join(su + [d[0]])] + d[1:]
    k = 0
    for i, z in enumerate(W):
        E(z)
        if i % 6 == 3 and k < len(rest):
            E(rest[k]); k += 1
    while k < len(rest): E(rest[k]); k += 1
    P += ST.t(1)
    for i in range(8):
        E(f"v_lshlrev_b32 v{32+2*i}, 16, v{24+i}")
        E(f"v_and_b32 v{33+2*i}, 0xffff0000, v{24+i}")
    def reduce32(x, t):
        for rr in (2, 4, 8):
            E(f"v_add_f32_dpp v{x}, v{x}, v{x} row_ror:{rr} row_mask:0xf bank_mask:0xf")
        for sw in ("v_permlane16_swap_b32", "v_permlane32_swap_b32"):
            E(f"v_mov_b32 v{t}, v{x}"); E(f"{sw} v{x}, v{t}"); E(f"v_add_f32 v{x}, v{x}, v{t}")
    E("v_pk_add_f32 v[48:49], v[32:33], v[34:35]")
    for i in range(2, 8): E(f"v_pk_add_f32 v[48:49], v[48:49], v[{32+2*i}:{33+2*i}]")
    E("v_add_f32 v48, v48, v49")
    reduce32(48, 50)
    E(f"v_mul_f32 v48, {hex(f2u(-1.0/448))}, v48")
    E("v_mov_b32 v49, v48")
    for i in range(4): E(f"v_pk_add_f32 v[{32+2*i}:{33+2*i}], v[{32+2*i}:{33+2*i}], v[48:49]")
    E("s_mov_b32 exec_hi, 0xffff")
    for i in range(4, 8): E(f"v_pk_add_f32 v[{32+2*i}:{33+2*i}], v[{32+2*i}:{33+2*i}], v[48:49]")
    E("s_mov_b32 exec_hi, -1")
    E("v_pk_mul_f32 v[50:51], v[32:33], v[32:33]")
    for i in range(1, 8): E(f"v_pk_fma_f32 v[50:51], v[{32+2*i}:{33+2*i}], v[{32+2*i}:{33+2*i}], v[50:51]")
    E("v_add_f32 v50, v50, v51")
    reduce32(50, 52)
    E(f"v_mov_b32 v51, {hex(f2u(1e-5))}")
    E(f"v_fmac_f32 v51, {hex(f2u(1.0/448))}, v50")
    E("v_rsq_f32 v50, v51")
    E(f"v_mul_f32 v50, {hex(f2u(QSCALE))}, v50")
    E("v_mov_b32 v51, v50")
    for i in range(8): E(f"v_pk_mul_f32 v[{32+2*i}:{33+2*i}], v[{32+2*i}:{33+2*i}], v[50:51]")
    for i in range(8): E(f"v_cvt_pk_bf16_f32 v{24+i}, v{32+2*i}, v{33+2*i}")
    E("WAITVM @need=ht0,ht1")
    E("s_barrier")
    P.extend(reads(0)); P.extend(reads(1))
    E(f"s_mov_b32 s38, {WS_XN}")
    E(f"buffer_store_dwordx4 v[24:27], v23, s[{SO}:{SO+3}], s38 offen sc1")
    E(f"s_mov_b32 s38, {WS_XN + 8192}")
    E("s_mov_b32 exec_hi, 0xffff")
    E(f"buffer_store_dwordx4 v[28:31], v23, s[{SO}:{SO+3}], s38 offen sc1")
    E("s_mov_b32 exec_hi, -1")
    E("s_lshl_b32 s38, s2, 9")
    E(f"s_add_u32 s38, s38, {WS_FLAG}")
    E("s_cmp_eq_u32 s3, 0")
    E(f"s_cselect_b32 s38, s38, {OOB}")
    E("s_mov_b32 exec_hi, 0")
    E(f"buffer_store_dwordx4 v[64:67], v1, s[{SO}:{SO+3}], s38 offen sc1")
    E("s_mov_b32 exec_hi, -1")
    E("v_mov_b32 v0, v60"); E("v_mov_b32 v1, v61")
    P += ST.t(2) + cs('first')
    E("s_and_b32 s23, s25, 3")
    E("s_add_u32 s23, s23, 1")
    E("s_mov_b32 s36, 0")
    E("s_cmp_eq_u32 s26, 0")
    stP = sched.State()
    pro = fin(P, stP)
    A.extend(sched.texts(pro))
    A("s_cbranch_scc0 L_firstV")

    def phase_mfmas(which, g, first=False):
        j = (g >> 2) & 1; p = g & 3
        hx = 0 if p < 2 else 1
        hw = [0, 1, 1, 0][p]
        bank = hw ^ j
        m = []
        for ti in range(4):
            for tj in range(4):
                for s_ in range(2):
                    c_ = acc(which, hx, ti, hw, tj); X = fx(hx, ti, s_); W_ = fw(bank, tj, s_)
                    ci = "0" if (first and s_ == 0) else None
                    m.append(mfma16(c_, W_, X, ci) if which == 0 else mfma16(c_, X, W_, ci))
        return m
    PF = ["global_load_dword a254, v[0:1], off", "v_lshl_add_u64 v[0:1], s[52:53], 0, v[0:1]"] if opt.get("wpf", 1) else []
    def drain_quad(hx, hw):
        cv = []; stv = []; src = []
        so = 37 if hx == 0 else 40
        for n in range(8):
            idx = (hx * 2 + hw) * 16 + 2 * n
            if idx >= 60:
                t0 = 84 + 16 * (n & 1); t1 = t0 + 8
                cv += [f"v_accvgpr_read_b32 v{t0+i}, a{64 + 4 * (idx - 60) + i}" for i in range(4)]
                cv += [f"v_accvgpr_read_b32 v{t1+i}, a{64 + 4 * (idx - 60) + 4 + i}" for i in range(4)]
            else:
                t0 = 16 + 4 * idx; t1 = t0 + 4
            cv += [f"v_cvt_pk_bf16_f32 v{t0}, v{t0}, v{t0+1}", f"v_cvt_pk_bf16_f32 v{t0+1}, v{t0+2}, v{t0+3}",
                   f"v_cvt_pk_bf16_f32 v{t0+2}, v{t1}, v{t1+1}", f"v_cvt_pk_bf16_f32 v{t0+3}, v{t1+2}, v{t1+3}"]
            if n == 0:
                stv.append(f"s_mul_i32 s{so}, s13, {hw}")
                stv.append(f"s_add_u32 s{so}, s{so}, s58")
                if hx: stv.append(f"s_add_u32 s{so}, s{so}, {16 * 32768}")
            elif n & 1: stv.append(f"s_add_u32 s{so}, s{so}, s59")
            else: stv.append(f"s_add_u32 s{so}, s{so}, s14")
            src.append(t0)
            d0 = t0 if hx == 0 else HOLD + (hw * 8 + n) * 4
            stv.append(f"buffer_store_dwordx4 {r(d0, 4)}, v1, s[{SO}:{SO+3}], s{so} offen sc1 @tag=kv{hx}")
        return cv, stv, src
    HOLD = 256 + 128
    cv00, st00, _ = drain_quad(0, 0); cv01, st01, _ = drain_quad(0, 1); cv11, st11, src11 = drain_quad(1, 1); cv10, st10, src10 = drain_quad(1, 0)
    hold_mv = [f"v_accvgpr_write_b32 a{HOLD - 256 + (hw * 8 + n) * 4 + i}, v{(src11 if hw else src10)[n] + i}" for hw in (1, 0) for n in (6, 7, 0, 1, 2, 3, 4, 5) for i in range(4)]
    QV = 2; VF = 3; QD = 4
    REGION = [131072, 65536, 0, 98304, 32768]
    def region(sb): return REGION[sb % 5]
    QF = [FX[0], FW[0]]
    QACC = [16, 48]
    def q_dma(sb, u):
        cb, kh = sb >> 1, sb & 1
        ks = kh * 7 + u
        return [f"s_add_u32 m0, s31, {region(sb) + u * 4096}", f"s_mov_b32 s35, {ks * 32 * 8192 + cb * 128}",
                f"buffer_load_dwordx4 v{QV}, s[{SQ}:{SQ+3}], s35 offen lds @tag=sb{sb}"]
    def q_dmas(sb, us): return sum((q_dma(sb, u) for u in us), [])
    def q_reads(sb, dtl):
        n = sb * 4 + dtl
        return [f"ds_read_b64_tr_b16 {r(QF[n & 1] + 4 * u + 2 * h2, 2)}, v{QD+dtl} offset:{u * 4096 + h2 * 512}" for u in range(7) for h2 in range(2)]
    q_setup = ["s_mov_b32 s13, s39", "s_mov_b32 s14, s51", "s_lshl_b32 s31, s3, 10", "s_lshl_b32 s30, s3, 3", "v_lshrrev_b32 v7, 3, v0", "v_add_u32 v7, s30, v7", "v_lshlrev_b32 v7, 13, v7",
               "s_lshl_b32 s30, s24, 9", "v_add_u32 v7, s30, v7", "v_bfe_u32 v8, v0, 4, 1", "s_lshl_b32 s30, s29, 1", "v_or_b32 v8, s30, v8",
               "v_lshlrev_b32 v8, 1, v8", "v_and_b32 v9, 7, v0", "v_xor_b32 v8, v8, v9", f"v_lshl_add_u32 v{QV}, v8, 4, v7"]
    q_setup2 = ["v_lshrrev_b32 v8, 4, v0", "v_lshlrev_b32 v8, 3, v8", "v_bfe_u32 v9, v0, 2, 2", "v_add_u32 v8, v8, v9", "v_lshlrev_b32 v8, 7, v8",
                "v_bfe_u32 v9, v0, 3, 2", "v_lshlrev_b32 v9, 5, v9", "v_add_u32 v8, v8, v9", "v_and_b32 v9, 3, v0", "v_lshl_add_u32 v8, v9, 3, v8",
                f"v_add_u32 v{QD}, {region(0)}, v8"] + [f"v_xor_b32 v{QD+d}, {d << 5}, v{QD}" for d in range(1, 4)] + \
               ["s_lshl_b32 s30, s3, 6", "v_add_u32 v8, s30, v0", "v_min_u32 v8, 1, v8", f"v_lshlrev_b32 v{VF}, 30, v8", "v_mov_b32 v9, 1"]
    adv2 = ["s_add_u32 s33, s33, 256", f"s_add_u32 s34, s34, {128 * 8192}"]
    def steady(which, g, extra=None):
        m = phase_mfmas(which, g)
        su, d = dma_setup(g + 8)
        f = [(15, su[0]), (16, su[1])] + [(17 + 4 * i, d[i]) for i in range(4)]
        f += spread(reads(g + 2), 0, 16)
        return m, f
    for which in (0, 1):
        sfx = "K" if which == 0 else "V"
        lab = "L_loop" + sfx
        A.label("L_first" + sfx)
        st = stP.copy()
        m = []; fixed = []; vm = []; rd = []
        for g in range(8):
            o = 32 * g
            m += phase_mfmas(which, g, first=(g < 4))
            fixed += [(o + 5, f"WAITVM @need=ht{g+2}\ns_waitcnt lgkmcnt(0)\ns_barrier")]
            hts = [4 + 2 * g, 5 + 2 * g] if g < 4 else [g + 8]
            it = []
            for n in hts:
                if n == 8: it += adv2
                it += dma_block(n)
            vm.append((it, o, o + 30))
            rd.append((reads(g + 2), o + 6, o + 25))
        fixed += [(254, "WAITVM @need=ht10,ht11\ns_waitcnt lgkmcnt(0)\ns_barrier"), (255, "\n".join(adv2))]
        if PF: fixed += [(200, PF[0]), (201, PF[1])]
        for nm in CST:
            if nm.startswith('f') and nm[1:].isdigit(): fixed += [(32 * int(nm[1:]) + 1, x) for x in cs(nm)]
        L = sched.pack(m, vm + rd, fixed, VB)
        fi = fin(L, st, pro)
        A.extend(sched.texts(fi))
        A.extend(cs('roll'))
        A(".p2align 6")
        A.label(lab)
        body = []
        for g in range(8):
            m, f = steady(which, g)
            if g == 0 and PF: f += [(18, PF[0]), (19, PF[1])]
            if g == 7:
                f += [(26, adv2[0]), (27, adv2[1]), (28, "s_add_u32 s36, s36, 1"), (31, "s_cmp_eq_u32 s36, s23")]
            if g & 1: f += [(30, "s_waitcnt vmcnt(16) lgkmcnt(0)"), (30, "s_barrier")]
            else: f += [(30, "s_waitcnt lgkmcnt(0)")]
            body += sched.pack(m, [], f)
        st = sched.State()
        lp = sched.finish_loop(body, st, prev=fi, report=rep)
        A.extend(sched.texts(lp))
        A(f"s_cbranch_scc0 {lab}")
        A("s_cmp_eq_u32 s36, 5")
        A(f"s_cbranch_scc0 L_hook")
        st = sched.State()
        st.vm = [(set(), f"ht{n}") for n in range(52, 56) for _ in range(4)]
        L = ST.t(3) + cs('peel')
        xl = [f"s_add_u32 s38, s48, {tt * 14336 + ks * 1024}\n"
              f"buffer_load_dwordx4 {r(XH + (tt * 14 + ks) * 4, 4)}, v1, s[{SO}:{SO+3}], s38 offen sc1"
              for ks in range(14) for tt in range(2)]
        m = []; fixed = []; rd = []
        for g in range(48, 64):
            o = (g - 48) * 32
            if g < 56:
                mm, f = steady(which, g)
                m += mm; fixed += [(o + a_, b_) for a_, b_ in f]
            else:
                m += phase_mfmas(which, g)
                if g + 2 < 64: rd.append((reads(g + 2), o, o + 22))
            if g & 1 and g < 61: fixed += [(o + 30, f"WAITVM @need=ht{g+3},ht{g+4}\ns_waitcnt lgkmcnt(0)\ns_barrier")]
            elif g == 61: fixed += [(o + 30, "s_waitcnt lgkmcnt(0)\ns_barrier")]
        if PF: fixed += [(18, PF[0])]
        fixed += [(19, "v_mbcnt_lo_u32_b32 v0, -1, 0"), (20, "v_mbcnt_hi_u32_b32 v0, -1, v0"), (22, "v_lshlrev_b32 v1, 2, v0"),
                  (23, "global_load_dword v0, v1, s[4:5] sc1 @tag=poll")]
        fixed += [(129, f"v_cmp_ne_u32 vcc, 0x01010101, v0"), (131, f"s_cbranch_vccnz {lab}_spin\n{lab}_spun:"),
                  (133, "v_lshrrev_b32 v0, 2, v1"), (135, "v_lshlrev_b32 v1, 2, v1")]
        for nm in CST:
            if nm.startswith('p') and nm[1:].isdigit(): fixed += [(32 * (int(nm[1:]) - 48) + 1, x) for x in cs(nm)]
        o = 256
        fixed += [(255, x) for x in cs('peel2')]
        fixed += [(o + 7 * 32 + 17, "WAITVM @need=sb0\ns_barrier")]
        vm = [(q_dmas(0, range(7)), o + 12, o + 40), (q_dmas(1, range(4)), o + 40, o + 62),
              (q_dmas(1, range(4, 7)), o + 64, o + 96), (q_dmas(2, range(4)), o + 96, o + 128),
              (q_dmas(2, range(4, 7)), o + 128, o + 160), (q_dmas(3, range(4)), o + 160, o + 192),
              (q_dmas(3, range(4, 7)), o + 192, o + 224), (q_dmas(4, range(7)), o + 224, o + 255)]
        streams = vm + [(xl[:12], 138, 256), (xl[12:], o + 64, o + 190), (st00, o + 190, o + 254)] + rd
        streams.append((q_setup, o + 1, o + 11))
        streams.append((q_setup2, o + 130, o + 160))
        streams.append((codepf("L_q", 4, "v5", 10 + which), o + 44, o + 62))
        streams.append((q_reads(0, 0), o + 7 * 32 + 18, o + 256))
        streams.append((cv00, o + 163, o + 190))
        streams.append((cv01, o + 195, o + 226))
        streams.append((cv11[:24], o + 227, o + 256))
        L += sched.pack(m, streams, fixed, VB)
        pe = fin(L, st, lp)
        A.extend(sched.texts(pe))
        if which == 0: A("s_branch L_q")
        stq = st
    NEGM = 4; TMP = 12; ORA = 24
    S0 = 32; P0 = 64; LS = 96; ONES = 104; O0 = 128
    QR = 256; FR = 320; PARK = 256 + 192; PARTL = 256 + 128
    WV = 112; WD = 119; AVF = 25; AV1 = 26
    def S(kt, tt): return S0 + (kt * 2 + tt) * 4
    def Pf(b, ks, tt): return P0 + 16 * b + (ks * 2 + tt) * 4
    def O(dt, tt): return O0 + (dt * 2 + tt) * 4
    def Q(tt, ds): return QR + (tt * 8 + ds) * 4
    def F(bank, i): return FR + bank * 32 + i * 4
    SWS = SO
    def dma4(kind, slot, half, tag=""):
        sreg = 30 if kind == "K" else 31
        base = (0 if kind == "K" else 65536) + slot * 32768 + half * 4096
        su = [f"s_add_u32 m0, s32, {base}", f"s_add_u32 s35, s{sreg}, {half * 4096}"]
        d = [f"buffer_load_dwordx4 v1, s[{SWS}:{SWS+3}], s35 offen offset:{i*1024} sc1 lds" + (f" @tag={tag}" if tag else "") for i in range(4)]
        return su, d
    def dma_adv(kind):
        sreg = 30 if kind == "K" else 31; cnt = 33 if kind == "K" else 34; t = 20 if kind == "K" else 21
        return [f"s_sub_u32 s{cnt}, s{cnt}, 1", f"s_cmp_eq_u32 s{cnt}, s28\ns_cselect_b32 s{t}, s23, 0x8000",
                f"s_cmp_eq_u32 s{cnt}, s8\ns_cselect_b32 s{t}, s9, s{t}", f"s_add_u32 s{sreg}, s{sreg}, s{t}",
                f"s_cmp_gt_i32 s{cnt}, 0\ns_cselect_b32 s{sreg}, s{sreg}, {OOB}"]
    def dma_blk(kind, slot, tag=""):
        out = []
        for half in range(2):
            su, d = dma4(kind, slot, half, tag); out += su + d
        return out
    def signal(dw, sdata=None):
        return f"buffer_atomic_add v{{d}}, v{{f}}, s[{SWS}:{SWS+3}], s22 offen offset:{4*dw} sc1"
    A.label("L_q")
    L = ST.t(4) + cs('q')
    ng = 32
    def q_pack(cb):
        out = []
        for pr in range(2):
            for tt in range(2):
                a0 = QACC[cb & 1] + ((2 * pr) * 2 + tt) * 4; a1 = QACC[cb & 1] + ((2 * pr + 1) * 2 + tt) * 4
                q_ = Q(tt, cb * 2 + pr) - 256
                out += [f"v_cvt_pk_bf16_f32 v{a0}, v{a0}, v{a0+1}", f"v_cvt_pk_bf16_f32 v{a0+1}, v{a0+2}, v{a0+3}",
                        f"v_cvt_pk_bf16_f32 v{a0+2}, v{a1}, v{a1+1}", f"v_cvt_pk_bf16_f32 v{a0+3}, v{a1+2}, v{a1+3}"]
                out += [f"v_accvgpr_write_b32 a{q_+i}, v{a0+i}" for i in range(4)]
        return out
    m = []; fixed = []; rstreams = []
    for n in range(ng):
        sb, dtl = n >> 2, n & 3
        cb, kh = sb >> 1, sb & 1
        for tt in range(2):
            for u in range(7):
                c_ = QACC[cb & 1] + (dtl * 2 + tt) * 4
                m.append(mfma16(c_, QF[n & 1] + 4 * u, XH + (tt * 14 + kh * 7 + u) * 4, "0" if (kh == 0 and u == 0) else None))
        if n + 1 < ng:
            sb2, d2 = (n + 1) >> 2, (n + 1) & 3
            g0 = 14 * n - 1
            if d2 == 0:
                need = f"sb{sb2}" + (",kv0" if sb2 == opt.get("sigb", 5) else "")
                fixed += [(g0, f"WAITVM @need={need}"), (g0, "s_barrier")]
            if sb2 > 0:
                delta = (region(sb2) - region(sb2 - 1)) & 0xffffffff
                fixed += [(g0 - 1, f"v_add_u32 v{QD+d2}, {hex(delta)}, v{QD+d2}")]
            rstreams.append((q_reads(sb2, d2), 14 * n, 14 * n + 12))
    G = lambda n: 14 * n
    vm = []
    for sb in (2, 3, 4): vm.append((q_dmas(sb + 3, range(7)), G(4 * sb), G(4 * sb + 3) - 2))
    SIGB = opt.get("sigb", 5)
    gs = G(4 * SIGB - 1)
    fixed += [(gs, f"buffer_atomic_add v9, v{VF}, s[{SWS}:{SWS+3}], s22 offen sc1")]
    C_ = 9
    asu = [f"s_lshl_b32 s32, s3, 13", "s_lshl_b32 s30, s24, 20", "s_add_u32 s30, s30, s32", f"s_add_u32 s31, s30, {WS_V}",
           "s_lshl_b32 s21, s27, 1",
           "s_add_u32 s29, s21, 2",
           "s_sub_u32 s20, 32, s21", f"s_min_u32 s33, s20, {NA}",
           "s_sub_u32 s25, s20, s33",
           f"s_sub_i32 s20, {C_}, s29", "s_max_i32 s20, s20, 0", "s_min_u32 s20, s20, s25",
           "s_sub_u32 s21, s25, s20",
           "s_sub_u32 s28, s33, s29", "s_add_u32 s23, s20, 1", "s_mov_b32 s8, 2", "s_add_u32 s9, s21, 1",
           "s_sub_u32 s11, s28, 1",
           f"s_cmp_eq_u32 s26, 0\ns_cselect_b32 s28, s28, s21", f"s_cmp_eq_u32 s26, 0\ns_cselect_b32 s23, s23, s11",
           f"s_cmp_eq_u32 s26, 0\ns_cselect_b32 s8, s8, -1",
           "s_lshl_b32 s23, s23, 15", "s_lshl_b32 s9, s9, 15",
           "s_add_u32 s34, s29, s25",
           f"s_cmp_eq_u32 s26, 0\ns_cselect_b32 s29, s33, s29", f"s_cmp_eq_u32 s26, 0\ns_cselect_b32 s33, s33, s34", "s_mov_b32 s34, s33",
           "s_mov_b32 s10, 0x7fff", "s_mov_b32 s11, 0",
           "s_add_u32 s20, s6, s22\ns_addc_u32 s21, s7, 0"]
    fixed += [(G(19) + 1 + 2 * i, x) for i, x in enumerate(asu)]
    gp = G(opt.get("pollg", 28))
    fixed += [(gp - 30, "s_load_dword s52, s[20:21], 0 glc")]
    fixed += [(gp - 2, "s_waitcnt lgkmcnt(0)"), (gp - 1, "s_cmp_ge_u32 s52, 16\ns_cbranch_scc0 L_spin1\nL_spun1:")]
    vm.append((dma_blk("K", 1, "k0") + dma_adv("K") + dma_blk("V", 1, "v0") + dma_adv("V"), gp + 1, G(32)))
    if opt.get("qst"):
        for k_, g_ in zip((8, 9, 1), opt["qst"]): fixed += [(G(g_) + 2, x) for x in ST.t(k_)]
    for nm in CST:
        if nm.startswith("g"): fixed += [(G(int(nm[1:])) + 2, x) for x in cs(nm)]
    if opt.get("no_st01"): st01 = [x for x in st01 if not x.startswith("buffer")]
    streams = vm + [(st01, 4, G(opt.get("st01end", 12)))] + rstreams
    streams.append((cv11[24:] + cv10, 4, G(8)))
    for cb in range(3): streams.append((q_pack(cb), G(8 * cb + 8) + 3, G(8 * cb + 16) - 2))
    L += sched.pack(m, streams, fixed, VB)
    L += q_pack(3)
    L += ST.t(5) + cs('qend')
    def kreads(slot, kt, bank):
        return [f"ds_read_b128 {r(F(bank, ds), 4)}, v1 offset:{slot * 32768 + (kt * 8 + ds) * 1024}" for ds in range(8)]
    def vreads(slot, grp, bank):
        return [f"ds_read_b128 {r(F(bank, d * 2 + ks), 4)}, v2 offset:{slot * 32768 + (ks * 16 + 4 * grp + d) * 1024}"
                for d in range(4) for ks in range(2)]
    def qk_group(kt, bank, cinit):
        m = []
        for tt in range(2):
            for ds in range(8):
                ci = None if ds else ("0" if cinit == 0 else NEGM + 4 * tt)
                m.append(mfma16(S(kt, tt), F(bank, ds), Q(tt, ds), ci))
        return m
    def pv_group(grp, bank, pb):
        return [mfma16(O(4 * grp + d, tt), F(bank, d * 2 + ks), Pf(pb, ks, tt)) for d in range(4) for tt in range(2) for ks in range(2)]
    def l_mfmas(pb):
        return [mfma16(LS + 4 * tt, ONES, Pf(pb, ks, tt)) for tt in range(2) for ks in range(2)]
    def softmax(pb):
        out = []; n = 0
        for kt in range(4):
            for tt in range(2):
                t = TMP + 4 * (n % 3); s_ = S(kt, tt); d = Pf(pb, kt >> 1, tt) + 2 * (kt & 1)
                out += [f"v_exp_f32 v{t+i}, v{s_+i}" for i in range(4)]
                out += [f"v_cvt_pk_bf16_f32 v{d}, v{t}, v{t+1}", f"v_cvt_pk_bf16_f32 v{d+1}, v{t+2}, v{t+3}"]
                out += [f"v_or_b32 v{ORA}, v{d}, v{d+1}" if n == 0 else f"v_or3_b32 v{ORA}, v{ORA}, v{d}, v{d+1}"]
                n += 1
        return out
    def smtile(pb, n): return softmax(pb)[7 * n:7 * n + 7]
    def mask_code(base):
        L = [f"s_sub_u32 s38, {base}, s29", "s_lshl_b32 s38, s38, 6", "s_lshl_b32 s39, s3, 5", "s_sub_u32 s38, s39, s38",
             "v_add_u32 v12, s38, v3", "v_cvt_f32_i32 v12, v12", "v_add_f32 v12, 0.5, v12", f"v_mul_f32 v12, {hex(f2u(1e30))}, v12"]
        n = 0
        for dd in range(-1, 4):
            for rr in range(4):
                c = rr + 16 * dd
                t = 13 + (n % 4); n += 1
                L.append(f"v_add_f32 v{t}, {hex(f2u(-c * 1e30))}, v12")
                for tt in range(2):
                    kt = dd + tt
                    if 0 <= kt < 4: L.append(f"v_min_f32 v{S(kt, tt)+rr}, v{S(kt, tt)+rr}, v{t}")
        return L
    def rescale(init, pb):
        L = []
        for tt in range(2):
            m_ = 12 + 2 * tt
            regs = [S(kt, tt) + i for kt in range(4) for i in range(4)]
            L.append(f"v_max3_f32 v{m_}, v{regs[0]}, v{regs[1]}, v{regs[2]}")
            for k in range(3, 15, 2): L.append(f"v_max3_f32 v{m_}, v{m_}, v{regs[k]}, v{regs[k+1]}")
            L.append(f"v_max_f32 v{m_}, v{m_}, v{regs[15]}")
        for sw in ("v_permlane16_swap_b32", "v_permlane32_swap_b32"):
            for tt in range(2): L.append(f"v_mov_b32 v{13+2*tt}, v{12+2*tt}")
            for tt in range(2): L.append(f"{sw} v{12+2*tt}, v{13+2*tt}")
            for tt in range(2): L.append(f"v_max_f32 v{12+2*tt}, v{12+2*tt}, v{13+2*tt}")
        for tt in range(2):
            m_ = 12 + 2 * tt
            L.append(f"v_sub_f32 v{m_}, {hex(f2u(-B0))}, v{m_}")
            if not init: L.append(f"v_min_f32 v{m_}, 0, v{m_}")
            L.append(f"v_mov_b32 v{m_+1}, v{m_}")
        for tt in range(2):
            m_ = 12 + 2 * tt
            for i in range(2):
                a_ = NEGM + 4 * tt + 2 * i
                if init: L.append(f"v_pk_mov_b32 v[{a_}:{a_+1}], v[{m_}:{m_+1}], v[{m_}:{m_+1}]")
                else: L.append(f"v_pk_add_f32 v[{a_}:{a_+1}], v[{a_}:{a_+1}], v[{m_}:{m_+1}]")
            for kt in range(4):
                for i in range(2):
                    a_ = S(kt, tt) + 2 * i
                    L.append(f"v_pk_add_f32 v[{a_}:{a_+1}], v[{a_}:{a_+1}], v[{m_}:{m_+1}]")
        if not init:
            for tt in range(2):
                m_ = 12 + 2 * tt
                L.append(f"v_exp_f32 v{m_}, v{m_}")
                L.append(f"v_mov_b32 v{m_+1}, v{m_}")
                for rg in [O(dt, tt) + 2 * i for dt in range(16) for i in range(2)] + [LS + 4 * tt, LS + 4 * tt + 2]:
                    L.append(f"v_pk_mul_f32 v[{rg}:{rg+1}], v[{rg}:{rg+1}], v[{m_}:{m_+1}]")
        L += softmax(pb)
        return L
    zeroO = [f"v_mov_b32 v{i}, 0" for i in range(O0, O0 + 128)] + [f"v_mov_b32 v{i}, 0" for i in range(LS, LS + 8)]
    zeroOpk = [f"v_pk_mov_b32 v[{i}:{i+1}], 0, 0" for i in list(range(O0, O0 + 128, 2)) + list(range(LS, LS + 8, 2))]
    L += [f"v_mov_b32 v{AVF}, v{VF}", "v_add_u32 v2, 0x10000, v1", f"v_mov_b32 v{AV1}, 1"]
    L += ["WAITVM @need=k0", "s_barrier"]
    L += kreads(1, 0, 0)
    m = []; streams = []
    for kt in range(4): m += qk_group(kt, kt & 1, 0)
    qst = [f"s_cmp_eq_u32 s26, 0\ns_cselect_b32 s38, s49, {OOB}"]
    for n in range(16):
        if n and n % 4 == 0: qst.append("s_add_u32 s38, s38, 4096")
        qst.append(f"buffer_store_dwordx4 {r(QR + 4 * n, 4)}, v1, s[{SWS}:{SWS+3}], s38 offen offset:{(n % 4) * 1024} sc1 @tag=qs")
    streams.append((dma_blk("K", 0, "k1") + dma_adv("K"), 0, 34))
    streams.append((qst[:10], 34, 63))
    for kt in range(3): streams.append((kreads(1, kt + 1, (kt + 1) & 1), 16 * kt, 16 * kt + 11))
    setup = ["v_lshrrev_b32 v12, 4, v0", "v_lshlrev_b32 v12, 2, v12", "v_and_b32 v13, 15, v0", "v_sub_u32 v3, v13, v12"] + \
            [f"v_mov_b32 v{ONES+i}, 0x3f803f80" for i in range(4)]
    streams.append((hold_mv + setup, 0, 63))
    L += sched.pack(m, streams, [], VB)
    L += ["s_barrier"]
    def mixv(valu, vm, every):
        out = []; k = 0; groups = []; cur = []
        for x in vm:
            cur.append(x)
            if x.startswith("buffer"): groups.append(cur); cur = []
        if cur: groups[-1] += cur
        for i, x in enumerate(valu):
            out.append(x)
            if i % every == every - 1 and k < len(groups): out += groups[k]; k += 1
        for g in groups[k:]: out += g
        return out
    L += mixv(zeroOpk, qst[10:], 8)
    L += ["s_mov_b32 s36, 3", f"s_cmp_eq_u32 s26, 0\ns_cselect_b32 s37, 2, 3", "s_cmp_eq_u32 s25, 0\ns_cselect_b32 s37, 1, s37"]
    L += ST.t(6) + cs('qk0')
    qq = fin(L, stq, pe)
    A.extend(sched.texts(qq))
    A("s_cmp_lt_u32 s29, s36")
    A("s_cbranch_scc0 L_nomask0")
    emit(mask_code(2))
    A.label("L_nomask0")
    L = rescale(True, 1)
    L.append("s_mov_b32 s38, 0x12492493")
    for p in range(7):
        L += [f"v_add_u32 v12, {p * 64}, v0", "v_mul_hi_u32 v13, v12, s38", "v_mul_u32_u24 v14, 14, v13", "v_sub_u32 v12, v12, v14",
              "v_mul_u32_u24 v13, 896, v13", "v_lshl_add_u32 v12, v12, 4, v13", f"v_subrev_u32 v{WV+p}, {(p % 4) * 1024}, v12"]
    L += ["v_lshrrev_b32 v12, 2, v0", "v_mul_u32_u24 v12, 224, v12", "v_and_b32 v13, 3, v0", f"v_lshl_add_u32 v{WD}, v13, 3, v12"]
    L = mixv(L, dma_blk("K", 1) + dma_adv("K"), 16)
    L += ["s_lshl_b32 s38, 1, s27", f"v_mov_b32 v{AV1}, s38", "s_waitcnt vmcnt(8)", "s_barrier"]
    L += kreads(0, 0, 0)
    L += [f"s_cmp_eq_u32 s26, 0\ns_cselect_b32 s38, s22, {OOB}",
          f"buffer_atomic_add v{AV1}, v{AVF}, s[{SWS}:{SWS+3}], s38 offen offset:8 sc1"]
    k4 = [i for i, x in enumerate(st11) if x.startswith("buffer")][opt.get('hp', [6])[0] - 1]
    L += st11[:k4 + 1] + ["s_waitcnt lgkmcnt(0)"]
    L += ST.t(7) + cs('att')
    emit(L)
    A("s_branch L_top1")
    place = lambda m, f: sched.pack(m, [], f, False)
    def phaseA(par):
        ks_ = (par + 1) & 1
        m = []
        for kt in range(4): m += qk_group(kt, kt & 1, 1)
        f = []
        f += list(zip([0, 1, 3, 4, 5, 7, 8, 9], kreads(ks_, 1, 1)))
        f += list(zip([11, 12, 13, 15, 16, 17, 19, 20], kreads(ks_, 2, 0)))
        f += list(zip([24, 25, 27, 28, 29, 31, 32, 33], kreads(ks_, 3, 1)))
        su0, d0 = dma4("V", ks_, 0); su1, d1 = dma4("V", ks_, 1)
        f += [(0, su0[0]), (1, su0[1])] + [(2 + 4 * i, d0[i]) for i in range(4)]
        f += [(16, su1[0]), (17, su1[1])] + [(18 + 4 * i, d1[i]) for i in range(4)]
        f += list(zip([43, 45, 48, 50, 54], dma_adv("V")))
        t0 = smtile(par ^ 1, 0); t1 = smtile(par ^ 1, 1)
        f += list(zip([21, 23, 34, 35, 24, 38, 39], t0))
        f += [(38, "s_waitcnt vmcnt(16) lgkmcnt(0)"), (38, "s_barrier")]
        su0, d0 = dma4("K", ks_, 0)
        f += [(37, su0[0]), (39, su0[1])] + [(40 + 6 * i, d0[i]) for i in range(4)]
        f += list(zip([36, 37, 42, 44, 41, 47, 49], t1))
        f += [(47 + 2 * i, x) for i, x in enumerate(vreads(par, 0, 0))]
        f += [(62, "s_cmp_le_u32 s29, s36")]
        return place(m, f)
    def phaseB(par):
        mm = l_mfmas(par)
        for grp in range(4): mm += pv_group(grp, grp & 1, par)
        f = []
        for grp in range(3):
            f += [(5 + 16 * grp + 2 * i, x) for i, x in enumerate(vreads(par, grp + 1, (grp + 1) & 1))]
        f += [(56, "s_waitcnt vmcnt(16) lgkmcnt(0)"), (56, "s_barrier")]
        f += [(57 + i, x) for i, x in enumerate(kreads(par, 0, 0))]
        dg = [6, 20, 34, 48]
        eg = [g for g in range(0, 56, 2) if g not in dg]
        su1, d1 = dma4("K", (par + 1) & 1, 1)
        f += [(1, su1[0]), (2, su1[1])] + list(zip(dg, d1))
        f += list(zip([50, 58, 60, 62, 63], dma_adv("K")))
        for t in range(2, 8):
            x = smtile(par ^ 1, t); e = eg[4 * (t - 2):4 * (t - 2) + 4]
            f += list(zip(e, x[:4])) + [(e[1] + 1, x[4]), (e[3] + 1, x[5]), (e[3] + 3, x[6])]
        f += [(59, f"v_and_b32 v{ORA}, 0x40004000, v{ORA}"), (61, f"v_cmp_ne_u32 vcc, 0, v{ORA}")]
        f += [(0, "s_sub_u32 s29, s29, 1"), (66, "s_cmp_le_u32 s29, s10")]
        return place(mm, f)
    st = sched.State()
    whole = phaseA(0) + ["LBL_B0:"] + phaseB(0) + ["LBL_A1:"] + phaseA(1) + ["LBL_B1:"] + phaseB(1)
    lp = sched.texts(sched.finish_loop(whole, st, report=rep))
    iB0 = lp.index("LBL_B0:"); iA1 = lp.index("LBL_A1:"); iB1 = lp.index("LBL_B1:")
    seg = {("A", 0): lp[:iB0], ("B", 0): lp[iB0 + 1:iA1], ("A", 1): lp[iA1 + 1:iB1], ("B", 1): lp[iB1 + 1:]}
    A(".p2align 6")
    for par in range(2):
        A.label(f"L_top{par}")
        A.extend(seg[("A", par)])
        A(f"s_cbranch_scc1 L_mask{par}")
        A.label(f"L_B{par}")
        A.extend(seg[("B", par)])
        A(f"s_cbranch_scc1 L_endg{par}")
        A("s_cbranch_vccnz L_rare0" if par == 0 else "s_cbranch_vccz L_top0")
    PL = NA & 1
    hs = st11 + st10
    def split_stores(lst, cnts):
        out = []; cur = []; k = 0; c = 0
        for x in lst:
            cur.append(x)
            if x.startswith("buffer"):
                c += 1
                if c == cnts[k]: out.append(cur); cur = []; c = 0; k += 1
        return out
    HP = opt.get('hp', [6, 5, 5])
    hparts = split_stores(hs, HP)[1:]
    JS = len(hparts)
    for par in (1, 0):
        A.label(f"L_rare{par}")
        A("s_nop 7")
        emit(rescale(False, par ^ 1))
        A("s_cmp_eq_u32 s29, 1")
        A(f"s_cbranch_scc0 L_top{par ^ 1}")
        A.label(f"L_one{par}")
        if par == 1:
            A("s_cmp_eq_u32 s37, 3")
            A("s_cbranch_scc1 L_preswitch")
        A(f"s_branch L_last{par ^ 1}")
        A.label(f"L_endg{par}")
        A("s_cmp_eq_u32 s10, 1")
        A(f"s_cbranch_scc1 L_endh{par}")
        A("s_add_u32 s11, s11, 1")
        for j in range(6):
            if ((j + 1) & 1) != par: continue
            A(f"s_cmp_eq_u32 s11, {j + 1}")
            A(f"s_cbranch_scc0 L_hk{j}_n")
            if opt.get('hst') and j in opt['hst']: A.extend(ST.t((8, 9, 1)[opt['hst'].index(j)]))
            if j < JS:
                emit(hparts[j])
            elif j == JS:
                A("v_mov_b32 v12, 1")
                A(f"buffer_atomic_add v12, v{AVF}, s[{SWS}:{SWS+3}], s22 offen offset:4 sc1")
            elif j == 5:
                A("s_add_u32 s38, s6, s22"); A("s_addc_u32 s39, s7, 0")
                A("s_load_dword s38, s[38:39], 4 glc")
                A("s_mov_b32 s10, 1")
                A("s_waitcnt lgkmcnt(0)")
                A("s_cmp_ge_u32 s38, 16")
                A("s_cbranch_scc0 L_spin2")
                A.label("L_spun2")
            A.label(f"L_hk{j}_n")
        A("s_cmp_le_u32 s29, 1")
        A(f"s_cbranch_scc1 L_endh{par}")
        A(f"s_cbranch_vccnz L_rare{par}")
        A(f"s_branch L_top{par ^ 1}")
        A.label(f"L_endh{par}")
        if par == 0:
            A("s_cmp_eq_u32 s29, 0")
            A("s_cbranch_scc1 L_switch")
        A(f"s_cbranch_vccnz L_rare{par}")
        A(f"s_branch L_one{par}")
        A.label(f"L_mask{par}")
        if par == 1:
            A("s_lshl_b32 s38, s37, 2")
            A("s_add_u32 s38, s38, s29")
            A("s_cmp_eq_u32 s38, 14")
            A("s_cbranch_scc1 L_getq")
            A.label("L_gotq")
        A("s_nop 7")
        emit(codepf(f"L_last{PL ^ 1}", 13, "v27", 20 + par))
        emit(mask_code(3) + smtile(par ^ 1, 0) + smtile(par ^ 1, 1))
        A(f"s_branch L_B{par}")
    def vpoll(lab, dw, test, done, va=12, vd=13):
        A.label(lab)
        A("s_mov_b32 s12, 0")
        A.label(lab + "_l")
        A(f"v_mov_b32 v{va}, s22")
        A(f"global_load_dword v{vd}, v{va}, s[6:7] offset:{4*dw} sc1")
        A("s_waitcnt vmcnt(0)")
        A(f"v_readfirstlane_b32 s38, v{vd}")
        A("s_nop 0")
        A(test)
        A(f"s_cbranch_scc1 {done}")
        A("s_add_u32 s12, s12, 1")
        A(f"s_cmp_gt_u32 s12, {SPINMAX}")
        A(f"s_cbranch_scc1 {done}")
        A("s_sleep 1")
        A(f"s_branch {lab}_l")
    A.label("L_getq")
    A("s_add_u32 s20, s6, s22"); A("s_addc_u32 s21, s7, 0")
    A("s_load_dword s38, s[20:21], 8 glc")
    A("s_waitcnt lgkmcnt(0)")
    A("s_bitcmp1_b32 s38, s27")
    A("s_cbranch_scc1 L_getq2")
    vpoll("L_getq_p", 2, "s_bitcmp1_b32 s38, s27", "L_getq2")
    A.label("L_getq2")
    A("s_mov_b32 s38, s49")
    for n in range(16):
        if n and n % 4 == 0: A("s_add_u32 s38, s38, 4096")
        A(f"buffer_load_dwordx4 {r(QR + 4 * n, 4)}, v1, s[{SWS}:{SWS+3}], s38 offen offset:{(n % 4) * 1024} sc1")
    A("s_branch L_gotq")
    A.label("L_preswitch")
    for i in range(8): A(f"v_mov_b32 v{NEGM+i}, 0")
    A("s_mov_b32 s36, 0")
    A(f"s_cmp_le_u32 s11, {JS}")
    A("s_cbranch_scc1 L_presw2")
    A("s_waitcnt vmcnt(4)")
    A("s_branch L_top0")
    A.label("L_presw2")
    A(f"s_waitcnt vmcnt({4 + min(HP[1:])})")
    A("s_branch L_top0")
    CT = 32
    def ctx(tt, ds): return CT + (tt * 8 + ds) * 4
    def pack_plain(mode):
        L = [f"v_rcp_f32 v{12+2*tt}, v{LS+4*tt}" for tt in range(2)] + [f"v_mov_b32 v{13+2*tt}, v{12+2*tt}" for tt in range(2)]
        n = 0
        for tt in range(2):
            for ds in range(8):
                dst = ctx(tt, ds) if mode == "ctx" else O(2 * ds, tt)
                for h in range(2):
                    o = O(2 * ds + h, tt)
                    for i in range(2):
                        L.append(f"v_pk_mul_f32 v[{o+2*i}:{o+2*i+1}], v[{o+2*i}:{o+2*i+1}], v[{12+2*tt}:{13+2*tt}]")
                    for i in range(2):
                        L.append(f"v_cvt_pk_bf16_f32 v{dst+2*h+i}, v{o+2*i}, v{o+2*i+1}")
                if mode == "park":
                    L += [f"v_accvgpr_write_b32 a{PARK - 256 + 4 * n + i}, v{dst+i}" for i in range(4)]
                if mode == "store":
                    if n and n % 4 == 0: L.append("s_add_u32 s41, s41, 4096")
                    L.append(f"buffer_store_dwordx4 v[{dst}:{dst+3}], v1, s[{SWS}:{SWS+3}], s41 offen offset:{(n % 4) * 1024} sc1 @tag=ps")
                n += 1
        return L
    A.label("L_switch")
    if not (opt.get("qst") or opt.get("hst")): A.extend(ST.t(8))
    A("s_nop 7")
    emit(pack_plain("park") + zeroOpk + rescale(True, 1) + ["s_mov_b32 s29, s25", "s_mov_b32 s37, 0"] + (ST.t(9) if not (opt.get("qst") or opt.get("hst")) else []))
    A("s_cmp_eq_u32 s29, 1")
    A("s_cbranch_scc0 L_top1")
    A("s_branch L_last1")
    OREG = [0, 32768, 131072, 65536, 98304]
    def oregion(sb): return OREG[sb % 5]
    def w_dma(sb):
        c, kh = sb >> 1, sb & 1
        out = []
        for p in range(7):
            if p % 4 == 0:
                out.append(f"s_add_u32 m0, s43, {oregion(sb) + p * 1024}")
                out.append(f"s_add_u32 s35, s48, {kh * 4 * 32 * 896 + c * 224}")
            out.append(f"buffer_load_dwordx4 v{WV+p}, s[{SWO}:{SWO+3}], s35 offen offset:{(p % 4) * 1024} lds @tag=wb{sb}")
        return out
    def lastB(par, vmem):
        mm = l_mfmas(par)
        for grp in range(4): mm += pv_group(grp, grp & 1, par)
        streams = [(vmem, 0, 67)]
        for grp in range(3): streams.append((vreads(par, grp + 1, (grp + 1) & 1), 4 + 16 * grp, 4 + 16 * grp + 12))
        return sched.pack(mm, streams, [], VB)
    mix = mixv
    dm = [w_dma(sb) for sb in range(8)]
    pl = [f"buffer_load_dwordx4 v[108:111], v1, s[{SWS}:{SWS+3}], s42 offen sc1"]
    for n in range(16):
        if n and n % 4 == 0: pl.append("s_add_u32 s41, s41, 4096")
        pl.append(f"buffer_load_dwordx4 {r(PARTL + 4 * n, 4)}, v1, s[{SWS}:{SWS+3}], s41 offen offset:{(n % 4) * 1024} sc1")
    for par in (PL ^ 1, PL):
        A.label(f"L_last{par}")
        if NA <= 18 and par != PL:
            A("s_endpgm"); continue
        A.extend(ST.t(10) + cs('last'))
        L = ["s_add_u32 s20, s6, s22", "s_addc_u32 s21, s7, 0", "s_load_dword s52, s[20:21], 12 glc",
             "s_lshl_b32 s41, s24, 3", "s_add_u32 s41, s41, s27", "s_lshl_b32 s42, s41, 12", "s_lshl_b32 s38, s3, 10", "s_add_u32 s42, s42, s38",
             f"s_add_u32 s42, s42, {WS_PART + (8 << 20)}", "s_lshl_b32 s41, s41, 16", "s_lshl_b32 s38, s3, 14", "s_add_u32 s41, s41, s38",
             f"s_add_u32 s41, s41, {WS_PART}",
             "s_mul_i32 s43, s3, 7168", "s_mul_i32 s48, s24, 229376", f"s_mul_i32 s38, s3, {32 * 896}", "s_add_u32 s48, s48, s38",
             "s_lshl_b32 s51, s24, 7", "s_lshl_b32 s38, s50, 3", "s_add_u32 s51, s51, s38", "s_lshl_b32 s38, s3, 1", "s_add_u32 s51, s51, s38",
             "s_mul_i32 s51, s51, 14336", f"s_add_u32 s51, s51, {WS_Y}",
             "s_waitcnt vmcnt(0) lgkmcnt(0)", "s_barrier"] + vreads(par, 0, 0)
        stL = sched.State()
        l0 = fin(L, stL)
        A.extend(sched.texts(l0))
        if par == PL:
            A("s_cmp_eq_u32 s37, 2")
            A("s_cselect_b32 s38, s52, 0")
            A("s_bitcmp1_b32 s38, s27")
            A("s_cbranch_scc1 L_lastC")
        stN = stL.copy()
        L = lastB(par, dm[0] + dm[1] + dm[2][:5])
        L += ["s_barrier", "s_nop 3"]
        ln = fin(L, stN, l0)
        A.extend(sched.texts(ln))
        if par != PL: A("s_branch L_fin1")
    A("s_cmp_eq_u32 s37, 0")
    A("s_cbranch_scc1 L_pub")
    A("s_cmp_eq_u32 s37, 2")
    A("s_cbranch_scc1 L_late")
    A.label("L_fin1")
    st1 = stN.copy()
    emit(mix(pack_plain("ctx"), dm[2][5:] + dm[3] + dm[4], 7), st1, ln)
    A("s_branch L_oproj")
    A.label("L_pub")
    st0 = stN.copy()
    L = [f"v_mov_b32 v108, v{NEGM}", f"v_mov_b32 v109, v{LS}", f"v_mov_b32 v110, v{NEGM+4}", f"v_mov_b32 v111, v{LS+4}",
         f"buffer_store_dwordx4 v[108:111], v1, s[{SWS}:{SWS+3}], s42 offen sc1 @tag=ps"]
    L += pack_plain("store")
    L += mix([f"v_accvgpr_read_b32 v{CT+i}, a{PARK-256+i}" for i in range(64)], dm[2][5:], 14)
    L += ["WAITVM @need=ps", "s_barrier", f"buffer_atomic_add v{AV1}, v{AVF}, s[{SWS}:{SWS+3}], s22 offen offset:12 sc1"]
    L += dm[3] + dm[4]
    emit(L, st0, ln)
    A("s_branch L_oproj")
    cb = []
    for tt in range(2):
        nb, lb = 108 + 2 * tt, 109 + 2 * tt
        cA, cB = 12 + 4 * tt, 14 + 4 * tt
        cb += [f"v_min_f32 v20, v{NEGM+4*tt}, v{nb}", f"v_sub_f32 v21, v20, v{NEGM+4*tt}", f"v_sub_f32 v22, v20, v{nb}",
               "v_exp_f32 v21, v21", "v_exp_f32 v22, v22", f"v_mul_f32 v22, v22, v{lb}", f"v_fma_f32 v20, v21, v{LS+4*tt}, v22",
               "v_rcp_f32 v20, v20", f"v_mul_f32 v{cA}, v21, v20", f"v_mul_f32 v{cB}, v22, v20",
               f"v_mov_b32 v{cA+1}, v{cA}", f"v_mov_b32 v{cB+1}, v{cB}"]
    n = 0
    for tt in range(2):
        cA, cB = 12 + 4 * tt, 14 + 4 * tt
        for ds in range(8):
            for h in range(2):
                o = O(2 * ds + h, tt)
                for i in range(2):
                    c_ = ctx(tt, ds) + 2 * h + i
                    t = 120 + 2 * (n % 4); n += 1
                    cb += [f"v_accvgpr_read_b32 v{c_}, a{PARTL - 256 + c_ - CT}",
                           f"v_pk_mul_f32 v[{o+2*i}:{o+2*i+1}], v[{o+2*i}:{o+2*i+1}], v[{cA}:{cA+1}]",
                           f"v_lshlrev_b32 v{t}, 16, v{c_}", f"v_and_b32 v{t+1}, 0xffff0000, v{c_}",
                           f"v_pk_fma_f32 v[{t}:{t+1}], v[{t}:{t+1}], v[{cB}:{cB+1}], v[{o+2*i}:{o+2*i+1}]",
                           f"v_cvt_pk_bf16_f32 v{c_}, v{t}, v{t+1}"]
    A.label("L_late")
    emit(dm[2][5:])
    vpoll("L_part_p", 3, "s_bitcmp1_b32 s38, s27", "L_late2")
    A.label("L_late2")
    emit(pl + mix(cb, dm[3] + dm[4], 24), sched.State())
    A("s_branch L_oproj")
    A.label("L_lastC")
    stC = stL.copy()
    L = lastB(PL, pl) + ["s_barrier"] + dm[0][:6] + mix(cb, dm[0][6:] + dm[1] + dm[2] + dm[3] + dm[4], 13)
    emit(L, stC, l0)
    A.label("L_oproj")
    st = sched.State()
    st.vm = [(set(), f"wb{sb}") for sb in range(5) for _ in range(7)]
    YA = [128, 184]
    def ya(c, mt, tt): return YA[c & 1] + (mt * 2 + tt) * 4
    def wf(n, u): return FR + (n & 3) * 16 + u * 4
    groups = [(sb, mt) for sb in range(8) for mt in range(7)]
    def w_pre(n):
        sb, mt = groups[n]
        pre = []
        if mt == 0:
            pre += [f"WAITVM @need=wb{sb}", "s_barrier"]
            if sb > 0: pre.append(f"v_add_u32 v{WD}, {hex((oregion(sb) - oregion(sb - 1)) & 0xffffffff)}, v{WD}")
        return pre
    def w_reads(n):
        sb, mt = groups[n]
        return [f"ds_read_b64_tr_b16 {r(wf(n, u) + 2 * h2, 2)}, v{WD} offset:{u * 7168 + h2 * 16 * 224 + mt * 32}" for u in range(4) for h2 in range(2)]
    def y_drain(pair):
        out = []
        t0, t1 = 2 * pair, 2 * pair + 1
        for tt in range(2):
            a0 = ya(t0 // 7, t0 % 7, tt); a1 = ya(t1 // 7, t1 % 7, tt)
            out += [f"v_cvt_pk_bf16_f32 v{a0}, v{a0}, v{a0+1}", f"v_cvt_pk_bf16_f32 v{a0+1}, v{a0+2}, v{a0+3}",
                    f"v_cvt_pk_bf16_f32 v{a0+2}, v{a1}, v{a1+1}", f"v_cvt_pk_bf16_f32 v{a0+3}, v{a1+2}, v{a1+3}",
                    f"s_add_u32 s38, s51, {tt * 14336 + pair * 1024}\n"
                    f"buffer_store_dwordx4 v[{a0}:{a0+3}], v1, s[{SWS}:{SWS+3}], s38 offen" + opt.get("yflag", " sc1")]
        return out
    L = ST.t(11) + cs('oproj')
    for n in range(2): L += w_pre(n) + w_reads(n)
    m = []; fixed = []; rs_ = []; vm = []; dr = []
    tail = []
    for n, (sb, mt) in enumerate(groups):
        c, kh = sb >> 1, sb & 1
        for tt in range(2):
            for u in range(4):
                m.append(mfma16(ya(c, mt, tt), wf(n, u), ctx(tt, kh * 4 + u), "0" if (kh == 0 and u == 0) else None))
        if n + 2 < len(groups):
            fixed += [(8 * n - 1, x) for x in w_pre(n + 2)]
            rs_.append((w_reads(n + 2), 8 * n, 8 * n + 7))
    for sb in (2, 3, 4): vm.append((dm[sb + 3], 56 * sb, 56 * sb + 38))
    for c in range(4):
        prs = [p for p in range(14) if (2 * p + 1) // 7 == c]
        items = sum((y_drain(p) for p in prs), [])
        if c < 3:
            dr.append((items, 112 * (c + 1) + 3, 112 * (c + 2) - 10))
        else:
            for p in prs:
                n_end = [n for n, (sb, mt) in enumerate(groups) if sb == 7 and 21 + mt == 2 * p + 1][0]
                if n_end + 2 < len(groups): dr.append((y_drain(p), 8 * (n_end + 1) + 3, 8 * (n_end + 3) - 1))
                else: tail += y_drain(p)
    if opt.get("x_noy"): dr = [([x for x in it if "buffer_store" not in x], a_, b_) for it, a_, b_ in dr]
    if opt.get("x_nord"): rs_ = []
    L += sched.pack(m, vm + dr + rs_, fixed, VB)
    L += tail
    L += ST.t(12) + cs('oend')
    emit(L, st)
    if ST.en:
        A("s_waitcnt vmcnt(0)")
        A.extend(ST.t(13) + cs('end'))
        ST.write(A, 6, 0)
    A.label("L_end")
    A("s_endpgm")
    A.label("L_hook")
    A("s_mov_b32 s23, 5")
    A("s_cmp_eq_u32 s3, 0")
    A("s_cbranch_scc0 L_hook_ret")
    A("s_add_u32 s20, s4, s2")
    A("s_addc_u32 s21, s5, 0")
    A("s_mov_b32 exec_lo, 0")
    A("s_mov_b32 exec_hi, 0x80000000")
    A("v_readlane_b32 s38, v0, 63")
    A("v_readlane_b32 s30, v1, 63")
    A("v_mov_b32 v0, 0")
    A("v_mov_b32 v1, 1")
    A("global_store_byte v0, v1, s[20:21] sc1")
    A("s_nop 1")
    A("v_mov_b32 v0, s38")
    A("v_mov_b32 v1, s30")
    A("s_mov_b64 exec, -1")
    A.label("L_hook_ret")
    A("s_cmp_eq_u32 s26, 0")
    A("s_cbranch_scc1 L_loopK")
    A("s_branch L_loopV")
    for which in (0, 1):
        lab = "L_loopK" if which == 0 else "L_loopV"
        A.label(lab + "_spin")
        A("s_mov_b32 s30, 0")
        A.label(lab + "_spin_l")
        A("s_add_u32 s30, s30, 1")
        A(f"s_cmp_gt_u32 s30, {SPINMAX}")
        A(f"s_cbranch_scc1 {lab}_spun")
        A("s_sleep 1")
        A("global_load_dword v0, v1, s[4:5] sc1")
        A("s_waitcnt vmcnt(0)")
        A("v_cmp_ne_u32 vcc, 0x01010101, v0")
        A("s_nop 4")
        A(f"s_cbranch_vccnz {lab}_spin_l")
        A(f"s_branch {lab}_spun")
    vpoll("L_spin1", 0, "s_cmp_ge_u32 s38, 16", "L_spun1", 8, 8)
    vpoll("L_spin2", 1, "s_cmp_ge_u32 s38, 16", "L_spun2")
    if opt.get("report"):
        for x in rep: print("HAZ", x)
    return kernel_header(name) + A.text() + kernel_desc(name, vgpr=512, accum=256)
```

```python
from common import *
import sched
from k1 import f2u

B0 = 6.0
NA = 17

def gen_k2(name, opt):
    A = Asm()
    ST = Stamps(opt.get("stamps", 0), base=60)
    rep = []
    NEGM = 4; TMP = 12; ORA = 24
    S0 = 32; P0 = 64; LS = 96; ONES = 104; O0 = 128
    QR = 256; FR = 320
    def S(kt, tt): return S0 + (kt * 2 + tt) * 4
    def Pf(b, ks, tt): return P0 + 16 * b + (ks * 2 + tt) * 4
    def O(dt, tt): return O0 + (dt * 2 + tt) * 4
    def Q(tt, ds): return QR + (tt * 8 + ds) * 4
    def F(bank, i): return FR + bank * 32 + i * 4
    SW, SWO = 8, 12
    P = []
    def E(t): P.append(t)
    A("s_cmp_ge_u32 s2, 256")
    A("s_cbranch_scc1 L_k2_end")
    ST.mark(A, 0)
    E("s_load_dwordx2 s[20:21], s[0:1], 40")
    E("s_load_dwordx4 s[4:7], s[0:1], 88")
    E("v_lshrrev_b32 v1, 6, v0")
    E("v_and_b32 v0, 63, v0")
    E("v_readfirstlane_b32 s3, v1")
    E("s_and_b32 s24, s2, 7")
    E("s_lshr_b32 s25, s2, 3")
    E("s_and_b32 s26, s25, 1")
    E("s_lshl_b32 s24, s24, 1")
    E("s_add_u32 s24, s24, s26")
    E("s_lshr_b32 s26, s25, 2")
    E("s_bfe_u32 s25, s25, 0x10001")
    E("v_lshlrev_b32 v1, 4, v0")
    E("v_add_u32 v2, 0x10000, v1")
    E("v_lshrrev_b32 v12, 4, v0")
    E("v_lshlrev_b32 v12, 2, v12")
    E("v_and_b32 v13, 15, v0")
    E("v_sub_u32 v3, v13, v12")
    for i in range(4): E(f"v_mov_b32 v{ONES+i}, 0x3f803f80")
    E("s_lshl_b32 s32, s3, 13")
    E("s_sub_u32 s27, 15, s26")
    E("s_lshl_b32 s38, s26, 1")
    E(f"s_sub_u32 s39, {32 - NA}, s38")
    E("s_cmp_eq_u32 s25, 0")
    E("s_cselect_b32 s28, s39, 0")
    E(f"s_cselect_b32 s29, {NA}, s39")
    E("s_cselect_b32 s36, 3, 0")
    E("s_cselect_b32 s37, 2, 0")
    E("s_waitcnt lgkmcnt(0)")
    srd(E, SW, 6, 160 << 20)
    srd(E, SWO, 20, 4096 * 448 * 2)
    A.extend(sched.texts(sched.finish(P, report=rep)))

    def dma4(kind, slot, half):
        sreg = 30 if kind == "K" else 31
        base = (0 if kind == "K" else 65536) + slot * 32768 + half * 4096
        su = [f"s_add_u32 m0, s32, {base}", f"s_add_u32 s35, s{sreg}, {half * 4096}"]
        d = [f"buffer_load_dwordx4 v1, s[{SW}:{SW+3}], s35 offen offset:{i*1024} lds" for i in range(4)]
        return su, d
    def dma_adv(kind):
        sreg = 30 if kind == "K" else 31; cnt = 33 if kind == "K" else 34
        return [f"s_add_u32 s{sreg}, s{sreg}, 32768", f"s_sub_u32 s{cnt}, s{cnt}, 1", f"s_cmp_gt_i32 s{cnt}, 0",
                f"s_cselect_b32 s{sreg}, s{sreg}, 0x70000000"]
    def dma_block(kind, slot):
        out = []
        for half in range(2):
            su, d = dma4(kind, slot, half); out += su + d
        return out + dma_adv(kind)
    def kreads(slot, kt, bank):
        return [f"ds_read_b128 {r(F(bank, ds), 4)}, v1 offset:{slot * 32768 + (kt * 8 + ds) * 1024}" for ds in range(8)]
    def vreads(slot, grp, bank):
        return [f"ds_read_b128 {r(F(bank, d * 2 + ks), 4)}, v2 offset:{slot * 32768 + (ks * 16 + 4 * grp + d) * 1024}"
                for d in range(4) for ks in range(2)]
    def qk_group(kt, bank, cinit):
        m = []
        for tt in range(2):
            for ds in range(8):
                ci = None if ds else ("0" if cinit == 0 else NEGM + 4 * tt)
                m.append(mfma16(S(kt, tt), F(bank, ds), Q(tt, ds), ci))
        return m
    def pv_group(grp, bank, pb):
        m = []
        for d in range(4):
            for tt in range(2):
                for ks in range(2):
                    m.append(mfma16(O(4 * grp + d, tt), F(bank, d * 2 + ks), Pf(pb, ks, tt)))
        return m
    def l_mfmas(pb):
        return [mfma16(LS + 4 * tt, ONES, Pf(pb, ks, tt)) for tt in range(2) for ks in range(2)]
    def softmax(pb):
        out = []
        n = 0
        for kt in range(4):
            for tt in range(2):
                t = TMP + 4 * (n % 3); s_ = S(kt, tt); d = Pf(pb, kt >> 1, tt) + 2 * (kt & 1)
                out += [f"v_exp_f32 v{t+i}, v{s_+i}" for i in range(4)]
                out += [f"v_cvt_pk_bf16_f32 v{d}, v{t}, v{t+1}", f"v_cvt_pk_bf16_f32 v{d+1}, v{t+2}, v{t+3}"]
                out += [f"v_or_b32 v{ORA}, v{d}, v{d+1}" if n == 0 else f"v_or3_b32 v{ORA}, v{ORA}, v{d}, v{d+1}"]
                n += 1
        return out
    def mask_code():
        L = ["s_lshl_b32 s38, s28, 6", "s_sub_u32 s38, s40, s38",
             "v_add_u32 v12, s38, v3", "v_cvt_f32_i32 v12, v12", "v_add_f32 v12, 0.5, v12",
             f"v_mul_f32 v12, {hex(f2u(1e30))}, v12"]
        n = 0
        for dd in range(-1, 4):
            for rr in range(4):
                c = rr + 16 * dd
                t = 13 + (n % 4); n += 1
                L.append(f"v_add_f32 v{t}, {hex(f2u(-c * 1e30))}, v12")
                for tt in range(2):
                    kt = dd + tt
                    if 0 <= kt < 4:
                        L.append(f"v_min_f32 v{S(kt, tt)+rr}, v{S(kt, tt)+rr}, v{t}")
        return L
    def rescale(init, pb):
        L = []
        for tt in range(2):
            m_ = 12 + 2 * tt; t = m_ + 1
            regs = [S(kt, tt) + i for kt in range(4) for i in range(4)]
            L.append(f"v_max3_f32 v{m_}, v{regs[0]}, v{regs[1]}, v{regs[2]}")
            for k in range(3, 15, 2):
                L.append(f"v_max3_f32 v{m_}, v{m_}, v{regs[k]}, v{regs[k+1]}")
            L.append(f"v_max_f32 v{m_}, v{m_}, v{regs[15]}")
        for sw in ("v_permlane16_swap_b32", "v_permlane32_swap_b32"):
            for tt in range(2): L.append(f"v_mov_b32 v{13+2*tt}, v{12+2*tt}")
            for tt in range(2): L.append(f"{sw} v{12+2*tt}, v{13+2*tt}")
            for tt in range(2): L.append(f"v_max_f32 v{12+2*tt}, v{12+2*tt}, v{13+2*tt}")
        for tt in range(2):
            m_ = 12 + 2 * tt
            L.append(f"v_add_f32 v{m_}, {hex(f2u(B0))}, v{m_}")
            if not init: L.append(f"v_max_f32 v{m_}, 0, v{m_}")
        for tt in range(2):
            m_ = 12 + 2 * tt
            if init:
                for i in range(4): L.append(f"v_sub_f32 v{NEGM+4*tt+i}, 0, v{m_}")
            else:
                for i in range(4): L.append(f"v_sub_f32 v{NEGM+4*tt+i}, v{NEGM+4*tt+i}, v{m_}")
            for kt in range(4):
                for i in range(4): L.append(f"v_sub_f32 v{S(kt,tt)+i}, v{S(kt,tt)+i}, v{m_}")
        if not init:
            for tt in range(2):
                m_ = 12 + 2 * tt
                L.append(f"v_exp_f32 v{m_}, -v{m_}")
                L.append(f"v_mov_b32 v{m_+1}, v{m_}")
                for rg in [O(dt, tt) + 2 * i for dt in range(16) for i in range(2)] + [LS + 4 * tt, LS + 4 * tt + 2]:
                    L.append(f"v_pk_mul_f32 v[{rg}:{rg+1}], v[{rg}:{rg+1}], v[{m_}:{m_+1}]")
        L += softmax(pb)
        return L

    A.label("L_k2_unit")
    U = []
    def E(t): U.append(t)
    E("s_lshl_b32 s30, s24, 20")
    E("s_lshl_b32 s38, s28, 15")
    E("s_add_u32 s30, s30, s38")
    E("s_add_u32 s30, s30, s32")
    E(f"s_add_u32 s31, s30, {WS_V}")
    E("s_mov_b32 s33, s29")
    E("s_mov_b32 s34, s29")
    U += dma_block("K", 0)
    E("s_lshl_b32 s38, s24, 20")
    E("s_lshl_b32 s39, s27, 16")
    E("s_add_u32 s38, s38, s39")
    E("s_lshl_b32 s39, s3, 14")
    E("s_add_u32 s38, s38, s39")
    E(f"s_add_u32 s38, s38, {WS_Q}")
    for k4 in range(4):
        if k4: E(f"s_add_u32 s38, s38, 4096")
        for i in range(4):
            n = k4 * 4 + i
            E(f"buffer_load_dwordx4 {r(QR + 4 * n, 4)}, v1, s[{SW}:{SW+3}], s38 offen offset:{i*1024}")
    U += dma_block("K", 1)
    U += dma_block("V", 0)
    E("s_lshl_b32 s40, s27, 7")
    E("s_lshl_b32 s38, s3, 5")
    E("s_add_u32 s40, s40, s38")
    for i in range(O0, O0 + 128): E(f"v_mov_b32 v{i}, 0")
    for i in range(LS, LS + 8): E(f"v_mov_b32 v{i}, 0")
    E("s_waitcnt vmcnt(16)")
    E("s_barrier")
    E("s_lshl_b32 s38, s3, 2")
    E("s_add_u32 s38, s38, s37")
    E("s_cmp_eq_u32 s38, 1")
    E("s_cbranch_scc1 L_k2_sig")
    E("L_k2_sigback:")
    U += ST.marks(1)
    U += kreads(0, 0, 0)
    for kt in range(4):
        m = qk_group(kt, kt & 1, 0)
        f = spread(kreads(0, kt + 1, (kt + 1) & 1), 0, 8) if kt < 3 else []
        U += interleave(m, f)
    E("s_waitcnt vmcnt(8)")
    E("s_barrier")
    U += dma_block("K", 0)
    U += kreads(1, 0, 0)
    E("s_nop 7")
    u1 = sched.finish(U, sched.State(), report=rep)
    A.extend(sched.texts(u1))
    A("s_cmp_lt_u32 s29, s36")
    A("s_cbranch_scc0 L_k2_nomask0")
    A.extend(sched.texts(sched.finish(mask_code(), report=rep)))
    A.label("L_k2_nomask0")
    A.extend(sched.texts(sched.finish(rescale(True, 0), report=rep)))
    ST.mark(A, 2)
    A("s_waitcnt lgkmcnt(0)")
    V_ = opt.get("verbose")
    def dma8(kind, slot):
        out = []
        for half in range(2):
            su, d = dma4(kind, slot, half); out += su + d
        return out
    def place(m, f):
        return sched.pack(m, [], f, False)
    def smtile(pb, n): return softmax(pb)[7 * n:7 * n + 7]
    def phaseA(par):
        ks_ = (par + 1) & 1
        m = []
        for kt in range(4): m += qk_group(kt, kt & 1, 1)
        f = []
        f += list(zip([0, 1, 3, 4, 5, 7, 8, 9], kreads(ks_, 1, 1)))
        f += list(zip([11, 12, 13, 15, 16, 17, 19, 20], kreads(ks_, 2, 0)))
        f += list(zip([24, 25, 27, 28, 29, 31, 32, 33], kreads(ks_, 3, 1)))
        su0, d0 = dma4("V", ks_, 0); su1, d1 = dma4("V", ks_, 1)
        f += [(0, su0[0]), (1, su0[1])] + [(2 + 4 * i, d0[i]) for i in range(4)]
        f += [(16, su1[0]), (17, su1[1])] + [(18 + 4 * i, d1[i]) for i in range(4)]
        f += [(32 + i, x) for i, x in enumerate(dma_adv("V"))] + [(36, "s_add_u32 s28, s28, 1")]
        t0 = smtile(par ^ 1, 0); t1 = smtile(par ^ 1, 1)
        f += list(zip([21, 23, 34, 35, 24, 38, 39], t0))
        f += [(38, "s_waitcnt vmcnt(16) lgkmcnt(0)"), (38, "s_barrier")]
        su0, d0 = dma4("K", ks_, 0)
        f += [(37, su0[0]), (39, su0[1])] + [(40 + 6 * i, d0[i]) for i in range(4)]
        f += list(zip([36, 37, 42, 44, 41, 47, 49], t1))
        f += [(47 + 2 * i, x) for i, x in enumerate(vreads(par, 0, 0))]
        f += [(62, "s_cmp_le_u32 s29, s36")]
        return place(m, f)
    def phaseB(par):
        mm = l_mfmas(par)
        for grp in range(4): mm += pv_group(grp, grp & 1, par)
        f = []
        for grp in range(3):
            f += [(5 + 16 * grp + 2 * i, x) for i, x in enumerate(vreads(par, grp + 1, (grp + 1) & 1))]
        f += [(56, "s_waitcnt vmcnt(16) lgkmcnt(0)"), (56, "s_barrier")]
        f += [(57 + i, x) for i, x in enumerate(kreads(par, 0, 0))]
        dg = [6, 20, 34, 48]
        eg = [g for g in range(0, 56, 2) if g not in dg]
        su1, d1 = dma4("K", (par + 1) & 1, 1)
        f += [(1, su1[0]), (2, su1[1])] + list(zip(dg, d1))
        f += [(50 + i, x) for i, x in enumerate(dma_adv("K"))]
        for t in range(2, 8):
            x = smtile(par ^ 1, t); e = eg[4 * (t - 2):4 * (t - 2) + 4]
            f += list(zip(e, x[:4])) + [(e[1] + 1, x[4]), (e[3] + 1, x[5]), (e[3] + 3, x[6])]
        f += [(59, f"v_and_b32 v{ORA}, 0x40004000, v{ORA}"), (61, f"v_cmp_ne_u32 vcc, 0, v{ORA}")]
        f += [(0, "s_sub_u32 s29, s29, 1"), (66, "s_cmp_le_u32 s29, 1")]
        return place(mm, f)
    bodyA = [phaseA(0), phaseA(1)]; bodyB = [phaseB(0), phaseB(1)]
    def filt(L):
        out = []
        for x in L:
            if opt.get("x_nodma") and "lds" in x and x.startswith("buffer"): continue
            if opt.get("x_noread") and x.startswith("ds_read"): continue
            if opt.get("x_noexp") and x.startswith("v_exp"): continue
            if opt.get("x_novalu") and (x.startswith("v_exp") or x.startswith("v_cvt") or x.startswith("v_or")): continue
            if opt.get("x_nobar") and x.startswith("s_barrier"): continue
            out.append(x)
        return out
    bodyA = [filt(x) for x in bodyA]; bodyB = [filt(x) for x in bodyB]
    st = sched.State()
    whole = bodyA[0] + ["LBL_B0:"] + bodyB[0] + ["LBL_A1:"] + bodyA[1] + ["LBL_B1:"] + bodyB[1]
    lp = sched.texts(sched.finish_loop(whole, st, report=rep))
    iB0 = lp.index("LBL_B0:"); iA1 = lp.index("LBL_A1:"); iB1 = lp.index("LBL_B1:")
    seg = {("A", 0): lp[:iB0], ("B", 0): lp[iB0 + 1:iA1], ("A", 1): lp[iA1 + 1:iB1], ("B", 1): lp[iB1 + 1:]}
    XP = any(k.startswith("x_") for k in opt)
    A("s_cmp_eq_u32 s29, 1")
    A("s_cbranch_scc1 L_k2_skip0")
    A(".p2align 6")
    for par in range(2):
        A.label(f"L_k2_top{par}")
        A.extend(seg[("A", par)])
        A(f"s_cbranch_scc1 L_k2_mask{par}")
        A.label(f"L_k2_B{par}")
        A.extend(seg[("B", par)])
        A(f"s_cbranch_scc1 L_k2_endg{par}")
        if par == 0:
            if not XP: A(f"s_cbranch_vccnz L_k2_rare0")
        else:
            A("s_cbranch_vccz L_k2_top0" if not XP else "s_branch L_k2_top0")
    for par in (1, 0):
        A.label(f"L_k2_rare{par}")
        A("s_nop 7")
        A.extend(sched.texts(sched.finish(rescale(False, par ^ 1), report=rep)))
        A("s_cmp_eq_u32 s29, 1")
        A(f"s_cbranch_scc0 L_k2_top{par ^ 1}")
        A.label(f"L_k2_skip{par ^ 1}")
        A("s_waitcnt vmcnt(8) lgkmcnt(0)")
        A("s_barrier")
        A.extend(vreads(par ^ 1, 0, 0))
        A("s_waitcnt lgkmcnt(0)")
        A(f"s_branch L_k2_B{par ^ 1}")
        A.label(f"L_k2_endg{par}")
        A("s_cmp_eq_u32 s29, 0")
        A("s_cbranch_scc1 L_k2_exit")
        if not XP: A(f"s_cbranch_vccnz L_k2_rare{par}")
        A(f"s_branch L_k2_skip{par ^ 1}")
        A.label(f"L_k2_mask{par}")
        A("s_nop 7")
        A.extend(sched.texts(sched.finish(mask_code() + smtile(par ^ 1, 0) + smtile(par ^ 1, 1), report=rep)))
        A(f"s_branch L_k2_B{par}")
    A.label("L_k2_sig")
    A("s_mov_b64 exec, 1")
    A("s_lshl_b32 s38, s24, 2")
    A("s_lshl_b32 s39, 1, s26")
    A("v_mov_b32 v12, s38")
    A("v_mov_b32 v13, s39")
    A("global_atomic_or v12, v13, s[4:5] sc1")
    A("s_mov_b64 exec, -1")
    A("s_branch L_k2_sigback")
    A.label("L_k2_exit")
    ST.mark(A, 3)
    A("s_waitcnt vmcnt(0) lgkmcnt(0)")
    A("s_barrier")
    A("s_lshl_b32 s41, s24, 3")
    A("s_add_u32 s41, s41, s26")
    A("s_lshl_b32 s42, s41, 12")
    A("s_lshl_b32 s38, s3, 10")
    A("s_add_u32 s42, s42, s38")
    A(f"s_add_u32 s42, s42, {WS_PART + (8 << 20)}")
    A("s_lshl_b32 s41, s41, 16")
    A("s_lshl_b32 s38, s3, 14")
    A("s_add_u32 s41, s41, s38")
    A(f"s_add_u32 s41, s41, {WS_PART}")
    A("s_cmp_lg_u32 s37, 0")
    A("s_cbranch_scc1 L_k2_final")
    CT = 32
    def ctx(tt, ds): return CT + (tt * 8 + ds) * 4
    def pack_plain(store):
        L = []
        for tt in range(2):
            L.append(f"v_rcp_f32 v{12+2*tt}, v{LS+4*tt}")
        for tt in range(2):
            L.append(f"v_mov_b32 v{13+2*tt}, v{12+2*tt}")
        n = 0
        for tt in range(2):
            for ds in range(8):
                for h in range(2):
                    o = O(2 * ds + h, tt)
                    for i in range(2):
                        L.append(f"v_pk_mul_f32 v[{o+2*i}:{o+2*i+1}], v[{o+2*i}:{o+2*i+1}], v[{12+2*tt}:{13+2*tt}]")
                    for i in range(2):
                        L.append(f"v_cvt_pk_bf16_f32 v{ctx(tt, ds)+2*h+i}, v{o+2*i}, v{o+2*i+1}")
                if store:
                    if n and n % 4 == 0: L.append("s_add_u32 s41, s41, 4096")
                    L.append(f"buffer_store_dwordx4 v[{ctx(tt, ds)}:{ctx(tt, ds)+3}], v1, s[{SW}:{SW+3}], s41 offen offset:{(n % 4) * 1024} sc1")
                n += 1
        return L
    L = [f"v_mov_b32 v108, v{NEGM}", f"v_mov_b32 v109, v{LS}", f"v_mov_b32 v110, v{NEGM+4}", f"v_mov_b32 v111, v{LS+4}",
         f"buffer_store_dwordx4 v[108:111], v1, s[{SW}:{SW+3}], s42 offen sc1"]
    L += pack_plain(True)
    L += ["s_mov_b32 s27, s26", "s_mov_b32 s28, 0", "s_lshl_b32 s29, s26, 1", "s_add_u32 s29, s29, 2", "s_mov_b32 s36, 3", "s_mov_b32 s37, 1"]
    A.extend(sched.texts(sched.finish(L, report=rep)))
    A("s_branch L_k2_unit")
    A.label("L_k2_final")
    WV = 112
    WD = 119
    def region(sb): return (sb % 5) * 28672
    def w_dma(sb):
        c, kh = sb >> 1, sb & 1
        out = []
        for p in range(7):
            it = []
            if p % 4 == 0:
                it.append(f"s_add_u32 m0, s43, {region(sb) + p * 1024}")
                it.append(f"s_add_u32 s35, s44, {kh * 4 * 32 * 896 + c * 224}")
            it.append(f"buffer_load_dwordx4 v{WV+p}, s[{SWO}:{SWO+3}], s35 offen offset:{(p % 4) * 1024} lds @tag=wb{sb}")
            out.append("\n".join(it))
        return out
    L = []
    L.append("s_mul_i32 s43, s3, 7168")
    L.append("s_mul_i32 s44, s24, 229376")
    L.append(f"s_mul_i32 s38, s3, {32 * 896}")
    L.append("s_add_u32 s44, s44, s38")
    L.append("s_mov_b32 s38, 0x12492493")
    for p in range(7):
        L.append(f"v_add_u32 v12, {p * 64}, v0")
        L.append("v_mul_hi_u32 v13, v12, s38")
        L.append("v_mul_u32_u24 v14, 14, v13")
        L.append("v_sub_u32 v12, v12, v14")
        L.append("v_mul_u32_u24 v13, 896, v13")
        L.append(f"v_lshl_add_u32 v12, v12, 4, v13")
        L.append(f"v_subrev_u32 v{WV+p}, {(p % 4) * 1024}, v12")
    L.append("v_lshrrev_b32 v12, 2, v0")
    L.append("v_mul_u32_u24 v12, 224, v12")
    L.append("v_and_b32 v13, 3, v0")
    L.append(f"v_lshl_add_u32 v{WD}, v13, 3, v12")
    L.append("s_lshl_b32 s45, s24, 7")
    L.append("s_lshl_b32 s38, s27, 3")
    L.append("s_add_u32 s45, s45, s38")
    L.append("s_lshl_b32 s38, s3, 1")
    L.append("s_add_u32 s45, s45, s38")
    L.append("s_mul_i32 s45, s45, 14336")
    L.append(f"s_add_u32 s45, s45, {WS_Y}")
    A.extend(sched.texts(sched.finish(L, report=rep)))
    A("s_cmp_eq_u32 s37, 2")
    A("s_cbranch_scc1 L_k2_comb")
    stN = sched.State()
    L = []
    dm = []
    for sb in range(5): dm += w_dma(sb)
    pk = pack_plain(False)
    L += dm[:14]
    k = 14
    for i, x in enumerate(pk):
        L.append(x)
        if i % 6 == 5 and k < len(dm): L.append(dm[k]); k += 1
    L += dm[k:]
    A.extend(sched.texts(sched.finish(L, stN, report=rep)))
    A("s_branch L_k2_oproj")
    A.label("L_k2_comb")
    A("s_lshl_b32 s38, s24, 2")
    A("v_mov_b32 v12, s38")
    A.label("L_k2_poll")
    A("global_load_dword v13, v12, s[4:5] sc1")
    A("s_waitcnt vmcnt(0)")
    A("v_readfirstlane_b32 s38, v13")
    A("s_nop 0")
    A("s_bitcmp1_b32 s38, s26")
    A("s_cbranch_scc1 L_k2_polled")
    A("s_sleep 4")
    A("s_branch L_k2_poll")
    A.label("L_k2_polled")
    stC = sched.State()
    L = [f"buffer_load_dwordx4 v[108:111], v1, s[{SW}:{SW+3}], s42 offen sc1"]
    for n in range(16):
        if n and n % 4 == 0: L.append("s_add_u32 s41, s41, 4096")
        L.append(f"buffer_load_dwordx4 v[{CT+4*n}:{CT+4*n+3}], v1, s[{SW}:{SW+3}], s41 offen offset:{(n % 4) * 1024} sc1")
    L += dm[:14]
    cb = []
    for tt in range(2):
        nb, lb = 108 + 2 * tt, 109 + 2 * tt
        cA, cB = 12 + 4 * tt, 14 + 4 * tt
        cb += [f"v_min_f32 v20, v{NEGM+4*tt}, v{nb}",
               f"v_sub_f32 v21, v20, v{NEGM+4*tt}", f"v_sub_f32 v22, v20, v{nb}",
               "v_exp_f32 v21, v21", "v_exp_f32 v22, v22",
               f"v_mul_f32 v22, v22, v{lb}",
               f"v_fma_f32 v20, v21, v{LS+4*tt}, v22",
               "v_rcp_f32 v20, v20",
               f"v_mul_f32 v{cA}, v21, v20", f"v_mul_f32 v{cB}, v22, v20",
               f"v_mov_b32 v{cA+1}, v{cA}", f"v_mov_b32 v{cB+1}, v{cB}"]
    n = 0
    for tt in range(2):
        cA, cB = 12 + 4 * tt, 14 + 4 * tt
        for ds in range(8):
            for h in range(2):
                o = O(2 * ds + h, tt)
                for i in range(2):
                    c_ = ctx(tt, ds) + 2 * h + i
                    t = 20 + 2 * (n % 4); n += 1
                    cb += [f"v_lshlrev_b32 v{t}, 16, v{c_}", f"v_and_b32 v{t+1}, 0xffff0000, v{c_}",
                           f"v_pk_mul_f32 v[{o+2*i}:{o+2*i+1}], v[{o+2*i}:{o+2*i+1}], v[{cA}:{cA+1}]",
                           f"v_pk_fma_f32 v[{t}:{t+1}], v[{t}:{t+1}], v[{cB}:{cB+1}], v[{o+2*i}:{o+2*i+1}]",
                           f"v_cvt_pk_bf16_f32 v{c_}, v{t}, v{t+1}"]
    k = 14
    for i, x in enumerate(cb):
        L.append(x)
        if i % 12 == 11 and k < len(dm): L.append(dm[k]); k += 1
    L += dm[k:]
    A.extend(sched.texts(sched.finish(L, stC, report=rep)))
    A.label("L_k2_oproj")
    st = sched.State()
    st.vm = [(set(), f"wb{sb}") for sb in range(5) for _ in range(7)]
    YA = [128, 184]
    def ya(c, mt, tt): return YA[c & 1] + (mt * 2 + tt) * 4
    def wf(n, u): return FR + (n & 3) * 16 + u * 4
    groups = [(sb, mt) for sb in range(8) for mt in range(7)]
    def w_reads(n):
        sb, mt = groups[n]
        pre = []
        if mt == 0:
            pre += [f"WAITVM @need=wb{sb}", "s_barrier"]
            if sb > 0:
                pre.append(f"v_add_u32 v{WD}, {hex((region(sb) - region(sb - 1)) & 0xffffffff)}, v{WD}")
        return pre, [f"ds_read_b64_tr_b16 {r(wf(n, u) + 2 * h2, 2)}, v{WD} offset:{u * 7168 + h2 * 16 * 224 + mt * 32}"
                     for u in range(4) for h2 in range(2)]
    def y_drain(pair):
        out = []
        t0, t1 = 2 * pair, 2 * pair + 1
        for tt in range(2):
            a0 = ya(t0 // 7, t0 % 7, tt); a1 = ya(t1 // 7, t1 % 7, tt)
            out += [f"v_cvt_pk_bf16_f32 v{a0}, v{a0}, v{a0+1}", f"v_cvt_pk_bf16_f32 v{a0+1}, v{a0+2}, v{a0+3}",
                    f"v_cvt_pk_bf16_f32 v{a0+2}, v{a1}, v{a1+1}", f"v_cvt_pk_bf16_f32 v{a0+3}, v{a1+2}, v{a1+3}",
                    f"s_add_u32 s38, s45, {tt * 14336 + pair * 1024}\n"
                    f"buffer_store_dwordx4 v[{a0}:{a0+3}], v1, s[{SW}:{SW+3}], s38 offen"]
        return out
    L = ST.marks(4)
    for n in range(2):
        pre, rd = w_reads(n); L += pre + rd
    pend = []
    for n, (sb, mt) in enumerate(groups):
        c, kh = sb >> 1, sb & 1
        m = []
        for tt in range(2):
            for u in range(4):
                m.append(mfma16(ya(c, mt, tt), wf(n, u), ctx(tt, kh * 4 + u), "0" if (kh == 0 and u == 0) else None))
        f = []
        if n + 2 < len(groups):
            pre, rd = w_reads(n + 2)
            f += [(-1, x) for x in pre] + spread(rd, 0, 8)
        if 2 <= sb < 5 and mt < 5:
            dd = w_dma(sb + 3)
            sel = [[0, 1], [2, 3], [4], [5], [6]][mt]
            f += spread([dd[i] for i in sel], 2, 8)
        take = pend[:5]; pend = pend[5:]
        if take: f += spread(take, 3, 8)
        if kh == 1 and (7 * c + mt) & 1:
            pend += y_drain((7 * c + mt) >> 1)
        f.sort(key=lambda x: x[0])
        L += interleave(m, f)
    L += pend
    L += ST.marks(5)
    A.extend(sched.texts(sched.finish(L, st, report=rep)))
    if ST.en:
        A("s_waitcnt vmcnt(0)")
        ST.mark(A, 6)
        ST.n = 7
        ST.write(A, 6, 1)
    A.label("L_k2_end")
    A("s_endpgm")
    if opt.get("report"):
        for x in rep: print("HAZ", x)
    return kernel_header(name) + A.text() + kernel_desc(name, vgpr=512, accum=256)
```

```python
import re

REG = re.compile(r"^(-|\|)?(v|a|s)(\d+|\[(\d+):(\d+)\])\|?$")
def regset(tok):
    tok = tok.strip()
    if tok in ("vcc",): return {("s", 106), ("s", 107)}
    if tok in ("exec",): return {("s", 126), ("s", 127)}
    if tok == "m0": return {("s", 124)}
    if tok.startswith("abs(") or tok.startswith("neg("): tok = tok[4:-1]
    m = REG.match(tok)
    if not m: return set()
    f = m.group(2)
    if m.group(4) is not None:
        lo, hi = int(m.group(4)), int(m.group(5))
    else:
        lo = hi = int(m.group(3))
    if f == "a": return {("v", 256 + i) for i in range(lo, hi + 1)}
    return {(f, i) for i in range(lo, hi + 1)}

TRANS = ("v_exp_f32", "v_log_f32", "v_rcp_f32", "v_rsq_f32", "v_sqrt_f32", "v_sin_f32", "v_cos_f32")
class Ins:
    __slots__ = ("text", "op", "kind", "w", "rd", "srcC", "srcAB", "tag", "need", "passes")
    def __init__(self, text):
        self.tag = None; self.need = None
        if "@" in text:
            text, ann = text.split("@", 1)
            ann = ann.strip()
            for part in ann.split():
                k_, v_ = part.split("=")
                if k_ == "tag": self.tag = v_
                if k_ == "need": self.need = v_.split(",")
        self.text = text.strip()
        t = self.text.split(";")[0].strip()
        sp = t.split(None, 1)
        self.op = sp[0] if sp else ""
        ops = [x.strip() for x in sp[1].split(",")] if len(sp) > 1 else []
        ops2 = []
        for o in ops:
            ops2.append(o.split()[0] if o and not o.startswith("hwreg") else o)
        ops = ops2
        op = self.op
        self.w = set(); self.rd = set(); self.srcC = set(); self.srcAB = set(); self.passes = 0
        R = regset
        if op.endswith(":") or op.startswith("."):
            self.kind = "label"
        elif op == "WAITVM":
            self.kind = "waitvm"
        elif op.startswith("v_mfma"):
            self.kind = "mfma"; self.w = R(ops[0]); self.srcAB = R(ops[1]) | R(ops[2]); self.srcC = R(ops[3])
            self.rd = self.srcAB | self.srcC
            self.passes = 4 if "16x16x32" in op else 8
        elif op.startswith("ds_read") or op.startswith("ds_bpermute") or op.startswith("ds_swizzle"):
            self.kind = "ds"; self.w = R(ops[0])
            for o in ops[1:]: self.rd |= R(o)
        elif op.startswith("ds_"):
            self.kind = "ds"
            for o in ops: self.rd |= R(o)
        elif op.startswith("buffer_load") or op.startswith("global_load"):
            if " lds" in t or "_lds_" in op:
                self.kind = "dma"
                for o in ops: self.rd |= R(o)
                self.rd |= R("m0")
            else:
                self.kind = "vload"; self.w = R(ops[0])
                for o in ops[1:]: self.rd |= R(o)
        elif op.startswith("buffer_store") or op.startswith("global_store"):
            self.kind = "vstore"
            for o in ops: self.rd |= R(o)
        elif op.startswith("buffer_atomic") or op.startswith("global_atomic"):
            ret = " sc0" in t
            if ret and op.startswith("global"):
                self.kind = "vload"; self.w = R(ops[0])
                for o in ops[1:]: self.rd |= R(o)
            elif ret:
                self.kind = "vload"; self.w = R(ops[0])
                for o in ops: self.rd |= R(o)
            else:
                self.kind = "vstore"
                for o in ops: self.rd |= R(o)
        elif op.startswith("buffer_wbl2") or op.startswith("buffer_inv"):
            self.kind = "vstore"
        elif op.startswith("s_waitcnt"):
            self.kind = "wait"
        elif op.startswith("s_load") or op.startswith("s_memtime") or op.startswith("s_memrealtime") or op.startswith("s_buffer_load"):
            self.kind = "smem"; self.w = R(ops[0])
            for o in ops[1:]: self.rd |= R(o)
        elif op == "s_nop":
            self.kind = "nop"
        elif op.startswith("s_cbranch") or op in ("s_branch", "s_endpgm", "s_barrier", "s_setprio", "s_sleep", "s_setpc_b64"):
            self.kind = "ctl"
            if "vcc" in op: self.rd = R("vcc")
            if "exec" in op: self.rd = R("exec")
        elif op.startswith("s_"):
            self.kind = "salu"
            if op.startswith("s_cmp") or op.startswith("s_bitcmp"):
                for o in ops: self.rd |= R(o)
            else:
                self.w = R(ops[0])
                for o in ops[1:]: self.rd |= R(o)
                if "saveexec" in op: self.w |= R("exec"); self.rd |= R("exec")
                if op in ("s_addk_i32", "s_mulk_i32"): self.rd |= self.w
        elif op.startswith("v_"):
            self.kind = "valu"
            if op.startswith("v_cmp"):
                self.w = R(ops[0])
                if op.startswith("v_cmpx"): self.w |= R("exec")
                for o in ops[1:]: self.rd |= R(o)
            elif (op.startswith("v_permlane") and "swap" in op) or op.startswith("v_swap"):
                self.w = R(ops[0]) | R(ops[1]); self.rd = set(self.w)
            elif op.startswith("v_add_co") or op.startswith("v_addc_co") or op.startswith("v_sub_co"):
                self.w = R(ops[0]) | R(ops[1])
                for o in ops[2:]: self.rd |= R(o)
            else:
                self.w = R(ops[0])
                for o in ops[1:]: self.rd |= R(o)
                if op.startswith("v_fmac") or op.startswith("v_dot2c") or op.startswith("v_writelane") or "_dpp" in op:
                    self.rd |= self.w
                if op.startswith("v_cndmask") and len(ops) == 3: self.rd |= R("vcc")
        else:
            raise ValueError("unknown instr: " + self.text)
    def states(self):
        if self.kind in ("label", "waitvm"): return 0
        if self.kind == "nop": return int(self.text.split()[1], 0) + 1
        return 1

def parse(lines):
    out = []
    for l in lines:
        for x in l.split("\n"):
            x = x.strip()
            if x and not x.startswith(";"):
                out.append(Ins(x))
    return out

def parse_wait(text):
    vm = re.search(r"vmcnt\((\d+)\)", text); lg = re.search(r"lgkmcnt\((\d+)\)", text)
    return (int(vm.group(1)) if vm else None, int(lg.group(1)) if lg else None)

class State:
    def __init__(self):
        self.lg = []
        self.vm = []
        self.sm = set()
        self.age = []
    def copy(self):
        s = State(); s.lg = list(self.lg); s.vm = list(self.vm); s.sm = set(self.sm); s.age = list(self.age); return s

COAL = 6
def insert_waits(ins, st=None):
    if st is None: st = State()
    out = []
    for x in ins:
        if x.kind == "mfma":
            st.age = [a + 1 for a in st.age]
        st.age = st.age[len(st.age) - len(st.lg):] if st.lg else []
        needlg = None; needvm = None
        touch = x.rd | x.w
        if x.kind == "waitvm":
            idx = -1
            for i, (d, tag) in enumerate(st.vm):
                if tag in x.need: idx = i
            if idx >= 0:
                n = len(st.vm) - 1 - idx
                n = min(n, 63)
                out.append(Ins(f"s_waitcnt vmcnt({n})"))
                st.vm = st.vm[len(st.vm) - n:] if n else []
            continue
        if x.kind == "wait":
            vm, lg = parse_wait(x.text)
            if vm is not None and len(st.vm) > vm: st.vm = st.vm[len(st.vm) - vm:] if vm else []
            if lg is not None:
                if len(st.lg) > lg: st.lg = st.lg[len(st.lg) - lg:] if lg else []
                if lg == 0: st.sm = set()
            out.append(x); continue
        for i, d in enumerate(st.lg):
            if d & touch: needlg = len(st.lg) - 1 - i
        smemhit = bool(st.sm & touch)
        if smemhit: needlg = 0
        for i, (d, tag) in enumerate(st.vm):
            if d & touch: needvm = len(st.vm) - 1 - i
        if needlg is not None or needvm is not None:
            t = "s_waitcnt"
            if needvm is not None:
                needvm = min(needvm, 63)
                t += f" vmcnt({needvm})"; st.vm = st.vm[len(st.vm) - needvm:] if needvm else []
            pos = len(out)
            if needlg is not None:
                young = sum(1 for a in st.age if a < COAL)
                needlg = min(needlg, 15, young) if len(st.age) == len(st.lg) else min(needlg, 15)
                keep = needlg
                if x.kind == "mfma" and needvm is None:
                    p = len(out); nds = 0
                    while p > 0 and out[p - 1].kind in ("ds", "valu", "dma", "vload", "vstore", "salu"):
                        if out[p - 1].kind == "ds": nds += 1
                        p -= 1
                    if p > 0 and out[p - 1].kind == "mfma" and needlg - nds >= 0:
                        pos = p; needlg -= nds
                t += f" lgkmcnt({needlg})"; st.lg = st.lg[len(st.lg) - keep:] if keep else []
                st.age = st.age[len(st.age) - keep:] if keep else []
                if keep == 0 and needlg == 0: st.sm = set()
            out.insert(pos, Ins(t))
        if x.kind == "ds":
            st.lg.append(set(x.w)); st.age.append(0)
        elif x.kind == "smem":
            st.sm |= set(x.w)
        elif x.kind in ("vload", "vstore", "dma"): st.vm.append((set(x.w), x.tag))
        out.append(x)
    return out

def required(p, c):
    n = 0
    isv = lambda S: {r for r in S if r[0] == "v"}
    iss = lambda S: {r for r in S if r[0] == "s"}
    if p.kind == "mfma":
        big = {4: 8, 8: 12}[p.passes]
        if c.kind == "mfma":
            if p.w & c.srcAB: n = max(n, big)
            if p.w & c.srcC and not (p.w == c.srcC and p.passes == c.passes): n = max(n, big - 2)
            if p.w & c.w and not (p.w == c.srcC and p.passes == c.passes): n = max(n, big - 2)
        elif c.kind in ("valu", "ds", "vload", "vstore", "dma"):
            if p.w & (c.rd | c.w): n = max(n, big)
        if c.kind == "valu" and p.srcC & c.w: n = max(n, {4: 3, 8: 7}[p.passes])
    if p.kind == "valu":
        if c.kind == "mfma" and isv(p.w) & c.rd: n = max(n, 2)
        if c.kind == "mfma" and ("s", 126) in p.w: n = max(n, 4)
        if c.kind == "valu":
            if p.op.replace("_e32", "").replace("_e64", "") in TRANS and p.w & c.rd: n = max(n, 1)
            if c.op.startswith("v_permlane") and isv(p.w) & c.rd: n = max(n, 2)
            if (c.op.startswith("v_readlane") or c.op.startswith("v_readfirstlane")) and isv(p.w) & c.rd: n = max(n, 1)
            if "_dpp" in c.op and isv(p.w) & c.rd: n = max(n, 2)
            if "_dpp" in c.op and ("s", 126) in p.w: n = max(n, 5)
            if iss(p.w) & c.rd: n = max(n, 4 if c.op.startswith("v_readlane") or c.op.startswith("v_writelane") else 2)
            if p.op.startswith("v_dot2") and p.w & (c.rd | c.w) and not (c.op == p.op): n = max(n, 3)
            if p.op.startswith("v_dot2") and c.op == p.op and p.w & c.rd:
                n = max(n, 3)
                toks = [t.strip().split()[0] for t in c.text.split(None, 1)[1].split(",")]
                ab = regset(toks[1]) | regset(toks[2])
                if not (p.w & ab): n = 0 if n == 3 else n
            if "_sdwa" in p.op and p.w & (c.rd | c.w): n = max(n, 1)
        if p.op.startswith("v_dot2") and c.kind in ("ds", "vload", "vstore", "mfma") and p.w & (c.rd | c.w): n = max(n, 3)
        if c.kind in ("vload", "vstore", "dma") and iss(p.w) & c.rd: n = max(n, 5)
        if c.kind == "ctl" and iss(p.w) & c.rd: n = max(n, 5 if False else 0)
    if p.kind == "salu":
        if ("s", 124) in p.w and c.kind == "dma": n = max(n, 1)
    if p.kind == "vstore" and ("x4" in p.op or "x3" in p.op):
        if isv(p.rd) & c.w and c.kind in ("valu", "mfma", "ds", "vload"): n = max(n, 2)
    return n

def pad_hazards(ins, prev=None, report=None):
    hist = list(prev or [])[-24:]
    out = []
    for x in ins:
        if x.kind not in ("label", "waitvm"):
            need = 0; d = 0
            for p in reversed(hist):
                rq = required(p, x)
                if rq - d > need: need = rq - d; why = p
                d += p.states()
                if d >= 20: break
            if need > 0:
                if report is not None: report.append((need, why.text, x.text))
                while need > 0:
                    k = min(need, 16)
                    nop = Ins(f"s_nop {k - 1}")
                    out.append(nop); hist.append(nop); need -= k
        out.append(x); hist.append(x)
        if len(hist) > 48: hist = hist[-24:]
    return out

def finish(lines, st=None, prev=None, report=None):
    ins = parse(lines)
    ins = insert_waits(ins, st)
    ins = pad_hazards(ins, prev, report)
    return ins

def finish_loop(body, st, prev=None, report=None):
    ins = parse(body)
    s1 = st.copy()
    first = insert_waits(ins, s1)
    s2 = s1.copy()
    second = insert_waits(parse(body), s2)
    s3 = st.copy()
    chk = insert_waits(parse([x.text + (f" @tag={x.tag}" if x.tag else "") for x in second]), s3)
    s4 = s3.copy()
    chk2 = insert_waits(parse([x.text + (f" @tag={x.tag}" if x.tag else "") for x in chk]), s4)
    assert len(chk2) == len(chk)
    res = chk
    a = pad_hazards(res, prev, report)
    b = pad_hazards(a, a, report)
    st.lg = s4.lg; st.vm = s4.vm; st.sm = s4.sm; st.age = s4.age
    return b

def texts(ins):
    return [x.text for x in ins]


def vcost(text):
    op = text.split()[0]
    if op.startswith("s_") or op == "WAITVM" or op.endswith(":"): return (1, 0, 0)
    if op.startswith("ds_"): return (0, 1, 1)
    if op.startswith("buffer_") or op.startswith("global_"): return (0, 2, 1)
    if op.replace("_e32", "").replace("_e64", "") in TRANS: return (0, 2, 2)
    return (0, 1, 2)

def gcost(item):
    sc = vc = 0; cl = None
    for x in item.split("\n"):
        a_, b_, c_ = vcost(x)
        if x.endswith(":"): a_ = 0
        sc += a_; vc += b_
        if cl is None: cl = c_
    return sc, vc, cl

def pack(mfmas, streams, fixed=None, verbose=False, slack=8):
    n = len(mfmas)
    gaps = [[] for _ in range(n + 1)]
    used = [[0, 0] for _ in range(n + 1)]
    def put(g, it):
        sc, vc, cl = gcost(it)
        gaps[g + 1].append(it); used[g + 1][0] += sc; used[g + 1][1] += vc
    for g, t in (fixed or []): put(g, t)
    over = 0
    for items, g0, g1 in streams:
        g1 = min(g1, n)
        wt = [max(gcost(x)[1], 0.25) for x in items]
        tot = sum(wt); acc = 0.0
        lastg = g0 - 1; lastcl = -1
        for x, w_ in zip(items, wt):
            sc, vc, cl = gcost(x)
            want = g0 + int(acc / tot * (g1 - g0))
            acc += w_
            lo = max(lastg if cl >= lastcl else lastg + 1, want, g0)
            lo = min(lo, g1 - 1)
            if lo == lastg and cl < lastcl:
                gl = gaps[lastg + 1]
                idx = max(i for i, y in enumerate(gl) if y is lastit)
                gl[idx] = gl[idx] + "\n" + x; lastit = gl[idx]
                used[lastg + 1][0] += sc; used[lastg + 1][1] += vc; over += 1
                continue
            hi = min(max(lo, want + slack), g1 - 1)
            best = None
            for g in range(lo, hi + 1):
                u = used[g + 1]
                if vc: ok = (u[1] + vc <= 2) and (u[0] + sc + u[1] + vc <= 3)
                else: ok = (u[0] + sc + u[1] <= 2) or (u[0] == 0 and sc == 1)
                if ok: best = g; break
            if best is None:
                best = min(range(lo, hi + 1), key=lambda g: (used[g + 1][0] + used[g + 1][1], g))
                over += 1
            put(best, x)
            lastit = x; lastg = best; lastcl = cl
    out = []
    for it in gaps[0]: out += it.split("\n")
    est = 0
    for i, m in enumerate(mfmas):
        out.append(m)
        for it in sorted(gaps[i + 1], key=lambda x: gcost(x)[2]): out += it.split("\n")
        u = used[i + 1]
        est += max(0, max(u[1] - 2, u[0] + u[1] - 3)) * 4
    if verbose: print(f"pack: n={n} overflow {over} est extra clk {est}")
    return out
```

```python
import sys, json
sys.path.insert(0, "gen")
from asmlib import *
import k1, k2, k345, k12
HDR = open("sequential_preLN__compressed_kv_cla__glu_gated_swiglu__prompt.s.ref").read().split("; Override launch")[0] if False else ""
def build(opt, path, kernels=("k12", "k3", "k4", "k5")):
    hdr = ""; body = ""
    if "k1" in kernels:
        hdr += "; @launch kernel=k1_kernel grid=(256,1,1) block=(256,1,1) lds=163840\n"; body += k1.gen_k1("k1_kernel", opt)
    if "k2" in kernels:
        hdr += "; @launch kernel=k2_kernel grid=(256,1,1) block=(256,1,1) lds=163840\n"; body += k2.gen_k2("k2_kernel", opt)
    if "k12" in kernels:
        hdr += "; @launch kernel=k12_kernel grid=(256,1,1) block=(256,1,1) lds=163840\n"; body += k12.gen_k12("k12_kernel", opt)
    if "k3" in kernels:
        hdr += "; @launch kernel=k3_kernel grid=(128,1,1) block=(448,1,1) lds=1024\n"; body += k345.gen_k3("k3_kernel", opt)
    if "k4" in kernels:
        hdr += "; @launch kernel=k4_kernel grid=(256,1,1) block=(256,1,1) lds=163840\n"; body += k345.gen_k4("k4_kernel", opt)
    if "k5" in kernels:
        hdr += "; @launch kernel=k5_kernel grid=(256,1,1) block=(256,1,1) lds=163840\n"; body += k345.gen_k5("k5_kernel", opt)
    body += ".text\n.p2align 2\nL_textend:\n"
    txt = hdr + '.amdgcn_target "amdgcn-amd-amdhsa--gfx950"\n' + body
    open(path, "w").write(txt)
if __name__ == "__main__":
    opt = json.loads(sys.argv[2]) if len(sys.argv) > 2 else {}
    build(opt, sys.argv[1])
```

```python
from common import *
import sched, tail as tailmod
import math, struct

QSCALE = math.log2(math.e) / 16.0
B0 = 6.0
OOB = 0x70000000
SPINMAX = 100000
def f2u(x): return struct.unpack("<I", struct.pack("<f", x))[0]

def gen_k12(name, opt):
    A = Asm()
    ST0 = Stamps2(opt.get("stamps", 0))
    class STX:
        en = ST0.en
        def t(self, i): return [] if (opt.get("tst") and 1 <= i <= 10) else ST0.t(i)
        def c(self, i): return ST0.c(i)
        def write(self, *a): return ST0.write(*a)
    ST = STX()
    rep = []
    NA = opt.get("NA", 19)
    CST = opt.get("cst", ["start", "att", "last", "end"])
    def cs(nm): return ST.c(CST.index(nm)) if nm in CST else []
    VB = opt.get("verbose")
    fin = lambda L, st=None, prev=None: sched.finish(L, st, prev, rep)
    emit = lambda L, st=None, prev=None: A.extend(sched.texts(fin(L, st, prev)))
    def codepf(lab, vt, dst, n):
        if not opt.get("jit", 1): return []
        return [f"s_getpc_b64 s[20:21]\nL_pcx{n}:\ns_add_u32 s20, s20, {lab}-L_pcx{n}\ns_addc_u32 s21, s21, 0",
                f"s_lshl_b32 s38, s3, 13\nv_lshl_add_u32 v{vt}, v0, 7, s38",
                f"v_min_u32 v{vt}, L_textend-{lab}-4, v{vt}",
                f"global_load_dword {dst}, v{vt}, s[20:21]"]
    VX, VW, DX, DW = 2, 6, 10, 12
    def acc(which, hx, ti, hw, tj):
        i = (hx * 2 + hw) * 16 + (ti * 4 + tj if which == 0 else tj * 4 + ti)
        return 16 + 4 * i if i < 60 else 256 + 64 + 4 * (i - 60)
    FX = [256 + 80, 256 + 0]; FW = [256 + 112, 256 + 32]
    XH = 400
    def fx(hx, ti, s_): return FX[hx] + (ti * 2 + s_) * 4
    def fw(bank, tj, s_): return FW[bank] + (tj * 2 + s_) * 4
    SX, SW, SO, SQ, SXI = 8, 12, 16, 40, 44
    SWO = 44
    P = []
    E = P.append
    A("s_cmp_ge_u32 s2, 256")
    A("s_cbranch_scc1 L_end")
    A.extend(ST.t(0) + cs('start'))
    E("s_load_dwordx4 s[52:55], s[0:1], 0")
    E("s_load_dwordx2 s[56:57], s[0:1], 16")
    E("s_load_dwordx4 s[20:23], s[0:1], 24")
    E("s_load_dwordx2 s[100:101], s[0:1], 40")
    E("s_load_dwordx4 s[4:7], s[0:1], 88")
    E("s_getpc_b64 s[30:31]")
    E("L_pc0:")
    E("v_lshrrev_b32 v1, 6, v0")
    E("s_lshr_b32 s25, s2, 3")
    E("s_and_b32 s38, s25, 3")
    E("s_lshl_b32 s38, s38, 15")
    E("v_lshlrev_b32 v16, 7, v0")
    E("v_add_u32 v16, s38, v16")
    E("v_min_u32 v16, L_textend-L_pc0-4, v16")
    if opt.get("codepf", 1): E("global_load_dword a255, v16, s[30:31]")
    E("v_and_b32 v0, 63, v0")
    E("v_readfirstlane_b32 s3, v1")
    E("s_and_b32 s24, s2, 7")
    E("s_and_b32 s26, s25, 1")
    E("s_lshl_b32 s24, s24, 1")
    E("s_add_u32 s24, s24, s26")
    E("s_bfe_u32 s26, s25, 0x10001")
    E("s_lshr_b32 s27, s25, 2")
    E("s_sub_u32 s50, 15, s27")
    E("s_cmp_eq_u32 s26, 0")
    E("s_cselect_b32 s50, s50, s27")
    E("s_lshl_b32 s28, s2, 3")
    E("s_lshl_b32 s29, s3, 1")
    E("s_add_u32 s28, s28, s29")
    E("v_and_b32 v20, 1, v0")
    E("v_add_u32 v20, s28, v20")
    E("v_mul_u32_u24 v21, 896, v20")
    E("v_lshrrev_b32 v22, 1, v0")
    E("v_lshl_add_u32 v21, v22, 4, v21")
    E("s_lshl_b32 s28, s27, 7")
    E("s_lshl_b32 s29, s3, 5")
    E("s_add_u32 s28, s28, s29")
    E("v_lshrrev_b32 v1, 3, v0")
    E("v_add_u32 v1, s28, v1")
    E("v_lshlrev_b32 v1, 11, v1")
    E("v_lshrrev_b32 v16, 4, v0")
    E("v_and_b32 v17, 7, v0")
    E("v_xor_b32 v17, v17, v16")
    E("v_lshlrev_b32 v17, 4, v17")
    for i in range(4):
        E(f"v_xor_b32 v18, {64 if i & 1 else 0}, v17")
        E(f"v_add_u32 v18, v18, v1")
        E(f"v_add_u32 v{VX+i}, {i * (8 * 2048 - 1024)}, v18")
    E("s_lshl_b32 s28, s3, 4")
    E("v_add_u32 v1, s28, v16")
    E("v_lshlrev_b32 v1, 13, v1")
    E("s_lshl_b32 s28, s24, 9")
    E("v_add_u32 v1, s28, v1")
    E("v_and_b32 v17, 15, v0")
    E("v_lshlrev_b32 v18, 1, v16")
    E("v_xor_b32 v17, v17, v18")
    E("v_lshlrev_b32 v17, 4, v17")
    for i in range(4):
        E(f"v_xor_b32 v18, {128 if i & 2 else 0}, v17")
        E(f"v_add_u32 v18, v18, v1")
        E(f"v_add_u32 v{VW+i}, {i * (4 * 8192 - 1024)}, v18")
    E("s_lshl_b32 s32, s3, 12")
    E("s_mov_b32 s33, 0")
    E("s_mov_b32 s34, 0")
    for i in range(28, 32): E(f"v_mov_b32 v{i}, 0")
    E("s_waitcnt lgkmcnt(0)")
    srd(E, SX, 54, 2048 * 1024 * 2)
    E("s_cmp_eq_u32 s26, 0")
    E("s_cselect_b32 s20, s20, s22")
    E("s_cselect_b32 s21, s21, s23")
    srd(E, SW, 20, 1024 * 4096 * 2)
    def dma_setup(n):
        j = (n >> 2) & 1; t = n & 3
        if t in (0, 3):
            hx = 0 if t == 0 else 1
            slot = (2 * j + hx) * 16384
            setup = [f"s_add_u32 m0, s32, {slot}", f"s_add_u32 s35, s33, {j * 128 + hx * 1024 * 2048}"]
            d = [f"buffer_load_dwordx4 v{VX+i}, s[{SX}:{SX+3}], s35 offen offset:{i*1024}{opt.get('xflag', '')} lds @tag=ht{n}" for i in range(4)]
        else:
            hw = t - 1
            slot = 65536 + (2 * j + hw) * 16384
            setup = [f"s_add_u32 m0, s32, {slot}", f"s_add_u32 s35, s34, {j * 64 * 8192 + hw * 256}"]
            d = [f"buffer_load_dwordx4 v{VW+i}, s[{SW}:{SW+3}], s35 offen offset:{i*1024}{opt.get('wflag', ' nt')} lds @tag=ht{n}" for i in range(4)]
        return setup, d
    def reads(n):
        j = (n >> 2) & 1; t = n & 3
        out = []
        if t in (0, 3):
            hx = 0 if t == 0 else 1
            slot = (2 * j + hx) * 16384
            for ti in range(4):
                for s_ in range(2):
                    out.append(f"ds_read_b128 {r(fx(hx, ti, s_), 4)}, v{DX+s_} offset:{slot + ti * 2048}")
        else:
            hw = t - 1
            bank = hw ^ j
            slot = (2 * j + hw) * 16384
            for tj in range(4):
                for s_ in range(2):
                    for h2 in range(2):
                        out.append(f"ds_read_b64_tr_b16 {r(fw(bank, tj, s_) + 2 * h2, 2)}, v{DW+tj} offset:{slot + s_ * 8192 + h2 * 1024}")
        return out
    def dma_block(n):
        su, d = dma_setup(n)
        return su + d
    srd(E, SXI, 52, 2048 * 448 * 2)
    E(f"buffer_load_dwordx4 v[24:27], v21, s[{SXI}:{SXI+3}], 0 offen")
    E("s_mov_b32 exec_hi, 0xffff")
    E(f"buffer_load_dwordx4 v[28:31], v21, s[{SXI}:{SXI+3}], 0 offen offset:512")
    E("s_mov_b32 exec_hi, -1")
    for n in range(2): P.extend(dma_block(n))
    srd(E, SO, 6, 160 << 20)
    srd(E, SQ, 56, 448 * 4096 * 2)
    srd(E, SWO, 100, 4096 * 448 * 2)
    E("s_lshr_b32 s38, s25, 1"); E("s_lshl_b32 s38, s38, 2"); E("s_add_u32 s38, s38, s3")
    E("s_mul_i32 s30, s38, 57344"); E("s_lshl_b32 s31, s24, 9"); E("s_add_u32 s30, s30, s31")
    E("s_add_u32 s56, s56, s30"); E("s_addc_u32 s57, s57, 0")
    E("s_mul_i32 s30, s24, 229376"); E("s_lshl_b32 s31, s38, 7"); E("s_add_u32 s30, s30, s31")
    E("s_add_u32 s100, s100, s30"); E("s_addc_u32 s101, s101, 0")
    E("v_and_b32 v62, 3, v0")
    E("v_lshlrev_b32 v60, 7, v62")
    E("v_add_co_u32 v60, vcc, s56, v60"); E("v_mov_b32 v61, s57"); E("v_addc_co_u32 v61, vcc, 0, v61, vcc")
    E("v_mul_u32_u24 v62, 57344, v62")
    E("v_add_co_u32 v62, vcc, s100, v62"); E("v_mov_b32 v63, s101"); E("v_addc_co_u32 v63, vcc, 0, v63, vcc")
    E("s_mov_b64 s[30:31], 0xf0")
    E("v_cndmask_b32 v60, v60, v62, s[30:31]"); E("v_cndmask_b32 v61, v61, v63, s[30:31]")
    E("s_load_dwordx4 s[52:55], s[0:1], 56")
    E("s_load_dwordx2 s[56:57], s[0:1], 72")
    W = []
    F_ = W.append
    F_("v_lshrrev_b32 v23, 4, v20")
    F_("v_mul_u32_u24 v23, 14336, v23")
    F_("v_lshl_add_u32 v23, v22, 8, v23")
    F_("v_and_b32 v20, 15, v20")
    F_("v_lshl_add_u32 v23, v20, 4, v23")
    F_("s_lshr_b32 s28, s3, 1")
    F_("s_and_b32 s29, s3, 1")
    F_("s_lshl_b32 s30, s28, 13")
    F_("v_and_b32 v1, 15, v0")
    F_("v_lshlrev_b32 v1, 7, v1")
    F_("v_add_u32 v1, s30, v1")
    F_("v_bfe_u32 v18, v0, 1, 3")
    F_("v_xor_b32 v17, v16, v18")
    F_("v_lshlrev_b32 v17, 4, v17")
    F_(f"v_add_u32 v{DX}, v17, v1")
    F_(f"v_xor_b32 v{DX+1}, 64, v{DX}")
    F_("v_lshlrev_b32 v1, 3, v16")
    F_("v_bfe_u32 v17, v0, 2, 2")
    F_("v_add_u32 v1, v1, v17")
    F_("v_lshlrev_b32 v1, 8, v1")
    F_("v_bfe_u32 v18, v0, 4, 1")
    F_("v_lshlrev_b32 v18, 2, v18")
    F_("v_or_b32 v17, v17, v18")
    F_("v_lshlrev_b32 v17, 1, v17")
    F_("v_bfe_u32 v19, v0, 1, 1")
    F_("s_lshl_b32 s30, s29, 3")
    F_("v_add_u32 v19, s30, v19")
    F_("v_xor_b32 v19, v19, v17")
    F_("v_lshlrev_b32 v19, 4, v19")
    F_("v_and_b32 v18, 1, v0")
    F_("v_lshlrev_b32 v18, 3, v18")
    F_("v_add3_u32 v1, v1, v18, v19")
    F_(f"v_add_u32 v{DW}, 0x10000, v1")
    for tj in range(1, 4): F_(f"v_xor_b32 v{DW+tj}, {tj << 5}, v{DW}")
    F_("v_lshlrev_b32 v1, 4, v0")
    F_("s_lshl_b32 s58, s24, 20\ns_lshl_b32 s38, s27, 16\ns_add_u32 s58, s58, s38\ns_lshl_b32 s38, s28, 15\ns_add_u32 s58, s58, s38")
    F_("s_add_u32 s38, s26, 11\ns_lshl_b32 s38, s29, s38\ns_add_u32 s58, s58, s38\ns_lshl_b32 s38, s26, 24\ns_add_u32 s58, s58, s38")
    F_(f"s_cmp_eq_u32 s26, 0\ns_mov_b32 s59, 16384\ns_mov_b32 s51, {(1024 - 16384) & 0xffffffff}\ns_mov_b32 s39, 8192\n"
       f"s_cselect_b32 s59, 1024, s59\ns_cselect_b32 s51, {8192 - 1024}, s51\ns_cselect_b32 s39, 4096, s39")
    F_(f"s_lshl_b32 s49, s24, 3\ns_add_u32 s49, s49, s27\ns_lshl_b32 s49, s49, 16\ns_lshl_b32 s38, s3, 14\ns_add_u32 s49, s49, s38\ns_add_u32 s49, s49, {WS_Q}")
    F_(f"s_lshl_b32 s48, s50, 3\ns_lshl_b32 s38, s3, 1\ns_add_u32 s48, s48, s38\ns_mul_i32 s48, s48, 14336\ns_add_u32 s48, s48, {WS_XN}")
    F_(f"s_lshl_b32 s22, s24, 4\ns_add_u32 s22, s22, s50\ns_lshl_b32 s22, s22, 8\ns_add_u32 s22, s22, {WS_FLAG}")
    W += [f"v_mov_b32 v{i}, 0" for i in range(64, 68)]
    F_("s_lshl_b32 s38, s2, 2\ns_add_u32 s38, s38, s3\ns_mul_i32 s38, s38, 6\ns_sub_u32 s38, s38, 8")
    F_("v_add_u32 v56, s38, v0")
    F_("v_min_u32 v56, 5375, v56")
    F_("v_lshrrev_b32 v57, 6, v56")
    F_("v_and_b32 v56, 63, v56")
    F_("v_lshlrev_b32 v56, 7, v56")
    F_("s_waitcnt lgkmcnt(0)")
    F_("v_mov_b32 v58, s52\nv_mov_b32 v59, s53\nv_mov_b32 v62, s54\nv_mov_b32 v63, s55")
    F_("v_cmp_le_u32 vcc, 28, v57\nv_subrev_u32 v54, 28, v57\ns_nop 0\nv_cndmask_b32 v58, v58, v62, vcc\nv_cndmask_b32 v59, v59, v63, vcc\nv_cndmask_b32 v57, v57, v54, vcc")
    F_("v_mov_b32 v62, s56\nv_mov_b32 v63, s57")
    F_("v_cmp_le_u32 vcc, 28, v57\nv_subrev_u32 v54, 28, v57\ns_nop 0\nv_cndmask_b32 v58, v58, v62, vcc\nv_cndmask_b32 v59, v59, v63, vcc\nv_cndmask_b32 v57, v57, v54, vcc")
    F_("v_mul_u32_u24 v57, 57344, v57")
    F_("v_add_u32 v56, v56, v57")
    F_("v_add_co_u32 v58, vcc, v58, v56\ns_nop 1\nv_addc_co_u32 v59, vcc, 0, v59, vcc")
    F_("s_mov_b64 s[30:31], 0x3f00\nv_cndmask_b32 v60, v60, v58, s[30:31]\nv_cndmask_b32 v61, v61, v59, s[30:31]")
    F_("s_mov_b32 s52, 8192\ns_mov_b32 s53, 0")
    rest = []
    for n in range(2, 4):
        su, d = dma_setup(n)
        rest += ["\n".join(su + [d[0]])] + d[1:]
    k = 0
    for i, z in enumerate(W):
        E(z)
        if i % 6 == 3 and k < len(rest):
            E(rest[k]); k += 1
    while k < len(rest): E(rest[k]); k += 1
    P += ST.t(1)
    for i in range(8):
        E(f"v_lshlrev_b32 v{32+2*i}, 16, v{24+i}")
        E(f"v_and_b32 v{33+2*i}, 0xffff0000, v{24+i}")
    def reduce32(x, t):
        for rr in (2, 4, 8):
            E(f"v_add_f32_dpp v{x}, v{x}, v{x} row_ror:{rr} row_mask:0xf bank_mask:0xf")
        for sw in ("v_permlane16_swap_b32", "v_permlane32_swap_b32"):
            E(f"v_mov_b32 v{t}, v{x}"); E(f"{sw} v{x}, v{t}"); E(f"v_add_f32 v{x}, v{x}, v{t}")
    E("v_pk_add_f32 v[48:49], v[32:33], v[34:35]")
    for i in range(2, 8): E(f"v_pk_add_f32 v[48:49], v[48:49], v[{32+2*i}:{33+2*i}]")
    E("v_add_f32 v48, v48, v49")
    reduce32(48, 50)
    E(f"v_mul_f32 v48, {hex(f2u(-1.0/448))}, v48")
    E("v_mov_b32 v49, v48")
    for i in range(4): E(f"v_pk_add_f32 v[{32+2*i}:{33+2*i}], v[{32+2*i}:{33+2*i}], v[48:49]")
    E("s_mov_b32 exec_hi, 0xffff")
    for i in range(4, 8): E(f"v_pk_add_f32 v[{32+2*i}:{33+2*i}], v[{32+2*i}:{33+2*i}], v[48:49]")
    E("s_mov_b32 exec_hi, -1")
    E("v_pk_mul_f32 v[50:51], v[32:33], v[32:33]")
    for i in range(1, 8): E(f"v_pk_fma_f32 v[50:51], v[{32+2*i}:{33+2*i}], v[{32+2*i}:{33+2*i}], v[50:51]")
    E("v_add_f32 v50, v50, v51")
    reduce32(50, 52)
    E(f"v_mov_b32 v51, {hex(f2u(1e-5))}")
    E(f"v_fmac_f32 v51, {hex(f2u(1.0/448))}, v50")
    E("v_rsq_f32 v50, v51")
    E(f"v_mul_f32 v50, {hex(f2u(QSCALE))}, v50")
    E("v_mov_b32 v51, v50")
    for i in range(8): E(f"v_pk_mul_f32 v[{32+2*i}:{33+2*i}], v[{32+2*i}:{33+2*i}], v[50:51]")
    for i in range(8): E(f"v_cvt_pk_bf16_f32 v{24+i}, v{32+2*i}, v{33+2*i}")
    E("WAITVM @need=ht0,ht1")
    E("s_barrier")
    P.extend(reads(0)); P.extend(reads(1))
    E(f"s_mov_b32 s38, {WS_XN}")
    E(f"buffer_store_dwordx4 v[24:27], v23, s[{SO}:{SO+3}], s38 offen sc1")
    E(f"s_mov_b32 s38, {WS_XN + 8192}")
    E("s_mov_b32 exec_hi, 0xffff")
    E(f"buffer_store_dwordx4 v[28:31], v23, s[{SO}:{SO+3}], s38 offen sc1")
    E("s_mov_b32 exec_hi, -1")
    E("s_lshl_b32 s38, s2, 9")
    E(f"s_add_u32 s38, s38, {WS_FLAG}")
    E("s_cmp_eq_u32 s3, 0")
    E(f"s_cselect_b32 s38, s38, {OOB}")
    E("s_mov_b32 exec_hi, 0")
    E(f"buffer_store_dwordx4 v[64:67], v1, s[{SO}:{SO+3}], s38 offen sc1")
    E("s_mov_b32 exec_hi, -1")
    E("v_mov_b32 v0, v60"); E("v_mov_b32 v1, v61")
    P += ST.t(2) + cs('first')
    E("s_and_b32 s23, s25, 3")
    E("s_add_u32 s23, s23, 1")
    E("s_mov_b32 s36, 0")
    E("s_cmp_eq_u32 s26, 0")
    stP = sched.State()
    pro = fin(P, stP)
    A.extend(sched.texts(pro))
    A("s_cbranch_scc0 L_firstV")

    def phase_mfmas(which, g, first=False):
        j = (g >> 2) & 1; p = g & 3
        hx = 0 if p < 2 else 1
        hw = [0, 1, 1, 0][p]
        bank = hw ^ j
        m = []
        for ti in range(4):
            for tj in range(4):
                for s_ in range(2):
                    c_ = acc(which, hx, ti, hw, tj); X = fx(hx, ti, s_); W_ = fw(bank, tj, s_)
                    ci = "0" if (first and s_ == 0) else None
                    m.append(mfma16(c_, W_, X, ci) if which == 0 else mfma16(c_, X, W_, ci))
        return m
    PF = ["global_load_dword a254, v[0:1], off", "v_lshl_add_u64 v[0:1], s[52:53], 0, v[0:1]"] if opt.get("wpf", 1) else []
    def drain_quad(hx, hw):
        cv = []; stv = []; src = []
        so = 37 if hx == 0 else 40
        for n in range(8):
            idx = (hx * 2 + hw) * 16 + 2 * n
            if idx >= 60:
                t0 = 84 + 16 * (n & 1); t1 = t0 + 8
                cv += [f"v_accvgpr_read_b32 v{t0+i}, a{64 + 4 * (idx - 60) + i}" for i in range(4)]
                cv += [f"v_accvgpr_read_b32 v{t1+i}, a{64 + 4 * (idx - 60) + 4 + i}" for i in range(4)]
            else:
                t0 = 16 + 4 * idx; t1 = t0 + 4
            cv += [f"v_cvt_pk_bf16_f32 v{t0}, v{t0}, v{t0+1}", f"v_cvt_pk_bf16_f32 v{t0+1}, v{t0+2}, v{t0+3}",
                   f"v_cvt_pk_bf16_f32 v{t0+2}, v{t1}, v{t1+1}", f"v_cvt_pk_bf16_f32 v{t0+3}, v{t1+2}, v{t1+3}"]
            if n == 0:
                stv.append(f"s_mul_i32 s{so}, s13, {hw}")
                stv.append(f"s_add_u32 s{so}, s{so}, s58")
                if hx: stv.append(f"s_add_u32 s{so}, s{so}, {16 * 32768}")
            elif n & 1: stv.append(f"s_add_u32 s{so}, s{so}, s59")
            else: stv.append(f"s_add_u32 s{so}, s{so}, s14")
            src.append(t0)
            d0 = t0 if hx == 0 else HOLD + (hw * 8 + n) * 4
            stv.append(f"buffer_store_dwordx4 {r(d0, 4)}, v1, s[{SO}:{SO+3}], s{so} offen sc1 @tag=kv{hx}")
        return cv, stv, src
    HOLD = 256 + 128
    cv00, st00, _ = drain_quad(0, 0); cv01, st01, _ = drain_quad(0, 1); cv11, st11, src11 = drain_quad(1, 1); cv10, st10, src10 = drain_quad(1, 0)
    hold_mv = [f"v_accvgpr_write_b32 a{HOLD - 256 + (hw * 8 + n) * 4 + i}, v{(src11 if hw else src10)[n] + i}" for hw in (1, 0) for n in (6, 7, 0, 1, 2, 3, 4, 5) for i in range(4)]
    QV = 2; VF = 3; QD = 4
    REGION = [131072, 65536, 0, 98304, 32768]
    def region(sb): return REGION[sb % 5]
    QF = [FX[0], FW[0]]
    QACC = [16, 48]
    def q_dma(sb, u):
        cb, kh = sb >> 1, sb & 1
        ks = kh * 7 + u
        return [f"s_add_u32 m0, s31, {region(sb) + u * 4096}", f"s_mov_b32 s35, {ks * 32 * 8192 + cb * 128}",
                f"buffer_load_dwordx4 v{QV}, s[{SQ}:{SQ+3}], s35 offen lds @tag=sb{sb}"]
    def q_dmas(sb, us): return sum((q_dma(sb, u) for u in us), [])
    def q_reads(sb, dtl):
        n = sb * 4 + dtl
        return [f"ds_read_b64_tr_b16 {r(QF[n & 1] + 4 * u + 2 * h2, 2)}, v{QD+dtl} offset:{u * 4096 + h2 * 512}" for u in range(7) for h2 in range(2)]
    q_setup = ["s_mov_b32 s13, s39", "s_mov_b32 s14, s51", "s_lshl_b32 s31, s3, 10", "s_lshl_b32 s30, s3, 3", "v_lshrrev_b32 v7, 3, v0", "v_add_u32 v7, s30, v7", "v_lshlrev_b32 v7, 13, v7",
               "s_lshl_b32 s30, s24, 9", "v_add_u32 v7, s30, v7", "v_bfe_u32 v8, v0, 4, 1", "s_lshl_b32 s30, s29, 1", "v_or_b32 v8, s30, v8",
               "v_lshlrev_b32 v8, 1, v8", "v_and_b32 v9, 7, v0", "v_xor_b32 v8, v8, v9", f"v_lshl_add_u32 v{QV}, v8, 4, v7"]
    q_setup2 = ["v_lshrrev_b32 v8, 4, v0", "v_lshlrev_b32 v8, 3, v8", "v_bfe_u32 v9, v0, 2, 2", "v_add_u32 v8, v8, v9", "v_lshlrev_b32 v8, 7, v8",
                "v_bfe_u32 v9, v0, 3, 2", "v_lshlrev_b32 v9, 5, v9", "v_add_u32 v8, v8, v9", "v_and_b32 v9, 3, v0", "v_lshl_add_u32 v8, v9, 3, v8",
                f"v_add_u32 v{QD}, {region(0)}, v8"] + [f"v_xor_b32 v{QD+d}, {d << 5}, v{QD}" for d in range(1, 4)] + \
               ["s_lshl_b32 s30, s3, 6", "v_add_u32 v8, s30, v0", "v_lshrrev_b32 v9, 4, v8", "v_min_u32 v9, 1, v9", "v_lshlrev_b32 v9, 30, v9",
                f"v_lshl_add_u32 v{VF}, v8, 8, v9", "v_mov_b32 v9, 1", "s_and_b32 s15, s22, 0xfffff000"]
    adv2 = ["s_add_u32 s33, s33, 256", f"s_add_u32 s34, s34, {128 * 8192}"]
    def steady(which, g, extra=None):
        m = phase_mfmas(which, g)
        su, d = dma_setup(g + 8)
        f = [(15, su[0]), (16, su[1])] + [(17 + 4 * i, d[i]) for i in range(4)]
        f += spread(reads(g + 2), 0, 16)
        return m, f
    for which in (0, 1):
        sfx = "K" if which == 0 else "V"
        lab = "L_loop" + sfx
        A.label("L_first" + sfx)
        st = stP.copy()
        m = []; fixed = []; vm = []; rd = []
        for g in range(8):
            o = 32 * g
            m += phase_mfmas(which, g, first=(g < 4))
            fixed += [(o + 5, f"WAITVM @need=ht{g+2}\ns_waitcnt lgkmcnt(0)\ns_barrier")]
            hts = [4 + 2 * g, 5 + 2 * g] if g < 4 else [g + 8]
            it = []
            for n in hts:
                if n == 8: it += adv2
                it += dma_block(n)
            vm.append((it, o, o + 30))
            rd.append((reads(g + 2), o + 6, o + 25))
        fixed += [(254, "WAITVM @need=ht10,ht11\ns_waitcnt lgkmcnt(0)\ns_barrier"), (255, "\n".join(adv2))]
        if PF: fixed += [(200, PF[0]), (201, PF[1])]
        for nm in CST:
            if nm.startswith('f') and nm[1:].isdigit(): fixed += [(32 * int(nm[1:]) + 1, x) for x in cs(nm)]
        L = sched.pack(m, vm + rd, fixed, VB)
        fi = fin(L, st, pro)
        A.extend(sched.texts(fi))
        A.extend(cs('roll'))
        A(".p2align 6")
        A.label(lab)
        body = []
        for g in range(8):
            m, f = steady(which, g)
            if g == 0 and PF: f += [(18, PF[0]), (19, PF[1])]
            if g == 7:
                f += [(26, adv2[0]), (27, adv2[1]), (28, "s_add_u32 s36, s36, 1"), (31, "s_cmp_eq_u32 s36, s23")]
            if g & 1: f += [(30, "s_waitcnt vmcnt(16) lgkmcnt(0)"), (30, "s_barrier")]
            else: f += [(30, "s_waitcnt lgkmcnt(0)")]
            body += sched.pack(m, [], f)
        st = sched.State()
        lp = sched.finish_loop(body, st, prev=fi, report=rep)
        A.extend(sched.texts(lp))
        A(f"s_cbranch_scc0 {lab}")
        A("s_cmp_eq_u32 s36, 5")
        A(f"s_cbranch_scc0 L_hook")
        st = sched.State()
        st.vm = [(set(), f"ht{n}") for n in range(52, 56) for _ in range(4)]
        L = ST.t(3) + cs('peel')
        xl = [f"s_add_u32 s38, s48, {tt * 14336 + ks * 1024}\n"
              f"buffer_load_dwordx4 {r(XH + (tt * 14 + ks) * 4, 4)}, v1, s[{SO}:{SO+3}], s38 offen sc1"
              for ks in range(14) for tt in range(2)]
        m = []; fixed = []; rd = []
        for g in range(48, 64):
            o = (g - 48) * 32
            if g < 56:
                mm, f = steady(which, g)
                m += mm; fixed += [(o + a_, b_) for a_, b_ in f]
            else:
                m += phase_mfmas(which, g)
                if g + 2 < 64: rd.append((reads(g + 2), o, o + 22))
            if g & 1 and g < 61: fixed += [(o + 30, f"WAITVM @need=ht{g+3},ht{g+4}\ns_waitcnt lgkmcnt(0)\ns_barrier")]
            elif g == 61: fixed += [(o + 30, "s_waitcnt lgkmcnt(0)\ns_barrier")]
        if PF: fixed += [(18, PF[0])]
        fixed += [(19, "v_mbcnt_lo_u32_b32 v0, -1, 0"), (20, "v_mbcnt_hi_u32_b32 v0, -1, v0"), (22, "v_lshlrev_b32 v1, 2, v0"),
                  (23, "global_load_dword v0, v1, s[4:5] sc1 @tag=poll")]
        fixed += [(129, f"v_cmp_ne_u32 vcc, 0x01010101, v0"), (131, f"s_cbranch_vccnz {lab}_spin\n{lab}_spun:"),
                  (133, "v_lshrrev_b32 v0, 2, v1"), (135, "v_lshlrev_b32 v1, 2, v1")]
        for nm in CST:
            if nm.startswith('p') and nm[1:].isdigit(): fixed += [(32 * (int(nm[1:]) - 48) + 1, x) for x in cs(nm)]
        o = 256
        fixed += [(255, x) for x in cs('peel2')]
        fixed += [(o + 7 * 32 + 17, "WAITVM @need=sb0\ns_barrier")]
        vm = [(q_dmas(0, range(7)), o + 12, o + 40), (q_dmas(1, range(4)), o + 40, o + 62),
              (q_dmas(1, range(4, 7)), o + 64, o + 96), (q_dmas(2, range(4)), o + 96, o + 128),
              (q_dmas(2, range(4, 7)), o + 128, o + 160), (q_dmas(3, range(4)), o + 160, o + 192),
              (q_dmas(3, range(4, 7)), o + 192, o + 224), (q_dmas(4, range(7)), o + 224, o + 255)]
        streams = vm + [(xl[:12], 138, 256), (xl[12:], o + 64, o + 190), (st00, o + 190, o + 254)] + rd
        streams.append((q_setup, o + 1, o + 11))
        streams.append((q_setup2, o + 130, o + 160))
        streams.append((codepf("L_q", 4, "v5", 10 + which), o + 44, o + 62))
        streams.append((q_reads(0, 0), o + 7 * 32 + 18, o + 256))
        streams.append((cv00, o + 163, o + 190))
        streams.append((cv01, o + 195, o + 226))
        streams.append((cv11[:24], o + 227, o + 256))
        L += sched.pack(m, streams, fixed, VB)
        pe = fin(L, st, lp)
        A.extend(sched.texts(pe))
        if which == 0: A("s_branch L_q")
        stq = st
    NEGM = 4; TMP = 12; ORA = 24
    S0 = 32; P0 = 64; LS = 96; ONES = 104; O0 = 128
    QR = 256; FR = 320; PARK = 256 + 192; PARTL = 256 + 128
    WV = 112; WD = 119; AVF = 25; AV1 = 26
    def S(kt, tt): return S0 + (kt * 2 + tt) * 4
    def Pf(b, ks, tt): return P0 + 16 * b + (ks * 2 + tt) * 4
    def O(dt, tt): return O0 + (dt * 2 + tt) * 4
    def Q(tt, ds): return QR + (tt * 8 + ds) * 4
    def F(bank, i): return FR + bank * 32 + i * 4
    SWS = SO
    def dma4(kind, slot, half, tag=""):
        sreg = 30 if kind == "K" else 31
        base = (0 if kind == "K" else 65536) + slot * 32768 + half * 4096
        su = [f"s_add_u32 m0, s32, {base}", f"s_add_u32 s35, s{sreg}, {half * 4096}"]
        d = [f"buffer_load_dwordx4 v1, s[{SWS}:{SWS+3}], s35 offen offset:{i*1024} sc1 lds" + (f" @tag={tag}" if tag else "") for i in range(4)]
        return su, d
    def dma_adv(kind):
        sreg = 30 if kind == "K" else 31; cnt = 33 if kind == "K" else 34; t = 20 if kind == "K" else 21
        return [f"s_sub_u32 s{cnt}, s{cnt}, 1", f"s_cmp_eq_u32 s{cnt}, s28\ns_cselect_b32 s{t}, s23, 0x8000",
                f"s_cmp_eq_u32 s{cnt}, s8\ns_cselect_b32 s{t}, s9, s{t}", f"s_add_u32 s{sreg}, s{sreg}, s{t}",
                f"s_cmp_gt_i32 s{cnt}, 0\ns_cselect_b32 s{sreg}, s{sreg}, {OOB}"]
    def dma_blk(kind, slot, tag=""):
        out = []
        for half in range(2):
            su, d = dma4(kind, slot, half, tag); out += su + d
        return out
    def signal(dw, sdata=None):
        return f"buffer_atomic_add v{{d}}, v{{f}}, s[{SWS}:{SWS+3}], s22 offen offset:{4*dw} sc1"
    A.label("L_q")
    L = ST.t(4) + cs('q')
    ng = 32
    def q_pack(cb):
        out = []
        for pr in range(2):
            for tt in range(2):
                a0 = QACC[cb & 1] + ((2 * pr) * 2 + tt) * 4; a1 = QACC[cb & 1] + ((2 * pr + 1) * 2 + tt) * 4
                q_ = Q(tt, cb * 2 + pr) - 256
                out += [f"v_cvt_pk_bf16_f32 v{a0}, v{a0}, v{a0+1}", f"v_cvt_pk_bf16_f32 v{a0+1}, v{a0+2}, v{a0+3}",
                        f"v_cvt_pk_bf16_f32 v{a0+2}, v{a1}, v{a1+1}", f"v_cvt_pk_bf16_f32 v{a0+3}, v{a1+2}, v{a1+3}"]
                out += [f"v_accvgpr_write_b32 a{q_+i}, v{a0+i}" for i in range(4)]
        return out
    m = []; fixed = []; rstreams = []
    for n in range(ng):
        sb, dtl = n >> 2, n & 3
        cb, kh = sb >> 1, sb & 1
        for tt in range(2):
            for u in range(7):
                c_ = QACC[cb & 1] + (dtl * 2 + tt) * 4
                m.append(mfma16(c_, QF[n & 1] + 4 * u, XH + (tt * 14 + kh * 7 + u) * 4, "0" if (kh == 0 and u == 0) else None))
        if n + 1 < ng:
            sb2, d2 = (n + 1) >> 2, (n + 1) & 3
            g0 = 14 * n - 1
            if d2 == 0:
                need = f"sb{sb2}" + (",kv0" if sb2 == opt.get("sigb", 5) else "")
                fixed += [(g0, f"WAITVM @need={need}"), (g0, "s_barrier")]
            if sb2 > 0:
                delta = (region(sb2) - region(sb2 - 1)) & 0xffffffff
                fixed += [(g0 - 1, f"v_add_u32 v{QD+d2}, {hex(delta)}, v{QD+d2}")]
            rstreams.append((q_reads(sb2, d2), 14 * n, 14 * n + 12))
    G = lambda n: 14 * n
    vm = []
    for sb in (2, 3, 4): vm.append((q_dmas(sb + 3, range(7)), G(4 * sb), G(4 * sb + 3) - 2))
    SIGB = opt.get("sigb", 5)
    gs = G(4 * SIGB - 1)
    fixed += [(gs, f"buffer_atomic_add v9, v{VF}, s[{SWS}:{SWS+3}], s15 offen sc1")]
    C_ = 9
    asu = [f"s_lshl_b32 s32, s3, 13", "s_lshl_b32 s30, s24, 20", "s_add_u32 s30, s30, s32", f"s_add_u32 s31, s30, {WS_V}",
           "s_lshl_b32 s21, s27, 1",
           "s_add_u32 s29, s21, 2",
           "s_sub_u32 s20, 32, s21", f"s_min_u32 s33, s20, {NA}",
           "s_sub_u32 s25, s20, s33",
           f"s_sub_i32 s20, {C_}, s29", "s_max_i32 s20, s20, 0", "s_min_u32 s20, s20, s25",
           "s_sub_u32 s21, s25, s20",
           "s_sub_u32 s28, s33, s29", "s_add_u32 s23, s20, 1", "s_mov_b32 s8, 2", "s_add_u32 s9, s21, 1",
           "s_sub_u32 s11, s28, 1",
           f"s_cmp_eq_u32 s26, 0\ns_cselect_b32 s28, s28, s21", f"s_cmp_eq_u32 s26, 0\ns_cselect_b32 s23, s23, s11",
           f"s_cmp_eq_u32 s26, 0\ns_cselect_b32 s8, s8, -1",
           "s_lshl_b32 s23, s23, 15", "s_lshl_b32 s9, s9, 15",
           "s_add_u32 s34, s29, s25",
           f"s_cmp_eq_u32 s26, 0\ns_cselect_b32 s29, s33, s29", f"s_cmp_eq_u32 s26, 0\ns_cselect_b32 s33, s33, s34", "s_mov_b32 s34, s33",
           "s_mov_b32 s10, 0x7fff", "s_mov_b32 s11, 0",
           "s_add_u32 s20, s6, s22\ns_addc_u32 s21, s7, 0"]
    fixed += [(G(19) + 1 + 2 * i, x) for i, x in enumerate(asu)]
    gp = G(opt.get("pollg", 28))
    fixed += [(gp - 30, "s_load_dword s52, s[20:21], 0 glc")]
    fixed += [(gp - 2, "s_waitcnt lgkmcnt(0)"), (gp - 1, "s_cmp_ge_u32 s52, 16\ns_cbranch_scc0 L_spin1\nL_spun1:")]
    vm.append((dma_blk("K", 1, "k0") + dma_adv("K") + dma_blk("V", 1, "v0") + dma_adv("V"), gp + 1, G(32)))
    if opt.get("qst"):
        for k_, g_ in zip((8, 9, 1), opt["qst"]): fixed += [(G(g_) + 2, x) for x in ST.t(k_)]
    for nm in CST:
        if nm.startswith("g"): fixed += [(G(int(nm[1:])) + 2, x) for x in cs(nm)]
    if opt.get("no_st01"): st01 = [x for x in st01 if not x.startswith("buffer")]
    streams = vm + [(st01, 4, G(opt.get("st01end", 12)))] + rstreams
    streams.append((cv11[24:] + cv10, 4, G(8)))
    for cb in range(3): streams.append((q_pack(cb), G(8 * cb + 8) + 3, G(8 * cb + 16) - 2))
    L += sched.pack(m, streams, fixed, VB)
    L += q_pack(3)
    L += ST.t(5) + cs('qend')
    def kreads(slot, kt, bank):
        return [f"ds_read_b128 {r(F(bank, ds), 4)}, v1 offset:{slot * 32768 + (kt * 8 + ds) * 1024}" for ds in range(8)]
    def vreads(slot, grp, bank):
        return [f"ds_read_b128 {r(F(bank, d * 2 + ks), 4)}, v2 offset:{slot * 32768 + (ks * 16 + 4 * grp + d) * 1024}"
                for d in range(4) for ks in range(2)]
    def qk_group(kt, bank, cinit):
        m = []
        for tt in range(2):
            for ds in range(8):
                ci = None if ds else ("0" if cinit == 0 else NEGM + 4 * tt)
                m.append(mfma16(S(kt, tt), F(bank, ds), Q(tt, ds), ci))
        return m
    def pv_group(grp, bank, pb):
        return [mfma16(O(4 * grp + d, tt), F(bank, d * 2 + ks), Pf(pb, ks, tt)) for d in range(4) for tt in range(2) for ks in range(2)]
    def l_mfmas(pb):
        return [mfma16(LS + 4 * tt, ONES, Pf(pb, ks, tt)) for tt in range(2) for ks in range(2)]
    def softmax(pb):
        out = []; n = 0
        for kt in range(4):
            for tt in range(2):
                t = TMP + 4 * (n % 3); s_ = S(kt, tt); d = Pf(pb, kt >> 1, tt) + 2 * (kt & 1)
                out += [f"v_exp_f32 v{t+i}, v{s_+i}" for i in range(4)]
                out += [f"v_cvt_pk_bf16_f32 v{d}, v{t}, v{t+1}", f"v_cvt_pk_bf16_f32 v{d+1}, v{t+2}, v{t+3}"]
                out += [f"v_or_b32 v{ORA}, v{d}, v{d+1}" if n == 0 else f"v_or3_b32 v{ORA}, v{ORA}, v{d}, v{d+1}"]
                n += 1
        return out
    def smtile(pb, n): return softmax(pb)[7 * n:7 * n + 7]
    def mask_code(base):
        L = [f"s_sub_u32 s38, {base}, s29", "s_lshl_b32 s38, s38, 6", "s_lshl_b32 s39, s3, 5", "s_sub_u32 s38, s39, s38",
             "v_add_u32 v12, s38, v3", "v_cvt_f32_i32 v12, v12", "v_add_f32 v12, 0.5, v12", f"v_mul_f32 v12, {hex(f2u(1e30))}, v12"]
        n = 0
        for dd in range(-1, 4):
            for rr in range(4):
                c = rr + 16 * dd
                t = 13 + (n % 4); n += 1
                L.append(f"v_add_f32 v{t}, {hex(f2u(-c * 1e30))}, v12")
                for tt in range(2):
                    kt = dd + tt
                    if 0 <= kt < 4: L.append(f"v_min_f32 v{S(kt, tt)+rr}, v{S(kt, tt)+rr}, v{t}")
        return L
    def rescale(init, pb):
        L = []
        for tt in range(2):
            m_ = 12 + 2 * tt
            regs = [S(kt, tt) + i for kt in range(4) for i in range(4)]
            L.append(f"v_max3_f32 v{m_}, v{regs[0]}, v{regs[1]}, v{regs[2]}")
            for k in range(3, 15, 2): L.append(f"v_max3_f32 v{m_}, v{m_}, v{regs[k]}, v{regs[k+1]}")
            L.append(f"v_max_f32 v{m_}, v{m_}, v{regs[15]}")
        for sw in ("v_permlane16_swap_b32", "v_permlane32_swap_b32"):
            for tt in range(2): L.append(f"v_mov_b32 v{13+2*tt}, v{12+2*tt}")
            for tt in range(2): L.append(f"{sw} v{12+2*tt}, v{13+2*tt}")
            for tt in range(2): L.append(f"v_max_f32 v{12+2*tt}, v{12+2*tt}, v{13+2*tt}")
        for tt in range(2):
            m_ = 12 + 2 * tt
            L.append(f"v_sub_f32 v{m_}, {hex(f2u(-B0))}, v{m_}")
            if not init: L.append(f"v_min_f32 v{m_}, 0, v{m_}")
            L.append(f"v_mov_b32 v{m_+1}, v{m_}")
        for tt in range(2):
            m_ = 12 + 2 * tt
            for i in range(2):
                a_ = NEGM + 4 * tt + 2 * i
                if init: L.append(f"v_pk_mov_b32 v[{a_}:{a_+1}], v[{m_}:{m_+1}], v[{m_}:{m_+1}]")
                else: L.append(f"v_pk_add_f32 v[{a_}:{a_+1}], v[{a_}:{a_+1}], v[{m_}:{m_+1}]")
            for kt in range(4):
                for i in range(2):
                    a_ = S(kt, tt) + 2 * i
                    L.append(f"v_pk_add_f32 v[{a_}:{a_+1}], v[{a_}:{a_+1}], v[{m_}:{m_+1}]")
        if not init:
            for tt in range(2):
                m_ = 12 + 2 * tt
                L.append(f"v_exp_f32 v{m_}, v{m_}")
                L.append(f"v_mov_b32 v{m_+1}, v{m_}")
                for rg in [O(dt, tt) + 2 * i for dt in range(16) for i in range(2)] + [LS + 4 * tt, LS + 4 * tt + 2]:
                    L.append(f"v_pk_mul_f32 v[{rg}:{rg+1}], v[{rg}:{rg+1}], v[{m_}:{m_+1}]")
        L += softmax(pb)
        return L
    zeroO = [f"v_mov_b32 v{i}, 0" for i in range(O0, O0 + 128)] + [f"v_mov_b32 v{i}, 0" for i in range(LS, LS + 8)]
    zeroOpk = [f"v_pk_mov_b32 v[{i}:{i+1}], 0, 0" for i in list(range(O0, O0 + 128, 2)) + list(range(LS, LS + 8, 2))]
    L += [f"v_mov_b32 v{AVF}, v{VF}", "v_add_u32 v2, 0x10000, v1", f"v_mov_b32 v{AV1}, 1"]
    L += ["WAITVM @need=k0", "s_barrier"]
    L += kreads(1, 0, 0)
    m = []; streams = []
    for kt in range(4): m += qk_group(kt, kt & 1, 0)
    qst = [f"s_cmp_eq_u32 s26, 0\ns_cselect_b32 s38, s49, {OOB}"]
    for n in range(16):
        if n and n % 4 == 0: qst.append("s_add_u32 s38, s38, 4096")
        qst.append(f"buffer_store_dwordx4 {r(QR + 4 * n, 4)}, v1, s[{SWS}:{SWS+3}], s38 offen offset:{(n % 4) * 1024} sc1 @tag=qs")
    streams.append((dma_blk("K", 0, "k1") + dma_adv("K"), 0, 34))
    streams.append((qst[:10], 34, 63))
    for kt in range(3): streams.append((kreads(1, kt + 1, (kt + 1) & 1), 16 * kt, 16 * kt + 11))
    setup = ["v_lshrrev_b32 v12, 4, v0", "v_lshlrev_b32 v12, 2, v12", "v_and_b32 v13, 15, v0", "v_sub_u32 v3, v13, v12"] + \
            [f"v_mov_b32 v{ONES+i}, 0x3f803f80" for i in range(4)]
    streams.append((hold_mv + setup, 0, 63))
    L += sched.pack(m, streams, [], VB)
    L += ["s_barrier"]
    def mixv(valu, vm, every):
        out = []; k = 0; groups = []; cur = []
        for x in vm:
            cur.append(x)
            if x.startswith("buffer"): groups.append(cur); cur = []
        if cur: groups[-1] += cur
        for i, x in enumerate(valu):
            out.append(x)
            if i % every == every - 1 and k < len(groups): out += groups[k]; k += 1
        for g in groups[k:]: out += g
        return out
    L += mixv(zeroOpk, qst[10:], 8)
    L += ["s_mov_b32 s36, 3", f"s_cmp_eq_u32 s26, 0\ns_cselect_b32 s37, 2, 3", "s_cmp_eq_u32 s25, 0\ns_cselect_b32 s37, 1, s37"]
    L += ST.t(6) + cs('qk0')
    qq = fin(L, stq, pe)
    A.extend(sched.texts(qq))
    A("s_cmp_lt_u32 s29, s36")
    A("s_cbranch_scc0 L_nomask0")
    emit(mask_code(2))
    A.label("L_nomask0")
    L = rescale(True, 1)
    L.append("s_mov_b32 s38, 0x12492493")
    for p in range(7):
        L += [f"v_add_u32 v12, {p * 64}, v0", "v_mul_hi_u32 v13, v12, s38", "v_mul_u32_u24 v14, 14, v13", "v_sub_u32 v12, v12, v14",
              "v_mul_u32_u24 v13, 896, v13", "v_lshl_add_u32 v12, v12, 4, v13", f"v_subrev_u32 v{WV+p}, {(p % 4) * 1024}, v12"]
    L += ["v_lshrrev_b32 v12, 2, v0", "v_mul_u32_u24 v12, 224, v12", "v_and_b32 v13, 3, v0", f"v_lshl_add_u32 v{WD}, v13, 3, v12"]
    L = mixv(L, dma_blk("K", 1) + dma_adv("K"), 16)
    L += ["s_lshl_b32 s38, 1, s27", f"v_mov_b32 v{AV1}, s38", "s_waitcnt vmcnt(8)", "s_barrier"]
    L += kreads(0, 0, 0)
    L += [f"s_cmp_eq_u32 s26, 0\ns_cselect_b32 s38, s15, {OOB}",
          f"buffer_atomic_add v{AV1}, v{AVF}, s[{SWS}:{SWS+3}], s38 offen offset:8 sc1"]
    k4 = [i for i, x in enumerate(st11) if x.startswith("buffer")][opt.get('hp', [6])[0] - 1]
    L += st11[:k4 + 1] + ["s_waitcnt lgkmcnt(0)"]
    L += ST.t(7) + cs('att')
    emit(L)
    A("s_branch L_top1")
    place = lambda m, f: sched.pack(m, [], f, False)
    def phaseA(par):
        ks_ = (par + 1) & 1
        m = []
        for kt in range(4): m += qk_group(kt, kt & 1, 1)
        f = []
        f += list(zip([0, 1, 3, 4, 5, 7, 8, 9], kreads(ks_, 1, 1)))
        f += list(zip([11, 12, 13, 15, 16, 17, 19, 20], kreads(ks_, 2, 0)))
        f += list(zip([24, 25, 27, 28, 29, 31, 32, 33], kreads(ks_, 3, 1)))
        su0, d0 = dma4("V", ks_, 0); su1, d1 = dma4("V", ks_, 1)
        f += [(0, su0[0]), (1, su0[1])] + [(2 + 4 * i, d0[i]) for i in range(4)]
        f += [(16, su1[0]), (17, su1[1])] + [(18 + 4 * i, d1[i]) for i in range(4)]
        f += list(zip([43, 45, 48, 50, 54], dma_adv("V")))
        t0 = smtile(par ^ 1, 0); t1 = smtile(par ^ 1, 1)
        f += list(zip([21, 23, 34, 35, 24, 38, 39], t0))
        f += [(38, "s_waitcnt vmcnt(16) lgkmcnt(0)"), (38, "s_barrier")]
        su0, d0 = dma4("K", ks_, 0)
        f += [(37, su0[0]), (39, su0[1])] + [(40 + 6 * i, d0[i]) for i in range(4)]
        f += list(zip([36, 37, 42, 44, 41, 47, 49], t1))
        f += [(47 + 2 * i, x) for i, x in enumerate(vreads(par, 0, 0))]
        f += [(62, "s_cmp_le_u32 s29, s36")]
        return place(m, f)
    def phaseB(par):
        mm = l_mfmas(par)
        for grp in range(4): mm += pv_group(grp, grp & 1, par)
        f = []
        for grp in range(3):
            f += [(5 + 16 * grp + 2 * i, x) for i, x in enumerate(vreads(par, grp + 1, (grp + 1) & 1))]
        f += [(56, "s_waitcnt vmcnt(16) lgkmcnt(0)"), (56, "s_barrier")]
        f += [(57 + i, x) for i, x in enumerate(kreads(par, 0, 0))]
        dg = [6, 20, 34, 48]
        eg = [g for g in range(0, 56, 2) if g not in dg]
        su1, d1 = dma4("K", (par + 1) & 1, 1)
        f += [(1, su1[0]), (2, su1[1])] + list(zip(dg, d1))
        f += list(zip([50, 58, 60, 62, 63], dma_adv("K")))
        for t in range(2, 8):
            x = smtile(par ^ 1, t); e = eg[4 * (t - 2):4 * (t - 2) + 4]
            f += list(zip(e, x[:4])) + [(e[1] + 1, x[4]), (e[3] + 1, x[5]), (e[3] + 3, x[6])]
        f += [(59, f"v_and_b32 v{ORA}, 0x40004000, v{ORA}"), (61, f"v_cmp_ne_u32 vcc, 0, v{ORA}")]
        f += [(0, "s_sub_u32 s29, s29, 1"), (66, "s_cmp_le_u32 s29, s10")]
        return place(mm, f)
    st = sched.State()
    whole = phaseA(0) + ["LBL_B0:"] + phaseB(0) + ["LBL_A1:"] + phaseA(1) + ["LBL_B1:"] + phaseB(1)
    lp = sched.texts(sched.finish_loop(whole, st, report=rep))
    iB0 = lp.index("LBL_B0:"); iA1 = lp.index("LBL_A1:"); iB1 = lp.index("LBL_B1:")
    seg = {("A", 0): lp[:iB0], ("B", 0): lp[iB0 + 1:iA1], ("A", 1): lp[iA1 + 1:iB1], ("B", 1): lp[iB1 + 1:]}
    A(".p2align 6")
    for par in range(2):
        A.label(f"L_top{par}")
        A.extend(seg[("A", par)])
        A(f"s_cbranch_scc1 L_mask{par}")
        A.label(f"L_B{par}")
        A.extend(seg[("B", par)])
        A(f"s_cbranch_scc1 L_endg{par}")
        A("s_cbranch_vccnz L_rare0" if par == 0 else "s_cbranch_vccz L_top0")
    PL = NA & 1
    hs = st11 + st10
    def split_stores(lst, cnts):
        out = []; cur = []; k = 0; c = 0
        for x in lst:
            cur.append(x)
            if x.startswith("buffer"):
                c += 1
                if c == cnts[k]: out.append(cur); cur = []; c = 0; k += 1
        return out
    HP = opt.get('hp', [6, 5, 5])
    hparts = split_stores(hs, HP)[1:]
    JS = len(hparts)
    for par in (1, 0):
        A.label(f"L_rare{par}")
        A("s_nop 7")
        emit(rescale(False, par ^ 1))
        A("s_cmp_eq_u32 s29, 1")
        A(f"s_cbranch_scc0 L_top{par ^ 1}")
        A.label(f"L_one{par}")
        if par == 1:
            A("s_cmp_eq_u32 s37, 3")
            A("s_cbranch_scc1 L_preswitch")
        A(f"s_branch L_last{par ^ 1}")
        A.label(f"L_endg{par}")
        A("s_cmp_eq_u32 s10, 1")
        A(f"s_cbranch_scc1 L_endh{par}")
        A("s_add_u32 s11, s11, 1")
        for j in range(6):
            if ((j + 1) & 1) != par: continue
            A(f"s_cmp_eq_u32 s11, {j + 1}")
            A(f"s_cbranch_scc0 L_hk{j}_n")
            if opt.get('hst') and j in opt['hst']: A.extend(ST.t((8, 9, 1)[opt['hst'].index(j)]))
            if j < JS:
                emit(hparts[j])
            elif j == JS:
                A("v_mov_b32 v12, 1")
                A(f"buffer_atomic_add v12, v{AVF}, s[{SWS}:{SWS+3}], s15 offen offset:4 sc1")
            elif j == 5:
                A("s_add_u32 s38, s6, s22"); A("s_addc_u32 s39, s7, 0")
                A("s_load_dword s38, s[38:39], 4 glc")
                A("s_mov_b32 s10, 1")
                A("s_waitcnt lgkmcnt(0)")
                A("s_cmp_ge_u32 s38, 16")
                A("s_cbranch_scc0 L_spin2")
                A.label("L_spun2")
            A.label(f"L_hk{j}_n")
        A("s_cmp_le_u32 s29, 1")
        A(f"s_cbranch_scc1 L_endh{par}")
        A(f"s_cbranch_vccnz L_rare{par}")
        A(f"s_branch L_top{par ^ 1}")
        A.label(f"L_endh{par}")
        if par == 0:
            A("s_cmp_eq_u32 s29, 0")
            A("s_cbranch_scc1 L_switch")
        A(f"s_cbranch_vccnz L_rare{par}")
        A(f"s_branch L_one{par}")
        A.label(f"L_mask{par}")
        if par == 1:
            A("s_lshl_b32 s38, s37, 2")
            A("s_add_u32 s38, s38, s29")
            A("s_cmp_eq_u32 s38, 14")
            A("s_cbranch_scc1 L_getq")
            A.label("L_gotq")
        A("s_nop 7")
        emit(codepf(f"L_last{PL ^ 1}", 13, "v27", 20 + par))
        emit(mask_code(3) + smtile(par ^ 1, 0) + smtile(par ^ 1, 1))
        A(f"s_branch L_B{par}")
    def vpoll(lab, dw, test, done, va=12, vd=13):
        A.label(lab)
        A("s_mov_b32 s12, 0")
        A("s_add_u32 s20, s6, s22"); A("s_addc_u32 s21, s7, 0")
        A.label(lab + "_l")
        A(f"s_load_dword s38, s[20:21], {4*dw} glc")
        A("s_waitcnt lgkmcnt(0)")
        A(test)
        A(f"s_cbranch_scc1 {done}")
        A("s_add_u32 s12, s12, 1")
        A(f"s_cmp_gt_u32 s12, {SPINMAX}")
        A(f"s_cbranch_scc1 {done}")
        A(f"s_sleep {opt.get('sleep', 2)}")
        A(f"s_branch {lab}_l")
    A.label("L_getq")
    A("s_add_u32 s20, s6, s22"); A("s_addc_u32 s21, s7, 0")
    A("s_load_dword s38, s[20:21], 8 glc")
    A("s_waitcnt lgkmcnt(0)")
    A("s_bitcmp1_b32 s38, s27")
    A("s_cbranch_scc1 L_getq2")
    vpoll("L_getq_p", 2, "s_bitcmp1_b32 s38, s27", "L_getq2")
    A.label("L_getq2")
    A("s_mov_b32 s38, s49")
    for n in range(16):
        if n and n % 4 == 0: A("s_add_u32 s38, s38, 4096")
        A(f"buffer_load_dwordx4 {r(QR + 4 * n, 4)}, v1, s[{SWS}:{SWS+3}], s38 offen offset:{(n % 4) * 1024} sc1")
    A("s_branch L_gotq")
    A.label("L_preswitch")
    for i in range(8): A(f"v_mov_b32 v{NEGM+i}, 0")
    A("s_mov_b32 s36, 0")
    A(f"s_cmp_le_u32 s11, {JS}")
    A("s_cbranch_scc1 L_presw2")
    A("s_waitcnt vmcnt(4)")
    A("s_branch L_top0")
    A.label("L_presw2")
    A(f"s_waitcnt vmcnt({4 + min(HP[1:])})")
    A("s_branch L_top0")
    CT = 32
    def ctx(tt, ds): return CT + (tt * 8 + ds) * 4
    def pack_plain(mode):
        L = [f"v_rcp_f32 v{12+2*tt}, v{LS+4*tt}" for tt in range(2)] + [f"v_mov_b32 v{13+2*tt}, v{12+2*tt}" for tt in range(2)]
        n = 0
        for tt in range(2):
            for ds in range(8):
                dst = ctx(tt, ds) if mode == "ctx" else O(2 * ds, tt)
                for h in range(2):
                    o = O(2 * ds + h, tt)
                    for i in range(2):
                        L.append(f"v_pk_mul_f32 v[{o+2*i}:{o+2*i+1}], v[{o+2*i}:{o+2*i+1}], v[{12+2*tt}:{13+2*tt}]")
                    for i in range(2):
                        L.append(f"v_cvt_pk_bf16_f32 v{dst+2*h+i}, v{o+2*i}, v{o+2*i+1}")
                if mode == "park":
                    L += [f"v_accvgpr_write_b32 a{PARK - 256 + 4 * n + i}, v{dst+i}" for i in range(4)]
                if mode == "store":
                    if n and n % 4 == 0: L.append("s_add_u32 s41, s41, 4096")
                    L.append(f"buffer_store_dwordx4 v[{dst}:{dst+3}], v1, s[{SWS}:{SWS+3}], s41 offen offset:{(n % 4) * 1024} sc1 @tag=ps")
                n += 1
        return L
    A.label("L_switch")
    if not (opt.get("qst") or opt.get("hst")): A.extend(ST.t(8))
    A("s_nop 7")
    emit(pack_plain("park") + zeroOpk + rescale(True, 1) + ["s_mov_b32 s29, s25", "s_mov_b32 s37, 0"] + (ST.t(9) if not (opt.get("qst") or opt.get("hst")) else []))
    A("s_cmp_eq_u32 s29, 1")
    A("s_cbranch_scc0 L_top1")
    A("s_branch L_last1")
    OREG = [0, 32768, 131072, 65536, 98304]
    def oregion(sb): return OREG[sb % 5]
    def w_dma(sb):
        c, kh = sb >> 1, sb & 1
        out = []
        for p in range(7):
            if p % 4 == 0:
                out.append(f"s_add_u32 m0, s43, {oregion(sb) + p * 1024}")
                out.append(f"s_add_u32 s35, s48, {kh * 4 * 32 * 896 + c * 224}")
            out.append(f"buffer_load_dwordx4 v{WV+p}, s[{SWO}:{SWO+3}], s35 offen offset:{(p % 4) * 1024} lds @tag=wb{sb}")
        return out
    def lastB(par, vmem):
        mm = l_mfmas(par)
        for grp in range(4): mm += pv_group(grp, grp & 1, par)
        streams = [(vmem, 0, 67)]
        for grp in range(3): streams.append((vreads(par, grp + 1, (grp + 1) & 1), 4 + 16 * grp, 4 + 16 * grp + 12))
        return sched.pack(mm, streams, [], VB)
    mix = mixv
    dm = [w_dma(sb) for sb in range(8)]
    pl = [f"buffer_load_dwordx4 v[108:111], v1, s[{SWS}:{SWS+3}], s42 offen sc1"]
    for n in range(16):
        if n and n % 4 == 0: pl.append("s_add_u32 s41, s41, 4096")
        pl.append(f"buffer_load_dwordx4 {r(PARTL + 4 * n, 4)}, v1, s[{SWS}:{SWS+3}], s41 offen offset:{(n % 4) * 1024} sc1")
    for par in (PL ^ 1, PL):
        A.label(f"L_last{par}")
        if NA <= 18 and par != PL:
            A("s_endpgm"); continue
        A.extend(ST.t(10) + cs('last'))
        L = ["s_add_u32 s20, s6, s22", "s_addc_u32 s21, s7, 0", "s_load_dword s52, s[20:21], 12 glc",
             "s_lshl_b32 s41, s24, 3", "s_add_u32 s41, s41, s27", "s_lshl_b32 s42, s41, 12", "s_lshl_b32 s38, s3, 10", "s_add_u32 s42, s42, s38",
             f"s_add_u32 s42, s42, {WS_PART + (8 << 20)}", "s_lshl_b32 s41, s41, 16", "s_lshl_b32 s38, s3, 14", "s_add_u32 s41, s41, s38",
             f"s_add_u32 s41, s41, {WS_PART}",
             "s_mul_i32 s43, s3, 7168", "s_mul_i32 s48, s24, 229376", f"s_mul_i32 s38, s3, {32 * 896}", "s_add_u32 s48, s48, s38",
             "s_lshl_b32 s51, s24, 7", "s_lshl_b32 s38, s50, 3", "s_add_u32 s51, s51, s38", "s_lshl_b32 s38, s3, 1", "s_add_u32 s51, s51, s38",
             "s_mul_i32 s51, s51, 14336", f"s_add_u32 s51, s51, {WS_Y}",
             "s_waitcnt vmcnt(0) lgkmcnt(0)", "s_barrier"] + vreads(par, 0, 0)
        stL = sched.State()
        l0 = fin(L, stL)
        A.extend(sched.texts(l0))
        if par == PL:
            A("s_cmp_eq_u32 s37, 2")
            A("s_cselect_b32 s38, s52, 0")
            A("s_bitcmp1_b32 s38, s27")
            A("s_cbranch_scc1 L_lastC")
        stN = stL.copy()
        L = lastB(par, dm[0] + dm[1] + dm[2][:5])
        L += ["s_barrier", "s_nop 3"]
        ln = fin(L, stN, l0)
        A.extend(sched.texts(ln))
        if par != PL: A("s_branch L_fin1")
    A("s_cmp_eq_u32 s37, 0")
    A("s_cbranch_scc1 L_pub")
    A("s_cmp_eq_u32 s37, 2")
    A("s_cbranch_scc1 L_late")
    A.label("L_fin1")
    st1 = stN.copy()
    emit(mix(pack_plain("ctx"), dm[2][5:] + dm[3] + dm[4], 7), st1, ln)
    A("s_branch L_oproj")
    A.label("L_pub")
    st0 = stN.copy()
    L = [f"v_mov_b32 v108, v{NEGM}", f"v_mov_b32 v109, v{LS}", f"v_mov_b32 v110, v{NEGM+4}", f"v_mov_b32 v111, v{LS+4}",
         f"buffer_store_dwordx4 v[108:111], v1, s[{SWS}:{SWS+3}], s42 offen sc1 @tag=ps"]
    L += pack_plain("store")
    L += mix([f"v_accvgpr_read_b32 v{CT+i}, a{PARK-256+i}" for i in range(64)], dm[2][5:], 14)
    L += ["WAITVM @need=ps", "s_barrier", f"buffer_atomic_add v{AV1}, v{AVF}, s[{SWS}:{SWS+3}], s15 offen offset:12 sc1"]
    L += dm[3] + dm[4]
    emit(L, st0, ln)
    A("s_branch L_oproj")
    cb = []
    for tt in range(2):
        nb, lb = 108 + 2 * tt, 109 + 2 * tt
        cA, cB = 12 + 4 * tt, 14 + 4 * tt
        cb += [f"v_min_f32 v20, v{NEGM+4*tt}, v{nb}", f"v_sub_f32 v21, v20, v{NEGM+4*tt}", f"v_sub_f32 v22, v20, v{nb}",
               "v_exp_f32 v21, v21", "v_exp_f32 v22, v22", f"v_mul_f32 v22, v22, v{lb}", f"v_fma_f32 v20, v21, v{LS+4*tt}, v22",
               "v_rcp_f32 v20, v20", f"v_mul_f32 v{cA}, v21, v20", f"v_mul_f32 v{cB}, v22, v20",
               f"v_mov_b32 v{cA+1}, v{cA}", f"v_mov_b32 v{cB+1}, v{cB}"]
    n = 0
    for tt in range(2):
        cA, cB = 12 + 4 * tt, 14 + 4 * tt
        for ds in range(8):
            for h in range(2):
                o = O(2 * ds + h, tt)
                for i in range(2):
                    c_ = ctx(tt, ds) + 2 * h + i
                    t = 120 + 2 * (n % 4); n += 1
                    cb += [f"v_accvgpr_read_b32 v{c_}, a{PARTL - 256 + c_ - CT}",
                           f"v_pk_mul_f32 v[{o+2*i}:{o+2*i+1}], v[{o+2*i}:{o+2*i+1}], v[{cA}:{cA+1}]",
                           f"v_lshlrev_b32 v{t}, 16, v{c_}", f"v_and_b32 v{t+1}, 0xffff0000, v{c_}",
                           f"v_pk_fma_f32 v[{t}:{t+1}], v[{t}:{t+1}], v[{cB}:{cB+1}], v[{o+2*i}:{o+2*i+1}]",
                           f"v_cvt_pk_bf16_f32 v{c_}, v{t}, v{t+1}"]
    A.label("L_late")
    emit(dm[2][5:])
    vpoll("L_part_p", 3, "s_bitcmp1_b32 s38, s27", "L_late2")
    A.label("L_late2")
    emit(pl + mix(cb, dm[3] + dm[4], 24), sched.State())
    A("s_branch L_oproj")
    A.label("L_lastC")
    stC = stL.copy()
    L = lastB(PL, pl) + ["s_barrier"] + dm[0][:6] + mix(cb, dm[0][6:] + dm[1] + dm[2] + dm[3] + dm[4], 13)
    emit(L, stC, l0)
    A.label("L_oproj")
    st = sched.State()
    st.vm = [(set(), f"wb{sb}") for sb in range(5) for _ in range(7)]
    YA = [128, 184]
    def ya(c, mt, tt): return YA[c & 1] + (mt * 2 + tt) * 4
    def wf(n, u): return FR + (n & 3) * 16 + u * 4
    groups = [(sb, mt) for sb in range(8) for mt in range(7)]
    def w_pre(n):
        sb, mt = groups[n]
        pre = []
        if mt == 0:
            pre += [f"WAITVM @need=wb{sb}", "s_barrier"]
            if sb > 0: pre.append(f"v_add_u32 v{WD}, {hex((oregion(sb) - oregion(sb - 1)) & 0xffffffff)}, v{WD}")
        return pre
    def w_reads(n):
        sb, mt = groups[n]
        return [f"ds_read_b64_tr_b16 {r(wf(n, u) + 2 * h2, 2)}, v{WD} offset:{u * 7168 + h2 * 16 * 224 + mt * 32}" for u in range(4) for h2 in range(2)]
    def y_drain(pair):
        out = []
        t0, t1 = 2 * pair, 2 * pair + 1
        for tt in range(2):
            a0 = ya(t0 // 7, t0 % 7, tt); a1 = ya(t1 // 7, t1 % 7, tt)
            out += [f"v_cvt_pk_bf16_f32 v{a0}, v{a0}, v{a0+1}", f"v_cvt_pk_bf16_f32 v{a0+1}, v{a0+2}, v{a0+3}",
                    f"v_cvt_pk_bf16_f32 v{a0+2}, v{a1}, v{a1+1}", f"v_cvt_pk_bf16_f32 v{a0+3}, v{a1+2}, v{a1+3}",
                    f"s_add_u32 s38, s51, {tt * 14336 + pair * 1024}\n"
                    f"buffer_store_dwordx4 v[{a0}:{a0+3}], v1, s[{SWS}:{SWS+3}], s38 offen" + opt.get("yflag", " sc1") + " @tag=ys"]
        return out
    L = ST.t(11) + cs('oproj')
    for n in range(2): L += w_pre(n) + w_reads(n)
    m = []; fixed = []; rs_ = []; vm = []; dr = []
    tail = []
    for n, (sb, mt) in enumerate(groups):
        c, kh = sb >> 1, sb & 1
        for tt in range(2):
            for u in range(4):
                m.append(mfma16(ya(c, mt, tt), wf(n, u), ctx(tt, kh * 4 + u), "0" if (kh == 0 and u == 0) else None))
        if n + 2 < len(groups):
            fixed += [(8 * n - 1, x) for x in w_pre(n + 2)]
            rs_.append((w_reads(n + 2), 8 * n, 8 * n + 7))
    for sb in (2, 3, 4): vm.append((dm[sb + 3], 56 * sb, 56 * sb + 38))
    for c in range(4):
        prs = [p for p in range(14) if (2 * p + 1) // 7 == c]
        items = sum((y_drain(p) for p in prs), [])
        if c < 3:
            dr.append((items, 112 * (c + 1) + 3, 112 * (c + 2) - 10))
        else:
            for p in prs:
                n_end = [n for n, (sb, mt) in enumerate(groups) if sb == 7 and 21 + mt == 2 * p + 1][0]
                if n_end + 2 < len(groups): dr.append((y_drain(p), 8 * (n_end + 1) + 3, 8 * (n_end + 3) - 1))
                else: tail += y_drain(p)
    if opt.get("fuse", 1): vm.append((codepf("L_tail", 12, "v13", 30), 20, 60))
    if opt.get("x_noy"): dr = [([x for x in it if "buffer_store" not in x], a_, b_) for it, a_, b_ in dr]
    if opt.get("x_nord"): rs_ = []
    L += sched.pack(m, vm + dr + rs_, fixed, VB)
    L += tail
    L += ST.t(12) + cs('oend')
    oo = fin(L, st)
    A.extend(sched.texts(oo))
    tcold = None
    if opt.get("fuse", 1):
        A.label("L_tail")
        tcold = tailmod.gen_tail(A, opt, ST0, cs, rep, st, oo, SPINMAX)
    if ST.en:
        A("s_waitcnt vmcnt(0)")
        A.extend(ST.t(13) + cs('end'))
        ST.write(A, 6, 0)
    A.label("L_end")
    A("s_endpgm")
    A.label("L_hook")
    A("s_mov_b32 s23, 5")
    A("s_cmp_eq_u32 s3, 0")
    A("s_cbranch_scc0 L_hook_ret")
    A("s_add_u32 s20, s4, s2")
    A("s_addc_u32 s21, s5, 0")
    A("s_mov_b32 exec_lo, 0")
    A("s_mov_b32 exec_hi, 0x80000000")
    A("v_readlane_b32 s38, v0, 63")
    A("v_readlane_b32 s30, v1, 63")
    A("v_mov_b32 v0, 0")
    A("v_mov_b32 v1, 1")
    A("global_store_byte v0, v1, s[20:21] sc1")
    A("s_nop 1")
    A("v_mov_b32 v0, s38")
    A("v_mov_b32 v1, s30")
    A("s_mov_b64 exec, -1")
    A.label("L_hook_ret")
    A("s_cmp_eq_u32 s26, 0")
    A("s_cbranch_scc1 L_loopK")
    A("s_branch L_loopV")
    for which in (0, 1):
        lab = "L_loopK" if which == 0 else "L_loopV"
        A.label(lab + "_spin")
        A("s_mov_b32 s30, 0")
        A.label(lab + "_spin_l")
        A("s_add_u32 s30, s30, 1")
        A(f"s_cmp_gt_u32 s30, {SPINMAX}")
        A(f"s_cbranch_scc1 {lab}_spun")
        A("s_sleep 1")
        A("global_load_dword v0, v1, s[4:5] sc1")
        A("s_waitcnt vmcnt(0)")
        A("v_cmp_ne_u32 vcc, 0x01010101, v0")
        A("s_nop 4")
        A(f"s_cbranch_vccnz {lab}_spin_l")
        A(f"s_branch {lab}_spun")
    vpoll("L_spin1", 0, "s_cmp_ge_u32 s38, 16", "L_spun1", 8, 8)
    vpoll("L_spin2", 1, "s_cmp_ge_u32 s38, 16", "L_spun2")
    if tcold: tcold(A)
    if opt.get("report"):
        for x in rep: print("HAZ", x)
    return kernel_header(name) + A.text() + kernel_desc(name, vgpr=512, accum=256)
```

```python
from common import *
import sched, math, struct
def f2u(x): return struct.unpack("<I", struct.pack("<f", x))[0]
OOB = 0x70000000

def mixv(valu, vm, every, start=0):
    out = []; k = 0; groups = []; cur = []
    for x in vm:
        cur.append(x)
        if "buffer_" in x: groups.append(cur); cur = []
    if cur: groups[-1] += cur
    for i, x in enumerate(valu):
        out.append(x)
        if i >= start and (i - start) % every == every - 1 and k < len(groups): out += groups[k]; k += 1
    for g in groups[k:]: out += g
    return out

def gen_tail(A, opt, ST, cs, rep, st, prev, SPINMAX):
    SO = 16; SW13 = 8; SW2 = 12; SXO = 44; SOUT = 40
    VB = opt.get("verbose")
    WV, WD, VF, ONE = 2, 9, 10, 11
    W2V, W2D = 240, 247
    spins = []
    def poll(dw, n):
        spins.append((dw, n))
        return [f"s_load_dword s38, s[20:21], {16+4*dw} glc", "s_waitcnt lgkmcnt(0)", f"s_cmp_ge_u32 s38, 16", f"s_cbranch_scc0 L_tspin{n}", f"L_tspun{n}:"]
    def sig(dw): return f"buffer_atomic_add v{ONE}, v{VF}, s[{SO}:{SO+3}], s23 offen offset:{16+4*dw} sc1"
    L = []; E = L.append
    E("s_load_dwordx4 s[52:55], s[0:1], 56")
    E("s_load_dwordx4 s[56:59], s[0:1], 72")
    E("s_load_dwordx2 s[30:31], s[0:1], 0")
    E("v_and_b32 v12, 0x40000000, v25"); E(f"v_lshl_add_u32 v{VF}, v0, 12, v12"); E(f"v_mov_b32 v{ONE}, 1")
    E("s_mov_b32 s38, 0x12492493")
    E("s_and_b32 s39, s24, 1"); E("s_lshl_b32 s39, s39, 1")
    for p in range(7):
        L += [f"v_add_u32 v12, {p * 64}, v0", "v_mul_hi_u32 v13, v12, s38", "v_mul_u32_u24 v14, 14, v13", "v_sub_u32 v12, v12, v14",
              "v_add_u32 v12, s39, v12", "v_subrev_u32 v14, 14, v12", "v_min_u32 v12, v12, v14",
              "v_mul_u32_u24 v13, 3584, v13", "v_lshl_add_u32 v12, v12, 4, v13", f"v_subrev_u32 v{WV+p}, {(p % 4) * 1024}, v12"]
    L += ["v_lshrrev_b32 v12, 2, v0", "v_mul_u32_u24 v12, 224, v12", "v_and_b32 v13, 3, v0", f"v_lshl_add_u32 v{WD}, v13, 3, v12"]
    L += ["s_mul_i32 s48, s3, 7168"]
    L += ["s_and_b32 s38, s3, 1", f"s_mul_i32 s49, s38, {32 * 3584}", "s_mul_i32 s38, s24, 224", "s_add_u32 s49, s49, s38"]
    L += ["s_lshl_b32 s23, s50, 8", f"s_add_u32 s23, s23, {WS_FLAG}", "s_add_u32 s20, s6, s22", "s_addc_u32 s21, s7, 0"]
    E("s_waitcnt lgkmcnt(0)")
    E("s_cmp_lt_u32 s3, 2"); E("s_cselect_b32 s52, s52, s54"); E("s_cselect_b32 s53, s53, s55")
    srd(E, SW13, 52, 448 * 1792 * 2); srd(E, SW2, 56, 448 * 1792 * 2); srd(E, SOUT, 58, 2048 * 448 * 2); srd(E, SXO, 30, 2048 * 448 * 2)
    def region(sb): return (sb % 5) * 28672
    def w_dma(sb):
        out = []
        for p in range(7):
            if p % 4 == 0:
                out.append(f"s_add_u32 m0, s48, {region(sb) + p * 1024}")
                out.append(f"s_add_u32 s35, s49, {sb * 64 * 3584}")
            out.append(f"buffer_load_dwordx4 v{WV+p}, s[{SW13}:{SW13+3}], s35 offen offset:{(p % 4) * 1024} lds @tag=fb{sb}")
        return out
    E("s_barrier")
    L += w_dma(0) + w_dma(1)
    L += ["WAITVM @need=ys", "s_barrier", sig(0)]
    L += ST.t(1) if opt.get("tst") else []
    T1 = []; F = T1.append
    F("s_lshl_b32 s25, s50, 3"); F("s_lshr_b32 s38, s24, 1"); F("s_add_u32 s25, s25, s38")
    F("s_and_b32 s26, s24, 1")
    F("s_mul_i32 s27, s25, 14336"); F("s_lshl_b32 s38, s26, 7"); F("s_add_u32 s27, s27, s38"); F("s_lshl_b32 s38, s3, 10"); F("s_add_u32 s27, s27, s38")
    F("v_and_b32 v12, 7, v0"); F("v_bfe_u32 v13, v0, 3, 2"); F("v_lshrrev_b32 v14, 5, v0")
    F("v_lshlrev_b32 v15, 4, v12"); F("v_lshl_add_u32 v15, v13, 8, v15")
    F("s_mov_b32 s38, 1835008"); F("v_mad_u32_u24 v100, v14, s38, v15")
    F(f"s_mov_b32 s38, {WS_HN - WS_H}"); F("v_sub_u32 v101, 1, v14"); F("v_mad_u32_u24 v101, v101, s38, v15")
    F("s_lshl_b32 s38, s25, 4"); F("s_lshl_b32 s39, s26, 3"); F("s_add_u32 s38, s38, s39")
    F("v_add_u32 v102, s38, v12"); F("v_mul_u32_u24 v102, 896, v102"); F("v_lshl_add_u32 v102, v13, 3, v102"); F("v_lshl_add_u32 v102, v14, 5, v102")
    F("s_lshl_b32 s38, s3, 6"); F("v_add_u32 v102, s38, v102")
    F("v_lshlrev_b32 v103, 4, v12"); F("v_add_u32 v103, 143360, v103")
    F("s_lshl_b32 s38, s3, 2"); F("v_add_u32 v104, s38, v103")
    F(f"s_cmp_lt_u32 s3, 2\ns_cselect_b32 s28, 0, {OOB}\ns_cselect_b32 s29, 1.0, 0")
    F("s_mov_b32 s33, 0x00003f80"); F("s_mov_b32 s34, 0x3f800000")
    L += mixv(T1, w_dma(2) + w_dma(3) + w_dma(4), 2)
    for q in range(4):
        E(f"buffer_load_dwordx2 v[{88+2*q}:{89+2*q}], v102, s[{SXO}:{SXO+3}], {'s28' if q == 3 else '0'} offen offset:{q*256}")
    L += poll(0, 0)
    L += ST.t(2) if opt.get("tst") else []
    YB = 128; AC = 16
    E(f"s_add_u32 s36, s27, {WS_Y}")
    for k in range(8):
        for q in range(4):
            y = YB + (k * 4 + q) * 4
            if q == 3: E(f"s_add_u32 s38, s36, s28");
            E(f"s_add_u32 s38, {'s38' if q == 3 else 's36'}, {q * 4096}")
            E(f"buffer_load_dwordx4 v[{y}:{y+3}], v100, s[{SO}:{SO+3}], s38 offen sc1" + opt.get("ylflag", ""))
        if k < 7: E("s_add_u32 s36, s36, 3670016")
    for k in range(8):
        for q in range(4):
            for d in range(4):
                y = YB + (k * 4 + q) * 4 + d; a_ = AC + q * 8 + 2 * d
                if k == 0:
                    E(f"v_lshlrev_b32 v{a_}, 16, v{y}"); E(f"v_and_b32 v{a_+1}, 0xffff0000, v{y}")
                else:
                    E(f"v_dot2_f32_bf16 v{a_}, v{y}, s33, v{a_}"); E(f"v_dot2_f32_bf16 v{a_+1}, v{y}, s34, v{a_+1}")
    L += ST.t(3) if opt.get("tst") else []
    R = 48
    for q in range(4):
        for j in range(4): E(f"v_permlane32_swap_b32 v{AC+q*8+j}, v{AC+q*8+4+j}")
    for q in range(4):
        for j in range(2): E(f"v_pk_add_f32 v[{R+4*q+2*j}:{R+4*q+2*j+1}], v[{AC+q*8+2*j}:{AC+q*8+2*j+1}], v[{AC+q*8+4+2*j}:{AC+q*8+4+2*j+1}]")
    for d in range(8): E(f"v_cvt_pk_bf16_f32 v{16+d}, v{R+2*d}, v{R+2*d+1}")
    for d in range(8):
        E(f"v_lshlrev_b32 v{R+2*d}, 16, v{16+d}"); E(f"v_and_b32 v{R+2*d+1}, 0xffff0000, v{16+d}")
        E(f"v_lshlrev_b32 v{24+2*d}, 16, v{88+d}"); E(f"v_and_b32 v{25+2*d}, 0xffff0000, v{88+d}")
    for d in range(8): E(f"v_pk_add_f32 v[{R+2*d}:{R+2*d+1}], v[{R+2*d}:{R+2*d+1}], v[{24+2*d}:{25+2*d}]")
    def hreg(d): return 64 + 4 * (d >> 1) + 2 + (d & 1)
    def nreg(d): return 64 + 4 * (d >> 1) + (d & 1)
    for d in range(8): E(f"v_cvt_pk_bf16_f32 v{hreg(d)}, v{R+2*d}, v{R+2*d+1}")
    for d in range(8):
        E(f"v_lshlrev_b32 v{R+2*d}, 16, v{hreg(d)}"); E(f"v_and_b32 v{R+2*d+1}, 0xffff0000, v{hreg(d)}")
    def cross(x, off):
        E(f"v_add_f32_dpp v{x}, v{x}, v{x} row_ror:8 row_mask:0xf bank_mask:0xf")
        for sw in ("v_permlane16_swap_b32", "v_permlane32_swap_b32"):
            E(f"v_mov_b32 v12, v{x}"); E(f"{sw} v{x}, v12"); E(f"v_add_f32 v{x}, v{x}, v12")
        E(f"ds_write_b32 v104, v{x} offset:{off}")
        E("s_waitcnt lgkmcnt(0)"); E("s_barrier")
        E(f"ds_read_b128 v[12:15], v103 offset:{off}")
        E("v_pk_add_f32 v[12:13], v[12:13], v[14:15]")
        E(f"v_add_f32 v{x}, v12, v13")
    E(f"v_pk_add_f32 v[16:17], v[{R}:{R+1}], v[{R+2}:{R+3}]")
    for d in range(2, 8): E(f"v_pk_add_f32 v[16:17], v[16:17], v[{R+2*d}:{R+2*d+1}]")
    E("v_add_f32 v16, v16, v17")
    cross(16, 0)
    E(f"v_mul_f32 v16, {hex(f2u(-1.0/448))}, v16"); E("v_mov_b32 v17, v16")
    E("v_mul_f32 v18, s29, v16"); E("v_mov_b32 v19, v18")
    for d in range(8):
        m_ = 16 if d < 6 else 18
        E(f"v_pk_add_f32 v[{R+2*d}:{R+2*d+1}], v[{R+2*d}:{R+2*d+1}], v[{m_}:{m_+1}]")
    E(f"v_pk_mul_f32 v[20:21], v[{R}:{R+1}], v[{R}:{R+1}]")
    for d in range(1, 8): E(f"v_pk_fma_f32 v[20:21], v[{R+2*d}:{R+2*d+1}], v[{R+2*d}:{R+2*d+1}], v[20:21]")
    E("v_add_f32 v20, v20, v21")
    cross(20, 256)
    E(f"v_mov_b32 v21, {hex(f2u(1e-5))}"); E(f"v_fmac_f32 v21, {hex(f2u(1.0/448))}, v20"); E("v_rsq_f32 v20, v21"); E("v_mov_b32 v21, v20")
    for d in range(8): E(f"v_pk_mul_f32 v[{R+2*d}:{R+2*d+1}], v[{R+2*d}:{R+2*d+1}], v[20:21]")
    for d in range(8): E(f"v_cvt_pk_bf16_f32 v{nreg(d)}, v{R+2*d}, v{R+2*d+1}")
    E(f"s_add_u32 s36, s27, {WS_H}")
    for q in range(4):
        for j in range(2): E(f"v_permlane32_swap_b32 v{64+4*q+j}, v{64+4*q+2+j}")
    for q in range(4):
        if q == 3: E("s_add_u32 s36, s36, s28")
        E(f"s_add_u32 s38, s36, {q * 4096}")
        E(f"buffer_store_dwordx4 v[{64+4*q}:{67+4*q}], v101, s[{SO}:{SO+3}], s38 offen sc1 @tag=hs")
    for p in range(7): E(f"v_mov_b32 v{W2V+p}, v{112+p}")
    L += [f"v_add_u32 v{W2D}, s48, v{WD}", f"v_add_u32 v{W2D+1}, 57344, v{W2D}"]
    L += ["s_lshl_b32 s25, s50, 3", "s_lshl_b32 s38, s3, 1", "s_add_u32 s25, s25, s38",
          "s_mul_i32 s36, s25, 14336", f"s_add_u32 s36, s36, {WS_HN}",
          "s_lshr_b32 s37, s25, 1", f"s_mul_i32 s37, s37, {8 * 14336}", "s_lshr_b32 s38, s24, 1", "s_mul_i32 s38, s38, 14336", "s_add_u32 s37, s37, s38",
          f"s_add_u32 s37, s37, {WS_H1}", "s_and_b32 s38, s24, 1", "s_lshl_b32 s39, s38, 13", "s_add_u32 s26, s37, s39",
          "s_lshl_b32 s38, s38, 10", "s_add_u32 s27, s37, s38", "s_add_u32 s27, s27, 6144",
          "s_and_b32 s28, s24, 3", "s_lshr_b32 s29, s24, 2", "s_lshl_b32 s38, s50, 2", "s_add_u32 s29, s29, s38",
          f"s_mul_i32 s33, s3, {14 * 32 * 896}", "s_mul_i32 s38, s28, 224", "s_add_u32 s33, s33, s38",
          f"s_mul_i32 s34, s29, {8 * 14336}", f"s_mul_i32 s38, s3, {2 * 14336}", "s_add_u32 s34, s34, s38", f"s_add_u32 s34, s34, {WS_H1}"]
    L += ["WAITVM @need=hs", "s_barrier", sig(1)]
    L += ST.t(4) if opt.get("tst") else []
    XH = 256 + 64
    def xh(tt, ks): return XH + (tt * 14 + ks) * 4
    def xload(ks): return [f"s_add_u32 s38, s36, {tt * 14336 + ks * 1024}\nbuffer_load_dwordx4 {r(xh(tt, ks), 4)}, v1, s[{SO}:{SO+3}], s38 offen sc1" for tt in range(2)]
    def ac(mat, ft, tt): return 16 + ((mat * 7 + ft) * 2 + tt) * 4
    def wf(n, u): return 256 + (n & 3) * 16 + u * 4
    groups = [(sb, ft) for sb in range(7) for ft in range(7)]
    def w_pre(n):
        sb, ft = groups[n]
        if ft or sb == 0: return []
        pre = [f"WAITVM @need=fb{sb}\ns_barrier"] if sb >= 2 else []
        return pre + [f"v_add_u32 v{WD}, {hex((region(sb) - region(sb - 1)) & 0xffffffff)}, v{WD}"]
    def w_reads(n):
        sb, ft = groups[n]
        return [f"ds_read_b64_tr_b16 {r(wf(n, u) + 2 * h2, 2)}, v{WD} offset:{u * 7168 + h2 * 16 * 224 + ft * 32}" for u in range(4) for h2 in range(2)]
    L += w_reads(0) + w_reads(1)
    L += poll(1, 1)
    L += ST.t(5) if opt.get("tst") else []
    for ks in range(4): L += xload(ks)
    SLOT = [2, 3, 4, 0, 1]
    def w2_dma(u):
        out = []
        for p in range(7):
            if p % 4 == 0:
                out.append(f"s_add_u32 m0, s48, {SLOT[u % 5] * 28672 + p * 1024}")
                out.append(f"s_add_u32 s35, s33, {u * 32 * 896}")
            out.append(f"buffer_load_dwordx4 v{W2V+p}, s[{SW2}:{SW2+3}], s35 offen offset:{(p % 4) * 1024} lds @tag=wu{u}")
        return out
    def w2f(u, mt): return (256 + u * 28 if u < 9 else 72 + (u & 1) * 28) + mt * 4
    def w2_reads(u):
        s_ = SLOT[u % 5]; b = W2D + (1 if s_ >= 2 else 0); o = (s_ - 2 if s_ >= 2 else s_) * 28672
        return [f"ds_read_b64_tr_b16 {r(w2f(u, mt) + 2 * h2, 2)}, v{b} offset:{o + h2 * 16 * 224 + mt * 32}" for mt in range(7) for h2 in range(2)]
    NL2E = hex(f2u(-math.log2(math.e)))
    def epi(ft, pk):
        out = []
        for tt in range(2):
            g = ac(0, ft, tt); u = ac(1, ft, tt); t = 128 + ((ft * 2 + tt) % 4) * 4
            d = 144 + ((ft >> 1) * 2 + tt) * 4 + 2 * (ft & 1) if ft < 6 else 168 + 2 * tt
            if pk:
                out += [f"v_pk_mul_f32 v[{t+2*i}:{t+2*i+1}], v[{g+2*i}:{g+2*i+1}], s[30:31]" for i in range(2)]
            else:
                out += [f"v_mul_f32 v{t+i}, s30, v{g+i}" for i in range(4)]
            out += [f"v_exp_f32 v{t+i}, v{t+i}" for i in range(4)]
            if pk:
                out += [f"v_pk_mul_f32 v[{g+2*i}:{g+2*i+1}], v[{g+2*i}:{g+2*i+1}], v[{u+2*i}:{u+2*i+1}]" for i in range(2)]
                out += [f"v_pk_add_f32 v[{t+2*i}:{t+2*i+1}], v[{t+2*i}:{t+2*i+1}], 1.0 op_sel_hi:[1,0]" for i in range(2)]
            else:
                out += [f"v_mul_f32 v{g+i}, v{g+i}, v{u+i}" for i in range(4)]
                out += [f"v_add_f32 v{t+i}, 1.0, v{t+i}" for i in range(4)]
            out += [f"v_rcp_f32 v{t+i}, v{t+i}" for i in range(4)]
            if pk: out += [f"v_pk_mul_f32 v[{g+2*i}:{g+2*i+1}], v[{g+2*i}:{g+2*i+1}], v[{t+2*i}:{t+2*i+1}]" for i in range(2)]
            else: out += [f"v_mul_f32 v{g+i}, v{g+i}, v{t+i}" for i in range(4)]
            out += [f"v_cvt_pk_bf16_f32 v{d}, v{g}, v{g+1}", f"v_cvt_pk_bf16_f32 v{d+1}, v{g+2}, v{g+3}"]
            if ft < 6 and ft & 1:
                j = (ft >> 1) * 2 + tt; d0 = 144 + j * 4
                out.append(f"s_add_u32 s38, s26, {j * 1024}\nbuffer_store_dwordx4 v[{d0}:{d0+3}], v1, s[{SO}:{SO+3}], s38 offen sc1 @tag=h1s")
        if ft == 6: out.append(f"buffer_store_dwordx4 v[168:171], v1, s[{SO}:{SO+3}], s27 offen sc1 @tag=h1s")
        return out
    m = []; fixed = []; rs_ = []
    for n, (sb, ft) in enumerate(groups):
        for mat in range(2):
            for tt in range(2):
                for k in range(2):
                    m.append(mfma16(ac(mat, ft, tt), wf(n, mat * 2 + k), xh(tt, 2 * sb + k), "0" if (sb == 0 and k == 0) else None))
        if n + 2 < len(groups):
            fixed += [(8 * n - 1, x) for x in w_pre(n + 2)]
            rs_.append((w_reads(n + 2), 8 * n, 8 * n + 7))
    fixed += [(2, f"s_mov_b32 s30, {NL2E}"), (3, f"s_mov_b32 s31, {NL2E}")]
    xl = sum((xload(ks) for ks in range(4, 14)), [])
    vm = [(xl, 0, 96), (w_dma(5), 112, 150), (w_dma(6), 168, 206), (w2_dma(0), 224, 262), (w2_dma(1), 280, 318), (w2_dma(2), 336, 374)]
    L += sched.pack(m, vm + rs_ + [(epi(0, False)[:34], 336 + 11, 392)], fixed, VB)
    L += ST.t(6) if opt.get("tst") else []
    e = epi(0, False)[34:]
    for ft in range(1, 7): e += epi(ft, True)
    L += ["s_barrier"]
    L += mixv(e, w2_dma(3) + w2_dma(4), 16)
    L += ST.t(7) if opt.get("tst") else []
    def stream(u):
        return [f"WAITVM @need=wu{u}"] + w2_reads(u) + ["s_waitcnt lgkmcnt(0)"] + w2_dma(u + 5)
    L += stream(0) + stream(1)
    L += ["WAITVM @need=h1s", "s_barrier", sig(2)]
    L += ST.t(8) if opt.get("tst") else []
    NS = opt.get("t3pre", 6)
    for u in range(2, NS): L += stream(u)
    L += ["s_and_b32 s25, s3, 1", "s_lshr_b32 s26, s3, 1", "s_mul_i32 s38, s28, 7", "s_add_u32 s26, s26, s38",
          "s_lshl_b32 s27, s29, 1", "s_add_u32 s27, s27, s25",
          "s_mul_i32 s36, s27, 14336", f"s_add_u32 s36, s36, {WS_H}", "s_lshr_b32 s38, s26, 1", "s_lshl_b32 s38, s38, 10", "s_add_u32 s36, s36, s38",
          "s_and_b32 s38, s26, 1", "s_lshl_b32 s38, s38, 3", "s_add_u32 s36, s36, s38",
          "s_lshl_b32 s27, s27, 4", "v_and_b32 v12, 15, v0", "v_add_u32 v12, s27, v12", "v_mul_u32_u24 v12, 896, v12",
          "v_lshrrev_b32 v13, 4, v0", "v_lshl_add_u32 v12, v13, 3, v12", "s_lshl_b32 s38, s26, 5", "v_add_u32 v12, s38, v12"]
    L += poll(2, 2)
    L += ST.t(9) if opt.get("tst") else []
    HF = 128
    def hf(u, tt): return HF + (u * 2 + tt) * 4
    def hload(u):
        return [f"s_add_u32 s38, s34, {(u * 2 + tt) * 1024}\nbuffer_load_dwordx4 v[{hf(u, tt)}:{hf(u, tt)+3}], v1, s[{SO}:{SO+3}], s38 offen sc1" for tt in range(2)]
    for u in range(14): L += hload(u)
    for k in range(4): L.append(f"buffer_load_dwordx2 v[{2+2*k}:{3+2*k}], v1, s[{SO}:{SO+3}], s36 offen offset:{k*1024} sc1")
    for u in range(NS, 9): L += stream(u)
    def a3(mt, tt): return 16 + (mt * 2 + tt) * 4
    m = []; fixed = []; rs_ = []
    for u in range(14):
        if u in (3, 10):
            fixed += [(14 * u - 3, f"v_swap_b32 v{hf(u, 0)+2}, v{hf(u, 1)}"), (14 * u - 3, f"v_swap_b32 v{hf(u, 0)+3}, v{hf(u, 1)+1}")]
        m += [mfma16(a3(mt, tt), w2f(u, mt), hf(u, tt), "0" if u == 0 else None) for mt in range(7) for tt in range(2)]
        if 9 <= u + 1 < 14:
            fixed += [(14 * u - 1, f"WAITVM @need=wu{u+1}")]
            rs_.append((w2_reads(u + 1), 14 * u, 14 * u + 10))
    L += sched.pack(m, rs_, fixed, VB)
    L += ST.t(10) if opt.get("tst") else []
    L += ["v_add_u32 v13, s48, v1"]
    for t in range(14):
        L.append(f"ds_write_b128 v13, v[{16+4*t}:{19+4*t}] offset:{(t // 7) * 28672 + (t % 7) * 1024}")
    L += ["s_lshl_b32 s38, s3, 10", "v_add_u32 v13, s38, v1", f"s_cmp_eq_u32 s3, 3\ns_cselect_b32 s38, {28672 - 7168}, 0", "v_add_u32 v14, s38, v13"]
    L += ["s_waitcnt lgkmcnt(0)", "s_barrier"]
    for k in range(4):
        for w in range(4):
            if k == 1: reg, off = 14, 4096
            else: reg, off = 13, k * 4096 + (28672 - 7168 if k >= 2 else 0)
            L.append(f"ds_read_b128 v[{128+(k*4+w)*4}:{131+(k*4+w)*4}], v{reg} offset:{off + w * 7168}")
    for k in range(4):
        b = 128 + k * 16
        for w in range(1, 4):
            for i in range(2): L.append(f"v_pk_add_f32 v[{b+2*i}:{b+2*i+1}], v[{b+2*i}:{b+2*i+1}], v[{b+4*w+2*i}:{b+4*w+2*i+1}]")
        L += [f"v_cvt_pk_bf16_f32 v{b+4}, v{b}, v{b+1}", f"v_cvt_pk_bf16_f32 v{b+5}, v{b+2}, v{b+3}"]
        for i in range(2):
            L += [f"v_lshlrev_b32 v{b+2*i}, 16, v{b+4+i}", f"v_and_b32 v{b+2*i+1}, 0xffff0000, v{b+4+i}",
                  f"v_lshlrev_b32 v{b+8+2*i}, 16, v{2+2*k+i}", f"v_and_b32 v{b+9+2*i}, 0xffff0000, v{2+2*k+i}"]
        for i in range(2): L.append(f"v_pk_add_f32 v[{b+2*i}:{b+2*i+1}], v[{b+2*i}:{b+2*i+1}], v[{b+8+2*i}:{b+9+2*i}]")
        L += [f"v_cvt_pk_bf16_f32 v{b+4}, v{b}, v{b+1}", f"v_cvt_pk_bf16_f32 v{b+5}, v{b+2}, v{b+3}"]
        if k == 3: L += [f"s_cmp_lt_u32 s3, 2\ns_cselect_b32 s38, 0, {OOB}"]
        L.append(f"buffer_store_dwordx2 v[{b+4}:{b+5}], v12, s[{SOUT}:{SOUT+3}], {'s38' if k == 3 else '0'} offen offset:{k*64}")
    A.extend(sched.texts(sched.finish(L, st, prev, rep)))
    def cold(A):
        for dw, n in spins:
            A.label(f"L_tspin{n}")
            A("s_mov_b32 s39, 0")
            A.label(f"L_tspin{n}_l")
            A("s_add_u32 s39, s39, 1")
            A(f"s_cmp_gt_u32 s39, {SPINMAX}")
            A(f"s_cbranch_scc1 L_tspun{n}")
            if opt.get("vpoll"):
                A("v_mov_b32 v15, s22")
                A(f"global_load_dword v15, v15, s[6:7] offset:{16+4*dw} sc1")
                A("s_waitcnt vmcnt(0)")
                A("v_readfirstlane_b32 s38, v15")
                A("s_nop 0")
            else:
                A(f"s_load_dword s38, s[20:21], {16+4*dw} glc")
                A("s_waitcnt lgkmcnt(0)")
            A("s_cmp_ge_u32 s38, 16")
            A(f"s_cbranch_scc1 L_tspun{n}")
            A(f"s_sleep {opt.get('sleep', 2)}")
            A(f"s_branch L_tspin{n}_l")
    return cold
```

```python
import sys, json
sys.path.insert(0, "gen")
from asmlib import *
import k1, k2, k345, k12
HDR = open("sequential_preLN__compressed_kv_cla__glu_gated_swiglu__prompt.s.ref").read().split("; Override launch")[0] if False else ""
def build(opt, path, kernels=("k12", "k3", "k4", "k5")):
    hdr = ""; body = ""
    if kernels == ("k12", "k3", "k4", "k5") and opt.get("fuse", 1): kernels = ("k12",)
    if "k1" in kernels:
        hdr += "; @launch kernel=k1_kernel grid=(256,1,1) block=(256,1,1) lds=163840\n"; body += k1.gen_k1("k1_kernel", opt)
    if "k2" in kernels:
        hdr += "; @launch kernel=k2_kernel grid=(256,1,1) block=(256,1,1) lds=163840\n"; body += k2.gen_k2("k2_kernel", opt)
    if kernels == ("k12",):
        hdr += "; fused kernel: kv gemm -> q projection -> causal attention -> o projection -> layernorm -> swiglu ffn (generated by gen/*.py)\n"
        hdr += "; @launch grid=(256,1,1) block=(256,1,1) lds=163840\n"
        body += k12.gen_k12("sequential_preLN__compressed_kv_cla__glu_gated_swiglu__prompt_kernel", opt)
    elif "k12" in kernels:
        hdr += "; @launch kernel=k12_kernel grid=(256,1,1) block=(256,1,1) lds=163840\n"; body += k12.gen_k12("k12_kernel", opt)
    if "k3" in kernels:
        hdr += "; @launch kernel=k3_kernel grid=(128,1,1) block=(448,1,1) lds=1024\n"; body += k345.gen_k3("k3_kernel", opt)
    if "k4" in kernels:
        hdr += "; @launch kernel=k4_kernel grid=(256,1,1) block=(256,1,1) lds=163840\n"; body += k345.gen_k4("k4_kernel", opt)
    if "k5" in kernels:
        hdr += "; @launch kernel=k5_kernel grid=(256,1,1) block=(256,1,1) lds=163840\n"; body += k345.gen_k5("k5_kernel", opt)
    body += ".text\n.p2align 2\nL_textend:\n"
    txt = hdr + '.amdgcn_target "amdgcn-amd-amdhsa--gfx950"\n' + body
    open(path, "w").write(txt)
if __name__ == "__main__":
    opt = json.loads(sys.argv[2]) if len(sys.argv) > 2 else {}
    build(opt, sys.argv[1])
```

```python
from common import *
import sched, tail as tailmod
import math, struct

QSCALE = math.log2(math.e) / 16.0
B0 = 6.0
OOB = 0x70000000
SPINMAX = 100000
def f2u(x): return struct.unpack("<I", struct.pack("<f", x))[0]

def gen_k12(name, opt):
    A = Asm()
    ST0 = Stamps2(opt.get("stamps", 0))
    class STX:
        en = ST0.en
        def t(self, i): return [] if (opt.get("tst") and 1 <= i <= 10) else ST0.t(i)
        def c(self, i): return ST0.c(i)
        def write(self, *a): return ST0.write(*a)
    ST = STX()
    rep = []
    NA = opt.get("NA", 19)
    CST = opt.get("cst", ["start", "att", "last", "end"])
    def cs(nm): return ST.c(CST.index(nm)) if nm in CST else []
    VB = opt.get("verbose")
    fin = lambda L, st=None, prev=None: sched.finish(L, st, prev, rep)
    emit = lambda L, st=None, prev=None: A.extend(sched.texts(fin(L, st, prev)))
    def codepf(lab, vt, dst, n):
        if not opt.get("jit", 1): return []
        return [f"s_getpc_b64 s[20:21]\nL_pcx{n}:\ns_add_u32 s20, s20, {lab}-L_pcx{n}\ns_addc_u32 s21, s21, 0",
                f"s_lshl_b32 s38, s3, 13\nv_lshl_add_u32 v{vt}, v0, 7, s38",
                f"v_min_u32 v{vt}, L_textend-{lab}-4, v{vt}",
                f"global_load_dword {dst}, v{vt}, s[20:21]"]
    VX, VW, DX, DW = 2, 6, 10, 12
    def acc(which, hx, ti, hw, tj):
        i = (hx * 2 + hw) * 16 + (ti * 4 + tj if which == 0 else tj * 4 + ti)
        return 16 + 4 * i if i < 60 else 256 + 64 + 4 * (i - 60)
    FX = [256 + 80, 256 + 0]; FW = [256 + 112, 256 + 32]
    XH = 400
    def fx(hx, ti, s_): return FX[hx] + (ti * 2 + s_) * 4
    def fw(bank, tj, s_): return FW[bank] + (tj * 2 + s_) * 4
    SX, SW, SO, SQ, SXI = 8, 12, 16, 40, 44
    SWO = 44
    P = []
    E = P.append
    A("s_cmp_ge_u32 s2, 256")
    A("s_cbranch_scc1 L_end")
    A.extend(ST.t(0) + cs('start'))
    E("s_load_dwordx4 s[52:55], s[0:1], 0")
    E("s_load_dwordx2 s[56:57], s[0:1], 16")
    E("s_load_dwordx4 s[20:23], s[0:1], 24")
    E("s_load_dwordx2 s[100:101], s[0:1], 40")
    E("s_load_dwordx4 s[4:7], s[0:1], 88")
    E("s_getpc_b64 s[30:31]")
    E("L_pc0:")
    E("v_lshrrev_b32 v1, 6, v0")
    E("s_lshr_b32 s25, s2, 3")
    E("s_and_b32 s38, s25, 3")
    E("s_lshl_b32 s38, s38, 15")
    E("v_lshlrev_b32 v16, 7, v0")
    E("v_add_u32 v16, s38, v16")
    E("v_min_u32 v16, L_textend-L_pc0-4, v16")
    if opt.get("codepf", 1): E("global_load_dword a255, v16, s[30:31]")
    E("v_and_b32 v0, 63, v0")
    E("v_readfirstlane_b32 s3, v1")
    E("s_and_b32 s24, s2, 7")
    E("s_and_b32 s26, s25, 1")
    E("s_lshl_b32 s24, s24, 1")
    E("s_add_u32 s24, s24, s26")
    E("s_bfe_u32 s26, s25, 0x10001")
    E("s_lshr_b32 s27, s25, 2")
    E("s_sub_u32 s50, 15, s27")
    E("s_cmp_eq_u32 s26, 0")
    E("s_cselect_b32 s50, s50, s27")
    E("s_lshl_b32 s28, s2, 3")
    E("s_lshl_b32 s29, s3, 1")
    E("s_add_u32 s28, s28, s29")
    E("v_and_b32 v20, 1, v0")
    E("v_add_u32 v20, s28, v20")
    E("v_mul_u32_u24 v21, 896, v20")
    E("v_lshrrev_b32 v22, 1, v0")
    E("v_lshl_add_u32 v21, v22, 4, v21")
    E("s_lshl_b32 s28, s27, 7")
    E("s_lshl_b32 s29, s3, 5")
    E("s_add_u32 s28, s28, s29")
    E("v_lshrrev_b32 v1, 3, v0")
    E("v_add_u32 v1, s28, v1")
    E("v_lshlrev_b32 v1, 11, v1")
    E("v_lshrrev_b32 v16, 4, v0")
    E("v_and_b32 v17, 7, v0")
    E("v_xor_b32 v17, v17, v16")
    E("v_lshlrev_b32 v17, 4, v17")
    for i in range(4):
        E(f"v_xor_b32 v18, {64 if i & 1 else 0}, v17")
        E(f"v_add_u32 v18, v18, v1")
        E(f"v_add_u32 v{VX+i}, {i * (8 * 2048 - 1024)}, v18")
    E("s_lshl_b32 s28, s3, 4")
    E("v_add_u32 v1, s28, v16")
    E("v_lshlrev_b32 v1, 13, v1")
    E("s_lshl_b32 s28, s24, 9")
    E("v_add_u32 v1, s28, v1")
    E("v_and_b32 v17, 15, v0")
    E("v_lshlrev_b32 v18, 1, v16")
    E("v_xor_b32 v17, v17, v18")
    E("v_lshlrev_b32 v17, 4, v17")
    for i in range(4):
        E(f"v_xor_b32 v18, {128 if i & 2 else 0}, v17")
        E(f"v_add_u32 v18, v18, v1")
        E(f"v_add_u32 v{VW+i}, {i * (4 * 8192 - 1024)}, v18")
    E("s_lshl_b32 s32, s3, 12")
    E("s_mov_b32 s33, 0")
    E("s_mov_b32 s34, 0")
    for i in range(28, 32): E(f"v_mov_b32 v{i}, 0")
    E("s_waitcnt lgkmcnt(0)")
    srd(E, SX, 54, 2048 * 1024 * 2)
    E("s_cmp_eq_u32 s26, 0")
    E("s_cselect_b32 s20, s20, s22")
    E("s_cselect_b32 s21, s21, s23")
    srd(E, SW, 20, 1024 * 4096 * 2)
    def dma_setup(n):
        j = (n >> 2) & 1; t = n & 3
        if t in (0, 3):
            hx = 0 if t == 0 else 1
            slot = (2 * j + hx) * 16384
            setup = [f"s_add_u32 m0, s32, {slot}", f"s_add_u32 s35, s33, {j * 128 + hx * 1024 * 2048}"]
            d = [f"buffer_load_dwordx4 v{VX+i}, s[{SX}:{SX+3}], s35 offen offset:{i*1024}{opt.get('xflag', '')} lds @tag=ht{n}" for i in range(4)]
        else:
            hw = t - 1
            slot = 65536 + (2 * j + hw) * 16384
            setup = [f"s_add_u32 m0, s32, {slot}", f"s_add_u32 s35, s34, {j * 64 * 8192 + hw * 256}"]
            d = [f"buffer_load_dwordx4 v{VW+i}, s[{SW}:{SW+3}], s35 offen offset:{i*1024}{opt.get('wflag', ' nt')} lds @tag=ht{n}" for i in range(4)]
        return setup, d
    def reads(n):
        j = (n >> 2) & 1; t = n & 3
        out = []
        if t in (0, 3):
            hx = 0 if t == 0 else 1
            slot = (2 * j + hx) * 16384
            for ti in range(4):
                for s_ in range(2):
                    out.append(f"ds_read_b128 {r(fx(hx, ti, s_), 4)}, v{DX+s_} offset:{slot + ti * 2048}")
        else:
            hw = t - 1
            bank = hw ^ j
            slot = (2 * j + hw) * 16384
            for tj in range(4):
                for s_ in range(2):
                    for h2 in range(2):
                        out.append(f"ds_read_b64_tr_b16 {r(fw(bank, tj, s_) + 2 * h2, 2)}, v{DW+tj} offset:{slot + s_ * 8192 + h2 * 1024}")
        return out
    def dma_block(n):
        su, d = dma_setup(n)
        return su + d
    srd(E, SXI, 52, 2048 * 448 * 2)
    E(f"buffer_load_dwordx4 v[24:27], v21, s[{SXI}:{SXI+3}], 0 offen")
    E("s_mov_b32 exec_hi, 0xffff")
    E(f"buffer_load_dwordx4 v[28:31], v21, s[{SXI}:{SXI+3}], 0 offen offset:512")
    E("s_mov_b32 exec_hi, -1")
    for n in range(2): P.extend(dma_block(n))
    srd(E, SO, 6, 160 << 20)
    srd(E, SQ, 56, 448 * 4096 * 2)
    srd(E, SWO, 100, 4096 * 448 * 2)
    E("s_lshr_b32 s38, s25, 1"); E("s_lshl_b32 s38, s38, 2"); E("s_add_u32 s38, s38, s3")
    E("s_mul_i32 s30, s38, 57344"); E("s_lshl_b32 s31, s24, 9"); E("s_add_u32 s30, s30, s31")
    E("s_add_u32 s56, s56, s30"); E("s_addc_u32 s57, s57, 0")
    E("s_mul_i32 s30, s24, 229376"); E("s_lshl_b32 s31, s38, 7"); E("s_add_u32 s30, s30, s31")
    E("s_add_u32 s100, s100, s30"); E("s_addc_u32 s101, s101, 0")
    E("v_and_b32 v62, 3, v0")
    E("v_lshlrev_b32 v60, 7, v62")
    E("v_add_co_u32 v60, vcc, s56, v60"); E("v_mov_b32 v61, s57"); E("v_addc_co_u32 v61, vcc, 0, v61, vcc")
    E("v_mul_u32_u24 v62, 57344, v62")
    E("v_add_co_u32 v62, vcc, s100, v62"); E("v_mov_b32 v63, s101"); E("v_addc_co_u32 v63, vcc, 0, v63, vcc")
    E("s_mov_b64 s[30:31], 0xf0")
    E("v_cndmask_b32 v60, v60, v62, s[30:31]"); E("v_cndmask_b32 v61, v61, v63, s[30:31]")
    E("s_load_dwordx4 s[52:55], s[0:1], 56")
    E("s_load_dwordx2 s[56:57], s[0:1], 72")
    W = []
    F_ = W.append
    F_("v_lshrrev_b32 v23, 4, v20")
    F_("v_mul_u32_u24 v23, 14336, v23")
    F_("v_lshl_add_u32 v23, v22, 8, v23")
    F_("v_and_b32 v20, 15, v20")
    F_("v_lshl_add_u32 v23, v20, 4, v23")
    F_("s_lshr_b32 s28, s3, 1")
    F_("s_and_b32 s29, s3, 1")
    F_("s_lshl_b32 s30, s28, 13")
    F_("v_and_b32 v1, 15, v0")
    F_("v_lshlrev_b32 v1, 7, v1")
    F_("v_add_u32 v1, s30, v1")
    F_("v_bfe_u32 v18, v0, 1, 3")
    F_("v_xor_b32 v17, v16, v18")
    F_("v_lshlrev_b32 v17, 4, v17")
    F_(f"v_add_u32 v{DX}, v17, v1")
    F_(f"v_xor_b32 v{DX+1}, 64, v{DX}")
    F_("v_lshlrev_b32 v1, 3, v16")
    F_("v_bfe_u32 v17, v0, 2, 2")
    F_("v_add_u32 v1, v1, v17")
    F_("v_lshlrev_b32 v1, 8, v1")
    F_("v_bfe_u32 v18, v0, 4, 1")
    F_("v_lshlrev_b32 v18, 2, v18")
    F_("v_or_b32 v17, v17, v18")
    F_("v_lshlrev_b32 v17, 1, v17")
    F_("v_bfe_u32 v19, v0, 1, 1")
    F_("s_lshl_b32 s30, s29, 3")
    F_("v_add_u32 v19, s30, v19")
    F_("v_xor_b32 v19, v19, v17")
    F_("v_lshlrev_b32 v19, 4, v19")
    F_("v_and_b32 v18, 1, v0")
    F_("v_lshlrev_b32 v18, 3, v18")
    F_("v_add3_u32 v1, v1, v18, v19")
    F_(f"v_add_u32 v{DW}, 0x10000, v1")
    for tj in range(1, 4): F_(f"v_xor_b32 v{DW+tj}, {tj << 5}, v{DW}")
    F_("v_lshlrev_b32 v1, 4, v0")
    F_("s_lshl_b32 s58, s24, 20\ns_lshl_b32 s38, s27, 16\ns_add_u32 s58, s58, s38\ns_lshl_b32 s38, s28, 15\ns_add_u32 s58, s58, s38")
    F_("s_add_u32 s38, s26, 11\ns_lshl_b32 s38, s29, s38\ns_add_u32 s58, s58, s38\ns_lshl_b32 s38, s26, 24\ns_add_u32 s58, s58, s38")
    F_(f"s_cmp_eq_u32 s26, 0\ns_mov_b32 s59, 16384\ns_mov_b32 s51, {(1024 - 16384) & 0xffffffff}\ns_mov_b32 s39, 8192\n"
       f"s_cselect_b32 s59, 1024, s59\ns_cselect_b32 s51, {8192 - 1024}, s51\ns_cselect_b32 s39, 4096, s39")
    F_(f"s_lshl_b32 s49, s24, 3\ns_add_u32 s49, s49, s27\ns_lshl_b32 s49, s49, 16\ns_lshl_b32 s38, s3, 14\ns_add_u32 s49, s49, s38\ns_add_u32 s49, s49, {WS_Q}")
    F_(f"s_lshl_b32 s48, s50, 3\ns_lshl_b32 s38, s3, 1\ns_add_u32 s48, s48, s38\ns_mul_i32 s48, s48, 14336\ns_add_u32 s48, s48, {WS_XN}")
    F_(f"s_lshl_b32 s22, s24, 4\ns_add_u32 s22, s22, s50\ns_lshl_b32 s22, s22, 8\ns_add_u32 s22, s22, {WS_FLAG}")
    W += [f"v_mov_b32 v{i}, 0" for i in range(64, 68)]
    F_("s_lshl_b32 s38, s2, 2\ns_add_u32 s38, s38, s3\ns_mul_i32 s38, s38, 6\ns_sub_u32 s38, s38, 8")
    F_("v_add_u32 v56, s38, v0")
    F_("v_min_u32 v56, 5375, v56")
    F_("v_lshrrev_b32 v57, 6, v56")
    F_("v_and_b32 v56, 63, v56")
    F_("v_lshlrev_b32 v56, 7, v56")
    F_("s_waitcnt lgkmcnt(0)")
    F_("v_mov_b32 v58, s52\nv_mov_b32 v59, s53\nv_mov_b32 v62, s54\nv_mov_b32 v63, s55")
    F_("v_cmp_le_u32 vcc, 28, v57\nv_subrev_u32 v54, 28, v57\ns_nop 0\nv_cndmask_b32 v58, v58, v62, vcc\nv_cndmask_b32 v59, v59, v63, vcc\nv_cndmask_b32 v57, v57, v54, vcc")
    F_("v_mov_b32 v62, s56\nv_mov_b32 v63, s57")
    F_("v_cmp_le_u32 vcc, 28, v57\nv_subrev_u32 v54, 28, v57\ns_nop 0\nv_cndmask_b32 v58, v58, v62, vcc\nv_cndmask_b32 v59, v59, v63, vcc\nv_cndmask_b32 v57, v57, v54, vcc")
    F_("v_mul_u32_u24 v57, 57344, v57")
    F_("v_add_u32 v56, v56, v57")
    F_("v_add_co_u32 v58, vcc, v58, v56\ns_nop 1\nv_addc_co_u32 v59, vcc, 0, v59, vcc")
    F_("s_mov_b64 s[30:31], 0x3f00\nv_cndmask_b32 v60, v60, v58, s[30:31]\nv_cndmask_b32 v61, v61, v59, s[30:31]")
    F_("s_mov_b32 s52, 8192\ns_mov_b32 s53, 0")
    rest = []
    for n in range(2, 4):
        su, d = dma_setup(n)
        rest += ["\n".join(su + [d[0]])] + d[1:]
    k = 0
    for i, z in enumerate(W):
        E(z)
        if i % 6 == 3 and k < len(rest):
            E(rest[k]); k += 1
    while k < len(rest): E(rest[k]); k += 1
    P += ST.t(1)
    for i in range(8):
        E(f"v_lshlrev_b32 v{32+2*i}, 16, v{24+i}")
        E(f"v_and_b32 v{33+2*i}, 0xffff0000, v{24+i}")
    def reduce32(x, t):
        for rr in (2, 4, 8):
            E(f"v_add_f32_dpp v{x}, v{x}, v{x} row_ror:{rr} row_mask:0xf bank_mask:0xf")
        for sw in ("v_permlane16_swap_b32", "v_permlane32_swap_b32"):
            E(f"v_mov_b32 v{t}, v{x}"); E(f"{sw} v{x}, v{t}"); E(f"v_add_f32 v{x}, v{x}, v{t}")
    E("v_pk_add_f32 v[48:49], v[32:33], v[34:35]")
    for i in range(2, 8): E(f"v_pk_add_f32 v[48:49], v[48:49], v[{32+2*i}:{33+2*i}]")
    E("v_add_f32 v48, v48, v49")
    reduce32(48, 50)
    E(f"v_mul_f32 v48, {hex(f2u(-1.0/448))}, v48")
    E("v_mov_b32 v49, v48")
    for i in range(4): E(f"v_pk_add_f32 v[{32+2*i}:{33+2*i}], v[{32+2*i}:{33+2*i}], v[48:49]")
    E("s_mov_b32 exec_hi, 0xffff")
    for i in range(4, 8): E(f"v_pk_add_f32 v[{32+2*i}:{33+2*i}], v[{32+2*i}:{33+2*i}], v[48:49]")
    E("s_mov_b32 exec_hi, -1")
    E("v_pk_mul_f32 v[50:51], v[32:33], v[32:33]")
    for i in range(1, 8): E(f"v_pk_fma_f32 v[50:51], v[{32+2*i}:{33+2*i}], v[{32+2*i}:{33+2*i}], v[50:51]")
    E("v_add_f32 v50, v50, v51")
    reduce32(50, 52)
    E(f"v_mov_b32 v51, {hex(f2u(1e-5))}")
    E(f"v_fmac_f32 v51, {hex(f2u(1.0/448))}, v50")
    E("v_rsq_f32 v50, v51")
    E(f"v_mul_f32 v50, {hex(f2u(QSCALE))}, v50")
    E("v_mov_b32 v51, v50")
    for i in range(8): E(f"v_pk_mul_f32 v[{32+2*i}:{33+2*i}], v[{32+2*i}:{33+2*i}], v[50:51]")
    for i in range(8): E(f"v_cvt_pk_bf16_f32 v{24+i}, v{32+2*i}, v{33+2*i}")
    E("WAITVM @need=ht0,ht1")
    E("s_barrier")
    P.extend(reads(0)); P.extend(reads(1))
    E(f"s_mov_b32 s38, {WS_XN}")
    E(f"buffer_store_dwordx4 v[24:27], v23, s[{SO}:{SO+3}], s38 offen sc1")
    E(f"s_mov_b32 s38, {WS_XN + 8192}")
    E("s_mov_b32 exec_hi, 0xffff")
    E(f"buffer_store_dwordx4 v[28:31], v23, s[{SO}:{SO+3}], s38 offen sc1")
    E("s_mov_b32 exec_hi, -1")
    E("s_lshl_b32 s38, s2, 9")
    E(f"s_add_u32 s38, s38, {WS_FLAG}")
    E("s_cmp_eq_u32 s3, 0")
    E(f"s_cselect_b32 s38, s38, {OOB}")
    E("s_mov_b32 exec_hi, 0")
    E(f"buffer_store_dwordx4 v[64:67], v1, s[{SO}:{SO+3}], s38 offen sc1")
    E("s_mov_b32 exec_hi, -1")
    E("v_mov_b32 v0, v60"); E("v_mov_b32 v1, v61")
    P += ST.t(2) + cs('first')
    E("s_and_b32 s23, s25, 3")
    E("s_add_u32 s23, s23, 1")
    E("s_mov_b32 s36, 0")
    E("s_cmp_eq_u32 s26, 0")
    stP = sched.State()
    pro = fin(P, stP)
    A.extend(sched.texts(pro))
    A("s_cbranch_scc0 L_firstV")

    def phase_mfmas(which, g, first=False):
        j = (g >> 2) & 1; p = g & 3
        hx = 0 if p < 2 else 1
        hw = [0, 1, 1, 0][p]
        bank = hw ^ j
        m = []
        for ti in range(4):
            for tj in range(4):
                for s_ in range(2):
                    c_ = acc(which, hx, ti, hw, tj); X = fx(hx, ti, s_); W_ = fw(bank, tj, s_)
                    ci = "0" if (first and s_ == 0) else None
                    m.append(mfma16(c_, W_, X, ci) if which == 0 else mfma16(c_, X, W_, ci))
        return m
    PF = ["global_load_dword a254, v[0:1], off", "v_lshl_add_u64 v[0:1], s[52:53], 0, v[0:1]"] if opt.get("wpf", 1) else []
    def drain_quad(hx, hw):
        cv = []; stv = []; src = []
        so = 37 if hx == 0 else 40
        for n in range(8):
            idx = (hx * 2 + hw) * 16 + 2 * n
            if idx >= 60:
                t0 = 84 + 16 * (n & 1); t1 = t0 + 8
                cv += [f"v_accvgpr_read_b32 v{t0+i}, a{64 + 4 * (idx - 60) + i}" for i in range(4)]
                cv += [f"v_accvgpr_read_b32 v{t1+i}, a{64 + 4 * (idx - 60) + 4 + i}" for i in range(4)]
            else:
                t0 = 16 + 4 * idx; t1 = t0 + 4
            cv += [f"v_cvt_pk_bf16_f32 v{t0}, v{t0}, v{t0+1}", f"v_cvt_pk_bf16_f32 v{t0+1}, v{t0+2}, v{t0+3}",
                   f"v_cvt_pk_bf16_f32 v{t0+2}, v{t1}, v{t1+1}", f"v_cvt_pk_bf16_f32 v{t0+3}, v{t1+2}, v{t1+3}"]
            if n == 0:
                stv.append(f"s_mul_i32 s{so}, s13, {hw}")
                stv.append(f"s_add_u32 s{so}, s{so}, s58")
                if hx: stv.append(f"s_add_u32 s{so}, s{so}, {16 * 32768}")
            elif n & 1: stv.append(f"s_add_u32 s{so}, s{so}, s59")
            else: stv.append(f"s_add_u32 s{so}, s{so}, s14")
            src.append(t0)
            d0 = t0 if hx == 0 else HOLD + (hw * 8 + n) * 4
            stv.append(f"buffer_store_dwordx4 {r(d0, 4)}, v1, s[{SO}:{SO+3}], s{so} offen sc1 @tag=kv{hx}")
        return cv, stv, src
    HOLD = 256 + 128
    cv00, st00, _ = drain_quad(0, 0); cv01, st01, _ = drain_quad(0, 1); cv11, st11, src11 = drain_quad(1, 1); cv10, st10, src10 = drain_quad(1, 0)
    hold_mv = [f"v_accvgpr_write_b32 a{HOLD - 256 + (hw * 8 + n) * 4 + i}, v{(src11 if hw else src10)[n] + i}" for hw in (1, 0) for n in (6, 7, 0, 1, 2, 3, 4, 5) for i in range(4)]
    QV = 2; VF = 3; QD = 4
    REGION = [131072, 65536, 0, 98304, 32768]
    def region(sb): return REGION[sb % 5]
    QF = [FX[0], FW[0]]
    QACC = [16, 48]
    def q_dma(sb, u):
        cb, kh = sb >> 1, sb & 1
        ks = kh * 7 + u
        return [f"s_add_u32 m0, s31, {region(sb) + u * 4096}", f"s_mov_b32 s35, {ks * 32 * 8192 + cb * 128}",
                f"buffer_load_dwordx4 v{QV}, s[{SQ}:{SQ+3}], s35 offen lds @tag=sb{sb}"]
    def q_dmas(sb, us): return sum((q_dma(sb, u) for u in us), [])
    def q_reads(sb, dtl):
        n = sb * 4 + dtl
        return [f"ds_read_b64_tr_b16 {r(QF[n & 1] + 4 * u + 2 * h2, 2)}, v{QD+dtl} offset:{u * 4096 + h2 * 512}" for u in range(7) for h2 in range(2)]
    q_setup = ["s_mov_b32 s13, s39", "s_mov_b32 s14, s51", "s_lshl_b32 s31, s3, 10", "s_lshl_b32 s30, s3, 3", "v_lshrrev_b32 v7, 3, v0", "v_add_u32 v7, s30, v7", "v_lshlrev_b32 v7, 13, v7",
               "s_lshl_b32 s30, s24, 9", "v_add_u32 v7, s30, v7", "v_bfe_u32 v8, v0, 4, 1", "s_lshl_b32 s30, s29, 1", "v_or_b32 v8, s30, v8",
               "v_lshlrev_b32 v8, 1, v8", "v_and_b32 v9, 7, v0", "v_xor_b32 v8, v8, v9", f"v_lshl_add_u32 v{QV}, v8, 4, v7"]
    q_setup2 = ["v_lshrrev_b32 v8, 4, v0", "v_lshlrev_b32 v8, 3, v8", "v_bfe_u32 v9, v0, 2, 2", "v_add_u32 v8, v8, v9", "v_lshlrev_b32 v8, 7, v8",
                "v_bfe_u32 v9, v0, 3, 2", "v_lshlrev_b32 v9, 5, v9", "v_add_u32 v8, v8, v9", "v_and_b32 v9, 3, v0", "v_lshl_add_u32 v8, v9, 3, v8",
                f"v_add_u32 v{QD}, {region(0)}, v8"] + [f"v_xor_b32 v{QD+d}, {d << 5}, v{QD}" for d in range(1, 4)] + \
               ["s_lshl_b32 s30, s3, 6", "v_add_u32 v8, s30, v0", "v_lshrrev_b32 v9, 4, v8", "v_min_u32 v9, 1, v9", "v_lshlrev_b32 v9, 30, v9",
                f"v_lshl_add_u32 v{VF}, v8, 8, v9", "v_mov_b32 v9, 1", "s_and_b32 s15, s22, 0xfffff000"]
    adv2 = ["s_add_u32 s33, s33, 256", f"s_add_u32 s34, s34, {128 * 8192}"]
    def steady(which, g, extra=None):
        m = phase_mfmas(which, g)
        su, d = dma_setup(g + 8)
        f = [(15, su[0]), (16, su[1])] + [(17 + 4 * i, d[i]) for i in range(4)]
        f += spread(reads(g + 2), 0, 16)
        return m, f
    for which in (0, 1):
        sfx = "K" if which == 0 else "V"
        lab = "L_loop" + sfx
        A.label("L_first" + sfx)
        st = stP.copy()
        m = []; fixed = []; vm = []; rd = []
        for g in range(8):
            o = 32 * g
            m += phase_mfmas(which, g, first=(g < 4))
            fixed += [(o + 5, f"WAITVM @need=ht{g+2}\ns_waitcnt lgkmcnt(0)\ns_barrier")]
            hts = [4 + 2 * g, 5 + 2 * g] if g < 4 else [g + 8]
            it = []
            for n in hts:
                if n == 8: it += adv2
                it += dma_block(n)
            vm.append((it, o, o + 30))
            rd.append((reads(g + 2), o + 6, o + 25))
        fixed += [(254, "WAITVM @need=ht10,ht11\ns_waitcnt lgkmcnt(0)\ns_barrier"), (255, "\n".join(adv2))]
        if PF: fixed += [(200, PF[0]), (201, PF[1])]
        for nm in CST:
            if nm.startswith('f') and nm[1:].isdigit(): fixed += [(32 * int(nm[1:]) + 1, x) for x in cs(nm)]
        L = sched.pack(m, vm + rd, fixed, VB)
        fi = fin(L, st, pro)
        A.extend(sched.texts(fi))
        A.extend(cs('roll'))
        A(".p2align 6")
        A.label(lab)
        body = []
        for g in range(8):
            m, f = steady(which, g)
            if g == 0 and PF: f += [(18, PF[0]), (19, PF[1])]
            if g == 7:
                f += [(26, adv2[0]), (27, adv2[1]), (28, "s_add_u32 s36, s36, 1"), (31, "s_cmp_eq_u32 s36, s23")]
            if g & 1: f += [(30, "s_waitcnt vmcnt(16) lgkmcnt(0)"), (30, "s_barrier")]
            else: f += [(30, "s_waitcnt lgkmcnt(0)")]
            body += sched.pack(m, [], f)
        st = sched.State()
        lp = sched.finish_loop(body, st, prev=fi, report=rep)
        A.extend(sched.texts(lp))
        A(f"s_cbranch_scc0 {lab}")
        A("s_cmp_eq_u32 s36, 5")
        A(f"s_cbranch_scc0 L_hook")
        st = sched.State()
        st.vm = [(set(), f"ht{n}") for n in range(52, 56) for _ in range(4)]
        L = ST.t(3) + cs('peel')
        xl = [f"s_add_u32 s38, s48, {tt * 14336 + ks * 1024}\n"
              f"buffer_load_dwordx4 {r(XH + (tt * 14 + ks) * 4, 4)}, v1, s[{SO}:{SO+3}], s38 offen sc1"
              for ks in range(14) for tt in range(2)]
        m = []; fixed = []; rd = []
        for g in range(48, 64):
            o = (g - 48) * 32
            if g < 56:
                mm, f = steady(which, g)
                m += mm; fixed += [(o + a_, b_) for a_, b_ in f]
            else:
                m += phase_mfmas(which, g)
                if g + 2 < 64: rd.append((reads(g + 2), o, o + 22))
            if g & 1 and g < 61: fixed += [(o + 30, f"WAITVM @need=ht{g+3},ht{g+4}\ns_waitcnt lgkmcnt(0)\ns_barrier")]
            elif g == 61: fixed += [(o + 30, "s_waitcnt lgkmcnt(0)\ns_barrier")]
        if PF: fixed += [(18, PF[0])]
        fixed += [(19, "v_mbcnt_lo_u32_b32 v0, -1, 0"), (20, "v_mbcnt_hi_u32_b32 v0, -1, v0"), (22, "v_lshlrev_b32 v1, 2, v0"),
                  (23, "global_load_dword v0, v1, s[4:5] sc1 @tag=poll")]
        fixed += [(129, f"v_cmp_ne_u32 vcc, 0x01010101, v0"), (131, f"s_cbranch_vccnz {lab}_spin\n{lab}_spun:"),
                  (133, "v_lshrrev_b32 v0, 2, v1"), (135, "v_lshlrev_b32 v1, 2, v1")]
        for nm in CST:
            if nm.startswith('p') and nm[1:].isdigit(): fixed += [(32 * (int(nm[1:]) - 48) + 1, x) for x in cs(nm)]
        o = 256
        fixed += [(255, x) for x in cs('peel2')]
        fixed += [(o + 7 * 32 + 17, "WAITVM @need=sb0\ns_barrier")]
        vm = [(q_dmas(0, range(7)), o + 12, o + 40), (q_dmas(1, range(4)), o + 40, o + 62),
              (q_dmas(1, range(4, 7)), o + 64, o + 96), (q_dmas(2, range(4)), o + 96, o + 128),
              (q_dmas(2, range(4, 7)), o + 128, o + 160), (q_dmas(3, range(4)), o + 160, o + 192),
              (q_dmas(3, range(4, 7)), o + 192, o + 224), (q_dmas(4, range(7)), o + 224, o + 255)]
        streams = vm + [(xl[:12], 138, 256), (xl[12:], o + 64, o + 190), (st00, o + 190, o + 254)] + rd
        streams.append((q_setup, o + 1, o + 11))
        streams.append((q_setup2, o + 130, o + 160))
        streams.append((codepf("L_q", 4, "v5", 10 + which), o + 44, o + 62))
        streams.append((q_reads(0, 0), o + 7 * 32 + 18, o + 256))
        streams.append((cv00, o + 163, o + 190))
        streams.append((cv01, o + 195, o + 226))
        streams.append((cv11[:24], o + 227, o + 256))
        L += sched.pack(m, streams, fixed, VB)
        pe = fin(L, st, lp)
        A.extend(sched.texts(pe))
        if which == 0: A("s_branch L_q")
        stq = st
    NEGM = 4; TMP = 12; ORA = 24
    S0 = 32; P0 = 64; LS = 96; ONES = 104; O0 = 128
    QR = 256; FR = 320; PARK = 256 + 192; PARTL = 256 + 128
    WV = 112; WD = 119; AVF = 25; AV1 = 26
    def S(kt, tt): return S0 + (kt * 2 + tt) * 4
    def Pf(b, ks, tt): return P0 + 16 * b + (ks * 2 + tt) * 4
    def O(dt, tt): return O0 + (dt * 2 + tt) * 4
    def Q(tt, ds): return QR + (tt * 8 + ds) * 4
    def F(bank, i): return FR + bank * 32 + i * 4
    SWS = SO
    def dma4(kind, slot, half, tag=""):
        sreg = 30 if kind == "K" else 31
        base = (0 if kind == "K" else 65536) + slot * 32768 + half * 4096
        su = [f"s_add_u32 m0, s32, {base}", f"s_add_u32 s35, s{sreg}, {half * 4096}"]
        d = [f"buffer_load_dwordx4 v1, s[{SWS}:{SWS+3}], s35 offen offset:{i*1024} sc1 lds" + (f" @tag={tag}" if tag else "") for i in range(4)]
        return su, d
    def dma_adv(kind):
        sreg = 30 if kind == "K" else 31; cnt = 33 if kind == "K" else 34; t = 20 if kind == "K" else 21
        return [f"s_sub_u32 s{cnt}, s{cnt}, 1", f"s_cmp_eq_u32 s{cnt}, s28\ns_cselect_b32 s{t}, s23, 0x8000",
                f"s_cmp_eq_u32 s{cnt}, s8\ns_cselect_b32 s{t}, s9, s{t}", f"s_add_u32 s{sreg}, s{sreg}, s{t}",
                f"s_cmp_gt_i32 s{cnt}, 0\ns_cselect_b32 s{sreg}, s{sreg}, {OOB}"]
    def dma_blk(kind, slot, tag=""):
        out = []
        for half in range(2):
            su, d = dma4(kind, slot, half, tag); out += su + d
        return out
    def signal(dw, sdata=None):
        return f"buffer_atomic_add v{{d}}, v{{f}}, s[{SWS}:{SWS+3}], s22 offen offset:{4*dw} sc1"
    A.label("L_q")
    L = ST.t(4) + cs('q')
    ng = 32
    def q_pack(cb):
        out = []
        for pr in range(2):
            for tt in range(2):
                a0 = QACC[cb & 1] + ((2 * pr) * 2 + tt) * 4; a1 = QACC[cb & 1] + ((2 * pr + 1) * 2 + tt) * 4
                q_ = Q(tt, cb * 2 + pr) - 256
                out += [f"v_cvt_pk_bf16_f32 v{a0}, v{a0}, v{a0+1}", f"v_cvt_pk_bf16_f32 v{a0+1}, v{a0+2}, v{a0+3}",
                        f"v_cvt_pk_bf16_f32 v{a0+2}, v{a1}, v{a1+1}", f"v_cvt_pk_bf16_f32 v{a0+3}, v{a1+2}, v{a1+3}"]
                out += [f"v_accvgpr_write_b32 a{q_+i}, v{a0+i}" for i in range(4)]
        return out
    m = []; fixed = []; rstreams = []
    for n in range(ng):
        sb, dtl = n >> 2, n & 3
        cb, kh = sb >> 1, sb & 1
        for tt in range(2):
            for u in range(7):
                c_ = QACC[cb & 1] + (dtl * 2 + tt) * 4
                m.append(mfma16(c_, QF[n & 1] + 4 * u, XH + (tt * 14 + kh * 7 + u) * 4, "0" if (kh == 0 and u == 0) else None))
        if n + 1 < ng:
            sb2, d2 = (n + 1) >> 2, (n + 1) & 3
            g0 = 14 * n - 1
            if d2 == 0:
                need = f"sb{sb2}" + (",kv0" if sb2 == opt.get("sigb", 5) else "")
                fixed += [(g0, f"WAITVM @need={need}"), (g0, "s_barrier")]
            if sb2 > 0:
                delta = (region(sb2) - region(sb2 - 1)) & 0xffffffff
                fixed += [(g0 - 1, f"v_add_u32 v{QD+d2}, {hex(delta)}, v{QD+d2}")]
            rstreams.append((q_reads(sb2, d2), 14 * n, 14 * n + 12))
    G = lambda n: 14 * n
    vm = []
    for sb in (2, 3, 4): vm.append((q_dmas(sb + 3, range(7)), G(4 * sb), G(4 * sb + 3) - 2))
    SIGB = opt.get("sigb", 5)
    gs = G(4 * SIGB - 1)
    fixed += [(gs, f"buffer_atomic_add v9, v{VF}, s[{SWS}:{SWS+3}], s15 offen sc1")]
    C_ = 9
    asu = [f"s_lshl_b32 s32, s3, 13", "s_lshl_b32 s30, s24, 20", "s_add_u32 s30, s30, s32", f"s_add_u32 s31, s30, {WS_V}",
           "s_lshl_b32 s21, s27, 1",
           "s_add_u32 s29, s21, 2",
           "s_sub_u32 s20, 32, s21", f"s_min_u32 s33, s20, {NA}",
           "s_sub_u32 s25, s20, s33",
           f"s_sub_i32 s20, {C_}, s29", "s_max_i32 s20, s20, 0", "s_min_u32 s20, s20, s25",
           "s_sub_u32 s21, s25, s20",
           "s_sub_u32 s28, s33, s29", "s_add_u32 s23, s20, 1", "s_mov_b32 s8, 2", "s_add_u32 s9, s21, 1",
           "s_sub_u32 s11, s28, 1",
           f"s_cmp_eq_u32 s26, 0\ns_cselect_b32 s28, s28, s21", f"s_cmp_eq_u32 s26, 0\ns_cselect_b32 s23, s23, s11",
           f"s_cmp_eq_u32 s26, 0\ns_cselect_b32 s8, s8, -1",
           "s_lshl_b32 s23, s23, 15", "s_lshl_b32 s9, s9, 15",
           "s_add_u32 s34, s29, s25",
           f"s_cmp_eq_u32 s26, 0\ns_cselect_b32 s29, s33, s29", f"s_cmp_eq_u32 s26, 0\ns_cselect_b32 s33, s33, s34", "s_mov_b32 s34, s33",
           "s_mov_b32 s10, 0x7fff", "s_mov_b32 s11, 0",
           "s_add_u32 s20, s6, s22\ns_addc_u32 s21, s7, 0"]
    fixed += [(G(19) + 1 + 2 * i, x) for i, x in enumerate(asu)]
    gp = G(opt.get("pollg", 28))
    fixed += [(gp - 30, "s_load_dword s52, s[20:21], 0 glc")]
    fixed += [(gp - 2, "s_waitcnt lgkmcnt(0)"), (gp - 1, "s_cmp_ge_u32 s52, 16\ns_cbranch_scc0 L_spin1\nL_spun1:")]
    vm.append((dma_blk("K", 1, "k0") + dma_adv("K") + dma_blk("V", 1, "v0") + dma_adv("V"), gp + 1, G(32)))
    if opt.get("qst"):
        for k_, g_ in zip((8, 9, 1), opt["qst"]): fixed += [(G(g_) + 2, x) for x in ST.t(k_)]
    for nm in CST:
        if nm.startswith("g"): fixed += [(G(int(nm[1:])) + 2, x) for x in cs(nm)]
    if opt.get("no_st01"): st01 = [x for x in st01 if not x.startswith("buffer")]
    streams = vm + [(st01, 4, G(opt.get("st01end", 12)))] + rstreams
    streams.append((cv11[24:] + cv10, 4, G(8)))
    for cb in range(3): streams.append((q_pack(cb), G(8 * cb + 8) + 3, G(8 * cb + 16) - 2))
    L += sched.pack(m, streams, fixed, VB)
    L += q_pack(3)
    L += ST.t(5) + cs('qend')
    def kreads(slot, kt, bank):
        return [f"ds_read_b128 {r(F(bank, ds), 4)}, v1 offset:{slot * 32768 + (kt * 8 + ds) * 1024}" for ds in range(8)]
    def vreads(slot, grp, bank):
        return [f"ds_read_b128 {r(F(bank, d * 2 + ks), 4)}, v2 offset:{slot * 32768 + (ks * 16 + 4 * grp + d) * 1024}"
                for d in range(4) for ks in range(2)]
    def qk_group(kt, bank, cinit):
        m = []
        for tt in range(2):
            for ds in range(8):
                ci = None if ds else ("0" if cinit == 0 else NEGM + 4 * tt)
                m.append(mfma16(S(kt, tt), F(bank, ds), Q(tt, ds), ci))
        return m
    def pv_group(grp, bank, pb):
        return [mfma16(O(4 * grp + d, tt), F(bank, d * 2 + ks), Pf(pb, ks, tt)) for d in range(4) for tt in range(2) for ks in range(2)]
    def l_mfmas(pb):
        return [mfma16(LS + 4 * tt, ONES, Pf(pb, ks, tt)) for tt in range(2) for ks in range(2)]
    def softmax(pb):
        out = []; n = 0
        for kt in range(4):
            for tt in range(2):
                t = TMP + 4 * (n % 3); s_ = S(kt, tt); d = Pf(pb, kt >> 1, tt) + 2 * (kt & 1)
                out += [f"v_exp_f32 v{t+i}, v{s_+i}" for i in range(4)]
                out += [f"v_cvt_pk_bf16_f32 v{d}, v{t}, v{t+1}", f"v_cvt_pk_bf16_f32 v{d+1}, v{t+2}, v{t+3}"]
                out += [f"v_or_b32 v{ORA}, v{d}, v{d+1}" if n == 0 else f"v_or3_b32 v{ORA}, v{ORA}, v{d}, v{d+1}"]
                n += 1
        return out
    def smtile(pb, n): return softmax(pb)[7 * n:7 * n + 7]
    def mask_code(base):
        L = [f"s_sub_u32 s38, {base}, s29", "s_lshl_b32 s38, s38, 6", "s_lshl_b32 s39, s3, 5", "s_sub_u32 s38, s39, s38",
             "v_add_u32 v12, s38, v3", "v_cvt_f32_i32 v12, v12", "v_add_f32 v12, 0.5, v12", f"v_mul_f32 v12, {hex(f2u(1e30))}, v12"]
        n = 0
        for dd in range(-1, 4):
            for rr in range(4):
                c = rr + 16 * dd
                t = 13 + (n % 4); n += 1
                L.append(f"v_add_f32 v{t}, {hex(f2u(-c * 1e30))}, v12")
                for tt in range(2):
                    kt = dd + tt
                    if 0 <= kt < 4: L.append(f"v_min_f32 v{S(kt, tt)+rr}, v{S(kt, tt)+rr}, v{t}")
        return L
    def rescale(init, pb):
        L = []
        for tt in range(2):
            m_ = 12 + 2 * tt
            regs = [S(kt, tt) + i for kt in range(4) for i in range(4)]
            L.append(f"v_max3_f32 v{m_}, v{regs[0]}, v{regs[1]}, v{regs[2]}")
            for k in range(3, 15, 2): L.append(f"v_max3_f32 v{m_}, v{m_}, v{regs[k]}, v{regs[k+1]}")
            L.append(f"v_max_f32 v{m_}, v{m_}, v{regs[15]}")
        for sw in ("v_permlane16_swap_b32", "v_permlane32_swap_b32"):
            for tt in range(2): L.append(f"v_mov_b32 v{13+2*tt}, v{12+2*tt}")
            for tt in range(2): L.append(f"{sw} v{12+2*tt}, v{13+2*tt}")
            for tt in range(2): L.append(f"v_max_f32 v{12+2*tt}, v{12+2*tt}, v{13+2*tt}")
        for tt in range(2):
            m_ = 12 + 2 * tt
            L.append(f"v_sub_f32 v{m_}, {hex(f2u(-B0))}, v{m_}")
            if not init: L.append(f"v_min_f32 v{m_}, 0, v{m_}")
            L.append(f"v_mov_b32 v{m_+1}, v{m_}")
        for tt in range(2):
            m_ = 12 + 2 * tt
            for i in range(2):
                a_ = NEGM + 4 * tt + 2 * i
                if init: L.append(f"v_pk_mov_b32 v[{a_}:{a_+1}], v[{m_}:{m_+1}], v[{m_}:{m_+1}]")
                else: L.append(f"v_pk_add_f32 v[{a_}:{a_+1}], v[{a_}:{a_+1}], v[{m_}:{m_+1}]")
            for kt in range(4):
                for i in range(2):
                    a_ = S(kt, tt) + 2 * i
                    L.append(f"v_pk_add_f32 v[{a_}:{a_+1}], v[{a_}:{a_+1}], v[{m_}:{m_+1}]")
        if not init:
            for tt in range(2):
                m_ = 12 + 2 * tt
                L.append(f"v_exp_f32 v{m_}, v{m_}")
                L.append(f"v_mov_b32 v{m_+1}, v{m_}")
                for rg in [O(dt, tt) + 2 * i for dt in range(16) for i in range(2)] + [LS + 4 * tt, LS + 4 * tt + 2]:
                    L.append(f"v_pk_mul_f32 v[{rg}:{rg+1}], v[{rg}:{rg+1}], v[{m_}:{m_+1}]")
        L += softmax(pb)
        return L
    zeroO = [f"v_mov_b32 v{i}, 0" for i in range(O0, O0 + 128)] + [f"v_mov_b32 v{i}, 0" for i in range(LS, LS + 8)]
    zeroOpk = [f"v_pk_mov_b32 v[{i}:{i+1}], 0, 0" for i in list(range(O0, O0 + 128, 2)) + list(range(LS, LS + 8, 2))]
    L += [f"v_mov_b32 v{AVF}, v{VF}", "v_add_u32 v2, 0x10000, v1", f"v_mov_b32 v{AV1}, 1"]
    L += ["WAITVM @need=k0", "s_barrier"]
    L += kreads(1, 0, 0)
    m = []; streams = []
    for kt in range(4): m += qk_group(kt, kt & 1, 0)
    qst = [f"s_cmp_eq_u32 s26, 0\ns_cselect_b32 s38, s49, {OOB}"]
    for n in range(16):
        if n and n % 4 == 0: qst.append("s_add_u32 s38, s38, 4096")
        qst.append(f"buffer_store_dwordx4 {r(QR + 4 * n, 4)}, v1, s[{SWS}:{SWS+3}], s38 offen offset:{(n % 4) * 1024} sc1 @tag=qs")
    streams.append((dma_blk("K", 0, "k1") + dma_adv("K"), 0, 34))
    streams.append((qst[:10], 34, 63))
    for kt in range(3): streams.append((kreads(1, kt + 1, (kt + 1) & 1), 16 * kt, 16 * kt + 11))
    setup = ["v_lshrrev_b32 v12, 4, v0", "v_lshlrev_b32 v12, 2, v12", "v_and_b32 v13, 15, v0", "v_sub_u32 v3, v13, v12"] + \
            [f"v_mov_b32 v{ONES+i}, 0x3f803f80" for i in range(4)]
    streams.append((hold_mv + setup, 0, 63))
    L += sched.pack(m, streams, [], VB)
    L += ["s_barrier"]
    def mixv(valu, vm, every):
        out = []; k = 0; groups = []; cur = []
        for x in vm:
            cur.append(x)
            if x.startswith("buffer"): groups.append(cur); cur = []
        if cur: groups[-1] += cur
        for i, x in enumerate(valu):
            out.append(x)
            if i % every == every - 1 and k < len(groups): out += groups[k]; k += 1
        for g in groups[k:]: out += g
        return out
    L += mixv(zeroOpk, qst[10:], 8)
    L += ["s_mov_b32 s36, 3", f"s_cmp_eq_u32 s26, 0\ns_cselect_b32 s37, 2, 3", "s_cmp_eq_u32 s25, 0\ns_cselect_b32 s37, 1, s37"]
    L += ST.t(6) + cs('qk0')
    qq = fin(L, stq, pe)
    A.extend(sched.texts(qq))
    A("s_cmp_lt_u32 s29, s36")
    A("s_cbranch_scc0 L_nomask0")
    emit(mask_code(2))
    A.label("L_nomask0")
    L = rescale(True, 1)
    L.append("s_mov_b32 s38, 0x12492493")
    for p in range(7):
        L += [f"v_add_u32 v12, {p * 64}, v0", "v_mul_hi_u32 v13, v12, s38", "v_mul_u32_u24 v14, 14, v13", "v_sub_u32 v12, v12, v14",
              "v_mul_u32_u24 v13, 896, v13", "v_lshl_add_u32 v12, v12, 4, v13", f"v_subrev_u32 v{WV+p}, {(p % 4) * 1024}, v12"]
    L += ["v_lshrrev_b32 v12, 2, v0", "v_mul_u32_u24 v12, 224, v12", "v_and_b32 v13, 3, v0", f"v_lshl_add_u32 v{WD}, v13, 3, v12"]
    L = mixv(L, dma_blk("K", 1) + dma_adv("K"), 16)
    L += ["s_lshl_b32 s38, 1, s27", f"v_mov_b32 v{AV1}, s38", "s_waitcnt vmcnt(8)", "s_barrier"]
    L += kreads(0, 0, 0)
    L += [f"s_cmp_eq_u32 s26, 0\ns_cselect_b32 s38, s15, {OOB}",
          f"buffer_atomic_add v{AV1}, v{AVF}, s[{SWS}:{SWS+3}], s38 offen offset:8 sc1"]
    k4 = [i for i, x in enumerate(st11) if x.startswith("buffer")][opt.get('hp', [6])[0] - 1]
    L += st11[:k4 + 1] + ["s_waitcnt lgkmcnt(0)"]
    L += ST.t(7) + cs('att')
    emit(L)
    A("s_branch L_top1")
    place = lambda m, f: sched.pack(m, [], f, False)
    def phaseA(par):
        ks_ = (par + 1) & 1
        m = []
        for kt in range(4): m += qk_group(kt, kt & 1, 1)
        f = []
        f += list(zip([0, 1, 3, 4, 5, 7, 8, 9], kreads(ks_, 1, 1)))
        f += list(zip([11, 12, 13, 15, 16, 17, 19, 20], kreads(ks_, 2, 0)))
        f += list(zip([24, 25, 27, 28, 29, 31, 32, 33], kreads(ks_, 3, 1)))
        su0, d0 = dma4("V", ks_, 0); su1, d1 = dma4("V", ks_, 1)
        f += [(0, su0[0]), (1, su0[1])] + [(2 + 4 * i, d0[i]) for i in range(4)]
        f += [(16, su1[0]), (17, su1[1])] + [(18 + 4 * i, d1[i]) for i in range(4)]
        f += list(zip([43, 45, 48, 50, 54], dma_adv("V")))
        t0 = smtile(par ^ 1, 0); t1 = smtile(par ^ 1, 1)
        f += list(zip([21, 23, 34, 35, 24, 38, 39], t0))
        f += [(38, "s_waitcnt vmcnt(16) lgkmcnt(0)"), (38, "s_barrier")]
        su0, d0 = dma4("K", ks_, 0)
        f += [(37, su0[0]), (39, su0[1])] + [(40 + 6 * i, d0[i]) for i in range(4)]
        f += list(zip([36, 37, 42, 44, 41, 47, 49], t1))
        f += [(47 + 2 * i, x) for i, x in enumerate(vreads(par, 0, 0))]
        f += [(62, "s_cmp_le_u32 s29, s36")]
        return place(m, f)
    def phaseB(par):
        mm = l_mfmas(par)
        for grp in range(4): mm += pv_group(grp, grp & 1, par)
        f = []
        for grp in range(3):
            f += [(5 + 16 * grp + 2 * i, x) for i, x in enumerate(vreads(par, grp + 1, (grp + 1) & 1))]
        f += [(56, "s_waitcnt vmcnt(16) lgkmcnt(0)"), (56, "s_barrier")]
        f += [(57 + i, x) for i, x in enumerate(kreads(par, 0, 0))]
        dg = [6, 20, 34, 48]
        eg = [g for g in range(0, 56, 2) if g not in dg]
        su1, d1 = dma4("K", (par + 1) & 1, 1)
        f += [(1, su1[0]), (2, su1[1])] + list(zip(dg, d1))
        f += list(zip([50, 58, 60, 62, 63], dma_adv("K")))
        for t in range(2, 8):
            x = smtile(par ^ 1, t); e = eg[4 * (t - 2):4 * (t - 2) + 4]
            f += list(zip(e, x[:4])) + [(e[1] + 1, x[4]), (e[3] + 1, x[5]), (e[3] + 3, x[6])]
        f += [(59, f"v_and_b32 v{ORA}, 0x40004000, v{ORA}"), (61, f"v_cmp_ne_u32 vcc, 0, v{ORA}")]
        f += [(0, "s_sub_u32 s29, s29, 1"), (66, "s_cmp_le_u32 s29, s10")]
        return place(mm, f)
    st = sched.State()
    whole = phaseA(0) + ["LBL_B0:"] + phaseB(0) + ["LBL_A1:"] + phaseA(1) + ["LBL_B1:"] + phaseB(1)
    lp = sched.texts(sched.finish_loop(whole, st, report=rep))
    iB0 = lp.index("LBL_B0:"); iA1 = lp.index("LBL_A1:"); iB1 = lp.index("LBL_B1:")
    seg = {("A", 0): lp[:iB0], ("B", 0): lp[iB0 + 1:iA1], ("A", 1): lp[iA1 + 1:iB1], ("B", 1): lp[iB1 + 1:]}
    A(".p2align 6")
    for par in range(2):
        A.label(f"L_top{par}")
        A.extend(seg[("A", par)])
        A(f"s_cbranch_scc1 L_mask{par}")
        A.label(f"L_B{par}")
        A.extend(seg[("B", par)])
        A(f"s_cbranch_scc1 L_endg{par}")
        A("s_cbranch_vccnz L_rare0" if par == 0 else "s_cbranch_vccz L_top0")
    PL = NA & 1
    hs = st11 + st10
    def split_stores(lst, cnts):
        out = []; cur = []; k = 0; c = 0
        for x in lst:
            cur.append(x)
            if x.startswith("buffer"):
                c += 1
                if c == cnts[k]: out.append(cur); cur = []; c = 0; k += 1
        return out
    HP = opt.get('hp', [6, 5, 5])
    hparts = split_stores(hs, HP)[1:]
    JS = len(hparts)
    for par in (1, 0):
        A.label(f"L_rare{par}")
        A("s_nop 7")
        emit(rescale(False, par ^ 1))
        A("s_cmp_eq_u32 s29, 1")
        A(f"s_cbranch_scc0 L_top{par ^ 1}")
        A.label(f"L_one{par}")
        if par == 1:
            A("s_cmp_eq_u32 s37, 3")
            A("s_cbranch_scc1 L_preswitch")
        A(f"s_branch L_last{par ^ 1}")
        A.label(f"L_endg{par}")
        A("s_cmp_eq_u32 s10, 1")
        A(f"s_cbranch_scc1 L_endh{par}")
        A("s_add_u32 s11, s11, 1")
        for j in range(6):
            if ((j + 1) & 1) != par: continue
            A(f"s_cmp_eq_u32 s11, {j + 1}")
            A(f"s_cbranch_scc0 L_hk{j}_n")
            if opt.get('hst') and j in opt['hst']: A.extend(ST.t((8, 9, 1)[opt['hst'].index(j)]))
            if j < JS:
                emit(hparts[j])
            elif j == JS:
                A("v_mov_b32 v12, 1")
                A(f"buffer_atomic_add v12, v{AVF}, s[{SWS}:{SWS+3}], s15 offen offset:4 sc1")
            elif j == 5:
                A("s_add_u32 s38, s6, s22"); A("s_addc_u32 s39, s7, 0")
                A("s_load_dword s38, s[38:39], 4 glc")
                A("s_mov_b32 s10, 1")
                A("s_waitcnt lgkmcnt(0)")
                A("s_cmp_ge_u32 s38, 16")
                A("s_cbranch_scc0 L_spin2")
                A.label("L_spun2")
            A.label(f"L_hk{j}_n")
        A("s_cmp_le_u32 s29, 1")
        A(f"s_cbranch_scc1 L_endh{par}")
        A(f"s_cbranch_vccnz L_rare{par}")
        A(f"s_branch L_top{par ^ 1}")
        A.label(f"L_endh{par}")
        if par == 0:
            A("s_cmp_eq_u32 s29, 0")
            A("s_cbranch_scc1 L_switch")
        A(f"s_cbranch_vccnz L_rare{par}")
        A(f"s_branch L_one{par}")
        A.label(f"L_mask{par}")
        if par == 1:
            A("s_lshl_b32 s38, s37, 2")
            A("s_add_u32 s38, s38, s29")
            A("s_cmp_eq_u32 s38, 14")
            A("s_cbranch_scc1 L_getq")
            A.label("L_gotq")
        A("s_nop 7")
        emit(codepf(f"L_last{PL ^ 1}", 13, "v27", 20 + par))
        emit(mask_code(3) + smtile(par ^ 1, 0) + smtile(par ^ 1, 1))
        A(f"s_branch L_B{par}")
    def vpoll(lab, dw, test, done, va=12, vd=13):
        A.label(lab)
        A("s_mov_b32 s12, 0")
        A("s_add_u32 s20, s6, s22"); A("s_addc_u32 s21, s7, 0")
        A.label(lab + "_l")
        A(f"s_load_dword s38, s[20:21], {4*dw} glc")
        A("s_waitcnt lgkmcnt(0)")
        A(test)
        A(f"s_cbranch_scc1 {done}")
        A("s_add_u32 s12, s12, 1")
        A(f"s_cmp_gt_u32 s12, {SPINMAX}")
        A(f"s_cbranch_scc1 {done}")
        A(f"s_sleep {opt.get('sleep', 2)}")
        A(f"s_branch {lab}_l")
    A.label("L_getq")
    A("s_add_u32 s20, s6, s22"); A("s_addc_u32 s21, s7, 0")
    A("s_load_dword s38, s[20:21], 8 glc")
    A("s_waitcnt lgkmcnt(0)")
    A("s_bitcmp1_b32 s38, s27")
    A("s_cbranch_scc1 L_getq2")
    vpoll("L_getq_p", 2, "s_bitcmp1_b32 s38, s27", "L_getq2")
    A.label("L_getq2")
    A("s_mov_b32 s38, s49")
    for n in range(16):
        if n and n % 4 == 0: A("s_add_u32 s38, s38, 4096")
        A(f"buffer_load_dwordx4 {r(QR + 4 * n, 4)}, v1, s[{SWS}:{SWS+3}], s38 offen offset:{(n % 4) * 1024} sc1")
    A("s_branch L_gotq")
    A.label("L_preswitch")
    for i in range(8): A(f"v_mov_b32 v{NEGM+i}, 0")
    A("s_mov_b32 s36, 0")
    A(f"s_cmp_le_u32 s11, {JS}")
    A("s_cbranch_scc1 L_presw2")
    A("s_waitcnt vmcnt(4)")
    A("s_branch L_top0")
    A.label("L_presw2")
    A(f"s_waitcnt vmcnt({4 + min(HP[1:])})")
    A("s_branch L_top0")
    CT = 32
    def ctx(tt, ds): return CT + (tt * 8 + ds) * 4
    def pack_plain(mode):
        L = [f"v_rcp_f32 v{12+2*tt}, v{LS+4*tt}" for tt in range(2)] + [f"v_mov_b32 v{13+2*tt}, v{12+2*tt}" for tt in range(2)]
        n = 0
        for tt in range(2):
            for ds in range(8):
                dst = ctx(tt, ds) if mode == "ctx" else O(2 * ds, tt)
                for h in range(2):
                    o = O(2 * ds + h, tt)
                    for i in range(2):
                        L.append(f"v_pk_mul_f32 v[{o+2*i}:{o+2*i+1}], v[{o+2*i}:{o+2*i+1}], v[{12+2*tt}:{13+2*tt}]")
                    for i in range(2):
                        L.append(f"v_cvt_pk_bf16_f32 v{dst+2*h+i}, v{o+2*i}, v{o+2*i+1}")
                if mode == "park":
                    L += [f"v_accvgpr_write_b32 a{PARK - 256 + 4 * n + i}, v{dst+i}" for i in range(4)]
                if mode == "store":
                    if n and n % 4 == 0: L.append("s_add_u32 s41, s41, 4096")
                    L.append(f"buffer_store_dwordx4 v[{dst}:{dst+3}], v1, s[{SWS}:{SWS+3}], s41 offen offset:{(n % 4) * 1024} sc1 @tag=ps")
                n += 1
        return L
    A.label("L_switch")
    if not (opt.get("qst") or opt.get("hst")): A.extend(ST.t(8))
    A("s_nop 7")
    emit(pack_plain("park") + zeroOpk + rescale(True, 1) + ["s_mov_b32 s29, s25", "s_mov_b32 s37, 0"] + (ST.t(9) if not (opt.get("qst") or opt.get("hst")) else []))
    A("s_cmp_eq_u32 s29, 1")
    A("s_cbranch_scc0 L_top1")
    A("s_branch L_last1")
    OREG = [0, 32768, 131072, 65536, 98304]
    def oregion(sb): return OREG[sb % 5]
    def w_dma(sb):
        c, kh = sb >> 1, sb & 1
        out = []
        for p in range(7):
            if p % 4 == 0:
                out.append(f"s_add_u32 m0, s43, {oregion(sb) + p * 1024}")
                out.append(f"s_add_u32 s35, s48, {kh * 4 * 32 * 896 + c * 224}")
            out.append(f"buffer_load_dwordx4 v{WV+p}, s[{SWO}:{SWO+3}], s35 offen offset:{(p % 4) * 1024} lds @tag=wb{sb}")
        return out
    def lastB(par, vmem):
        mm = l_mfmas(par)
        for grp in range(4): mm += pv_group(grp, grp & 1, par)
        streams = [(vmem, 0, 67)]
        for grp in range(3): streams.append((vreads(par, grp + 1, (grp + 1) & 1), 4 + 16 * grp, 4 + 16 * grp + 12))
        return sched.pack(mm, streams, [], VB)
    mix = mixv
    dm = [w_dma(sb) for sb in range(8)]
    pl = [f"buffer_load_dwordx4 v[108:111], v1, s[{SWS}:{SWS+3}], s42 offen sc1"]
    for n in range(16):
        if n and n % 4 == 0: pl.append("s_add_u32 s41, s41, 4096")
        pl.append(f"buffer_load_dwordx4 {r(PARTL + 4 * n, 4)}, v1, s[{SWS}:{SWS+3}], s41 offen offset:{(n % 4) * 1024} sc1")
    for par in (PL ^ 1, PL):
        A.label(f"L_last{par}")
        if NA <= 18 and par != PL:
            A("s_endpgm"); continue
        A.extend(ST.t(10) + cs('last'))
        L = ["s_add_u32 s20, s6, s22", "s_addc_u32 s21, s7, 0", "s_load_dword s52, s[20:21], 12 glc",
             "s_lshl_b32 s41, s24, 3", "s_add_u32 s41, s41, s27", "s_lshl_b32 s42, s41, 12", "s_lshl_b32 s38, s3, 10", "s_add_u32 s42, s42, s38",
             f"s_add_u32 s42, s42, {WS_PART + (8 << 20)}", "s_lshl_b32 s41, s41, 16", "s_lshl_b32 s38, s3, 14", "s_add_u32 s41, s41, s38",
             f"s_add_u32 s41, s41, {WS_PART}",
             "s_mul_i32 s43, s3, 7168", "s_mul_i32 s48, s24, 229376", f"s_mul_i32 s38, s3, {32 * 896}", "s_add_u32 s48, s48, s38",
             "s_lshl_b32 s51, s24, 7", "s_lshl_b32 s38, s50, 3", "s_add_u32 s51, s51, s38", "s_lshl_b32 s38, s3, 1", "s_add_u32 s51, s51, s38",
             "s_mul_i32 s51, s51, 14336", f"s_add_u32 s51, s51, {WS_Y}",
             "s_waitcnt vmcnt(0) lgkmcnt(0)", "s_barrier"] + vreads(par, 0, 0)
        stL = sched.State()
        l0 = fin(L, stL)
        A.extend(sched.texts(l0))
        if par == PL:
            A("s_cmp_eq_u32 s37, 2")
            A("s_cselect_b32 s38, s52, 0")
            A("s_bitcmp1_b32 s38, s27")
            A("s_cbranch_scc1 L_lastC")
        stN = stL.copy()
        L = lastB(par, dm[0] + dm[1] + dm[2][:5])
        L += ["s_barrier", "s_nop 3"]
        ln = fin(L, stN, l0)
        A.extend(sched.texts(ln))
        if par != PL: A("s_branch L_fin1")
    A("s_cmp_eq_u32 s37, 0")
    A("s_cbranch_scc1 L_pub")
    A("s_cmp_eq_u32 s37, 2")
    A("s_cbranch_scc1 L_late")
    A.label("L_fin1")
    st1 = stN.copy()
    emit(mix(pack_plain("ctx"), dm[2][5:] + dm[3] + dm[4], 7), st1, ln)
    A("s_branch L_oproj")
    A.label("L_pub")
    st0 = stN.copy()
    L = [f"v_mov_b32 v108, v{NEGM}", f"v_mov_b32 v109, v{LS}", f"v_mov_b32 v110, v{NEGM+4}", f"v_mov_b32 v111, v{LS+4}",
         f"buffer_store_dwordx4 v[108:111], v1, s[{SWS}:{SWS+3}], s42 offen sc1 @tag=ps"]
    L += pack_plain("store")
    L += mix([f"v_accvgpr_read_b32 v{CT+i}, a{PARK-256+i}" for i in range(64)], dm[2][5:], 14)
    L += ["WAITVM @need=ps", "s_barrier", f"buffer_atomic_add v{AV1}, v{AVF}, s[{SWS}:{SWS+3}], s15 offen offset:12 sc1"]
    L += dm[3] + dm[4]
    emit(L, st0, ln)
    A("s_branch L_oproj")
    cb = []
    for tt in range(2):
        nb, lb = 108 + 2 * tt, 109 + 2 * tt
        cA, cB = 12 + 4 * tt, 14 + 4 * tt
        cb += [f"v_min_f32 v20, v{NEGM+4*tt}, v{nb}", f"v_sub_f32 v21, v20, v{NEGM+4*tt}", f"v_sub_f32 v22, v20, v{nb}",
               "v_exp_f32 v21, v21", "v_exp_f32 v22, v22", f"v_mul_f32 v22, v22, v{lb}", f"v_fma_f32 v20, v21, v{LS+4*tt}, v22",
               "v_rcp_f32 v20, v20", f"v_mul_f32 v{cA}, v21, v20", f"v_mul_f32 v{cB}, v22, v20",
               f"v_mov_b32 v{cA+1}, v{cA}", f"v_mov_b32 v{cB+1}, v{cB}"]
    n = 0
    for tt in range(2):
        cA, cB = 12 + 4 * tt, 14 + 4 * tt
        for ds in range(8):
            for h in range(2):
                o = O(2 * ds + h, tt)
                for i in range(2):
                    c_ = ctx(tt, ds) + 2 * h + i
                    t = 120 + 2 * (n % 4); n += 1
                    cb += [f"v_accvgpr_read_b32 v{c_}, a{PARTL - 256 + c_ - CT}",
                           f"v_pk_mul_f32 v[{o+2*i}:{o+2*i+1}], v[{o+2*i}:{o+2*i+1}], v[{cA}:{cA+1}]",
                           f"v_lshlrev_b32 v{t}, 16, v{c_}", f"v_and_b32 v{t+1}, 0xffff0000, v{c_}",
                           f"v_pk_fma_f32 v[{t}:{t+1}], v[{t}:{t+1}], v[{cB}:{cB+1}], v[{o+2*i}:{o+2*i+1}]",
                           f"v_cvt_pk_bf16_f32 v{c_}, v{t}, v{t+1}"]
    A.label("L_late")
    emit(dm[2][5:])
    vpoll("L_part_p", 3, "s_bitcmp1_b32 s38, s27", "L_late2")
    A.label("L_late2")
    emit(pl + mix(cb, dm[3] + dm[4], 24), sched.State())
    A("s_branch L_oproj")
    A.label("L_lastC")
    stC = stL.copy()
    L = lastB(PL, pl) + ["s_barrier"] + dm[0][:6] + mix(cb, dm[0][6:] + dm[1] + dm[2] + dm[3] + dm[4], 13)
    emit(L, stC, l0)
    A.label("L_oproj")
    st = sched.State()
    st.vm = [(set(), f"wb{sb}") for sb in range(5) for _ in range(7)]
    YA = [128, 184]
    def ya(c, mt, tt): return YA[c & 1] + (mt * 2 + tt) * 4
    def wf(n, u): return FR + (n & 3) * 16 + u * 4
    groups = [(sb, mt) for sb in range(8) for mt in range(7)]
    def w_pre(n):
        sb, mt = groups[n]
        pre = []
        if mt == 0:
            pre += [f"WAITVM @need=wb{sb}", "s_barrier"]
            if sb > 0: pre.append(f"v_add_u32 v{WD}, {hex((oregion(sb) - oregion(sb - 1)) & 0xffffffff)}, v{WD}")
        return pre
    def w_reads(n):
        sb, mt = groups[n]
        return [f"ds_read_b64_tr_b16 {r(wf(n, u) + 2 * h2, 2)}, v{WD} offset:{u * 7168 + h2 * 16 * 224 + mt * 32}" for u in range(4) for h2 in range(2)]
    def y_drain(pair):
        out = []
        t0, t1 = 2 * pair, 2 * pair + 1
        for tt in range(2):
            a0 = ya(t0 // 7, t0 % 7, tt); a1 = ya(t1 // 7, t1 % 7, tt)
            out += [f"v_cvt_pk_bf16_f32 v{a0}, v{a0}, v{a0+1}", f"v_cvt_pk_bf16_f32 v{a0+1}, v{a0+2}, v{a0+3}",
                    f"v_cvt_pk_bf16_f32 v{a0+2}, v{a1}, v{a1+1}", f"v_cvt_pk_bf16_f32 v{a0+3}, v{a1+2}, v{a1+3}",
                    f"s_add_u32 s38, s51, {tt * 14336 + pair * 1024}\n"
                    f"buffer_store_dwordx4 v[{a0}:{a0+3}], v1, s[{SWS}:{SWS+3}], s38 offen" + opt.get("yflag", " sc1") + " @tag=ys"]
        return out
    L = ST.t(11) + cs('oproj')
    for n in range(2): L += w_pre(n) + w_reads(n)
    m = []; fixed = []; rs_ = []; vm = []; dr = []
    tail = []
    for n, (sb, mt) in enumerate(groups):
        c, kh = sb >> 1, sb & 1
        for tt in range(2):
            for u in range(4):
                m.append(mfma16(ya(c, mt, tt), wf(n, u), ctx(tt, kh * 4 + u), "0" if (kh == 0 and u == 0) else None))
        if n + 2 < len(groups):
            fixed += [(8 * n - 1, x) for x in w_pre(n + 2)]
            rs_.append((w_reads(n + 2), 8 * n, 8 * n + 7))
    for sb in (2, 3, 4): vm.append((dm[sb + 3], 56 * sb, 56 * sb + 38))
    for c in range(4):
        prs = [p for p in range(14) if (2 * p + 1) // 7 == c]
        items = sum((y_drain(p) for p in prs), [])
        if c < 3:
            dr.append((items, 112 * (c + 1) + 3, 112 * (c + 2) - 10))
        else:
            for p in prs:
                n_end = [n for n, (sb, mt) in enumerate(groups) if sb == 7 and 21 + mt == 2 * p + 1][0]
                if n_end + 2 < len(groups): dr.append((y_drain(p), 8 * (n_end + 1) + 3, 8 * (n_end + 3) - 1))
                else: tail += y_drain(p)
    if opt.get("fuse", 1): vm.append((codepf("L_tail", 12, "v13", 30), 20, 60))
    if opt.get("x_noy"): dr = [([x for x in it if "buffer_store" not in x], a_, b_) for it, a_, b_ in dr]
    if opt.get("x_nord"): rs_ = []
    L += sched.pack(m, vm + dr + rs_, fixed, VB)
    L += tail
    L += ST.t(12) + cs('oend')
    oo = fin(L, st)
    A.extend(sched.texts(oo))
    tcold = None
    if opt.get("fuse", 1):
        A.label("L_tail")
        tcold = tailmod.gen_tail(A, opt, ST0, cs, rep, st, oo, SPINMAX)
    if ST.en:
        A("s_waitcnt vmcnt(0)")
        A.extend(ST.t(13) + cs('end'))
        if opt.get("dbgout") is not None:
            A("s_waitcnt lgkmcnt(0)")
            A(f"s_cmp_eq_u32 s2, {opt['dbgout']}"); A("s_cbranch_scc0 L_end")
            A("s_cmp_eq_u32 s3, 0"); A("s_cbranch_scc0 L_end")
            A("v_mov_b32 v0, 0")
            for i in range(1, 14):
                A(f"s_sub_u32 s38, s{60+2*i}, s60"); A("v_mov_b32 v1, s38"); A(f"global_store_dword v0, v1, s[4:5] offset:{4*i}")
            A("s_sub_u32 s38, s94, s88"); A("v_mov_b32 v1, s38"); A(f"global_store_dword v0, v1, s[4:5] offset:0")
        else:
            ST.write(A, 6, 0)
    A.label("L_end")
    A("s_endpgm")
    A.label("L_hook")
    A("s_mov_b32 s23, 5")
    A("s_cmp_eq_u32 s3, 0")
    A("s_cbranch_scc0 L_hook_ret")
    A("s_add_u32 s20, s4, s2")
    A("s_addc_u32 s21, s5, 0")
    A("s_mov_b32 exec_lo, 0")
    A("s_mov_b32 exec_hi, 0x80000000")
    A("v_readlane_b32 s38, v0, 63")
    A("v_readlane_b32 s30, v1, 63")
    A("v_mov_b32 v0, 0")
    A("v_mov_b32 v1, 1")
    A("global_store_byte v0, v1, s[20:21] sc1")
    A("s_nop 1")
    A("v_mov_b32 v0, s38")
    A("v_mov_b32 v1, s30")
    A("s_mov_b64 exec, -1")
    A.label("L_hook_ret")
    A("s_cmp_eq_u32 s26, 0")
    A("s_cbranch_scc1 L_loopK")
    A("s_branch L_loopV")
    for which in (0, 1):
        lab = "L_loopK" if which == 0 else "L_loopV"
        A.label(lab + "_spin")
        A("s_mov_b32 s30, 0")
        A.label(lab + "_spin_l")
        A("s_add_u32 s30, s30, 1")
        A(f"s_cmp_gt_u32 s30, {SPINMAX}")
        A(f"s_cbranch_scc1 {lab}_spun")
        A("s_sleep 1")
        A("global_load_dword v0, v1, s[4:5] sc1")
        A("s_waitcnt vmcnt(0)")
        A("v_cmp_ne_u32 vcc, 0x01010101, v0")
        A("s_nop 4")
        A(f"s_cbranch_vccnz {lab}_spin_l")
        A(f"s_branch {lab}_spun")
    vpoll("L_spin1", 0, "s_cmp_ge_u32 s38, 16", "L_spun1", 8, 8)
    vpoll("L_spin2", 1, "s_cmp_ge_u32 s38, 16", "L_spun2")
    if tcold: tcold(A)
    if opt.get("report"):
        for x in rep: print("HAZ", x)
    return kernel_header(name) + A.text() + kernel_desc(name, vgpr=512, accum=256)
```

```python
from common import *
import sched, tail as tailmod
import math, struct

QSCALE = math.log2(math.e) / 16.0
B0 = 6.0
OOB = 0x70000000
SPINMAX = 100000
def f2u(x): return struct.unpack("<I", struct.pack("<f", x))[0]

def gen_k12(name, opt):
    A = Asm()
    ST0 = Stamps2(opt.get("stamps", 0))
    class STX:
        en = ST0.en
        def t(self, i): return [] if (opt.get("tst") and 1 <= i <= 10) else ST0.t(i)
        def c(self, i): return ST0.c(i)
        def write(self, *a): return ST0.write(*a)
    ST = STX()
    rep = []
    NA = opt.get("NA", 19)
    CST = opt.get("cst", ["start", "att", "last", "end"])
    def cs(nm): return ST.c(CST.index(nm)) if nm in CST else []
    VB = opt.get("verbose")
    fin = lambda L, st=None, prev=None: sched.finish(L, st, prev, rep)
    emit = lambda L, st=None, prev=None: A.extend(sched.texts(fin(L, st, prev)))
    def codepf(lab, vt, dst, n):
        if not opt.get("jit", 1): return []
        return [f"s_getpc_b64 s[20:21]\nL_pcx{n}:\ns_add_u32 s20, s20, {lab}-L_pcx{n}\ns_addc_u32 s21, s21, 0",
                f"s_lshl_b32 s38, s3, 13\nv_lshl_add_u32 v{vt}, v0, 7, s38",
                f"v_min_u32 v{vt}, L_textend-{lab}-4, v{vt}",
                f"global_load_dword {dst}, v{vt}, s[20:21]"]
    VX, VW, DX, DW = 2, 6, 10, 12
    def acc(which, hx, ti, hw, tj):
        i = (hx * 2 + hw) * 16 + (ti * 4 + tj if which == 0 else tj * 4 + ti)
        return 16 + 4 * i if i < 60 else 256 + 64 + 4 * (i - 60)
    FX = [256 + 80, 256 + 0]; FW = [256 + 112, 256 + 32]
    XH = 400
    def fx(hx, ti, s_): return FX[hx] + (ti * 2 + s_) * 4
    def fw(bank, tj, s_): return FW[bank] + (tj * 2 + s_) * 4
    SX, SW, SO, SQ, SXI = 8, 12, 16, 40, 44
    SWO = 44
    P = []
    E = P.append
    A("s_cmp_ge_u32 s2, 256")
    A("s_cbranch_scc1 L_end")
    A.extend(ST.t(0) + cs('start'))
    E("s_load_dwordx4 s[52:55], s[0:1], 0")
    E("s_load_dwordx2 s[56:57], s[0:1], 16")
    E("s_load_dwordx4 s[20:23], s[0:1], 24")
    E("s_load_dwordx2 s[100:101], s[0:1], 40")
    E("s_load_dwordx4 s[4:7], s[0:1], 88")
    E("s_getpc_b64 s[30:31]")
    E("L_pc0:")
    E("v_lshrrev_b32 v1, 6, v0")
    E("s_lshr_b32 s25, s2, 3")
    E("s_and_b32 s38, s25, 3")
    E("s_lshl_b32 s38, s38, 15")
    E("v_lshlrev_b32 v16, 7, v0")
    E("v_add_u32 v16, s38, v16")
    E("v_min_u32 v16, L_textend-L_pc0-4, v16")
    if opt.get("codepf", 1): E("global_load_dword a255, v16, s[30:31]")
    E("v_and_b32 v0, 63, v0")
    E("v_readfirstlane_b32 s3, v1")
    E("s_and_b32 s24, s2, 7")
    E("s_and_b32 s26, s25, 1")
    E("s_lshl_b32 s24, s24, 1")
    E("s_add_u32 s24, s24, s26")
    E("s_bfe_u32 s26, s25, 0x10001")
    E("s_lshr_b32 s27, s25, 2")
    E("s_sub_u32 s50, 15, s27")
    E("s_cmp_eq_u32 s26, 0")
    E("s_cselect_b32 s50, s50, s27")
    E("s_lshl_b32 s28, s2, 3")
    E("s_lshl_b32 s29, s3, 1")
    E("s_add_u32 s28, s28, s29")
    E("v_and_b32 v20, 1, v0")
    E("v_add_u32 v20, s28, v20")
    E("v_mul_u32_u24 v21, 896, v20")
    E("v_lshrrev_b32 v22, 1, v0")
    E("v_lshl_add_u32 v21, v22, 4, v21")
    E("s_lshl_b32 s28, s27, 7")
    E("s_lshl_b32 s29, s3, 5")
    E("s_add_u32 s28, s28, s29")
    E("v_lshrrev_b32 v1, 3, v0")
    E("v_add_u32 v1, s28, v1")
    E("v_lshlrev_b32 v1, 11, v1")
    E("v_lshrrev_b32 v16, 4, v0")
    E("v_and_b32 v17, 7, v0")
    E("v_xor_b32 v17, v17, v16")
    E("v_lshlrev_b32 v17, 4, v17")
    for i in range(4):
        E(f"v_xor_b32 v18, {64 if i & 1 else 0}, v17")
        E(f"v_add_u32 v18, v18, v1")
        E(f"v_add_u32 v{VX+i}, {i * (8 * 2048 - 1024)}, v18")
    E("s_lshl_b32 s28, s3, 4")
    E("v_add_u32 v1, s28, v16")
    E("v_lshlrev_b32 v1, 13, v1")
    E("s_lshl_b32 s28, s24, 9")
    E("v_add_u32 v1, s28, v1")
    E("v_and_b32 v17, 15, v0")
    E("v_lshlrev_b32 v18, 1, v16")
    E("v_xor_b32 v17, v17, v18")
    E("v_lshlrev_b32 v17, 4, v17")
    for i in range(4):
        E(f"v_xor_b32 v18, {128 if i & 2 else 0}, v17")
        E(f"v_add_u32 v18, v18, v1")
        E(f"v_add_u32 v{VW+i}, {i * (4 * 8192 - 1024)}, v18")
    E("s_lshl_b32 s32, s3, 12")
    E("s_mov_b32 s33, 0")
    E("s_mov_b32 s34, 0")
    for i in range(28, 32): E(f"v_mov_b32 v{i}, 0")
    E("s_waitcnt lgkmcnt(0)")
    srd(E, SX, 54, 2048 * 1024 * 2)
    E("s_cmp_eq_u32 s26, 0")
    E("s_cselect_b32 s20, s20, s22")
    E("s_cselect_b32 s21, s21, s23")
    srd(E, SW, 20, 1024 * 4096 * 2)
    def dma_setup(n):
        j = (n >> 2) & 1; t = n & 3
        if t in (0, 3):
            hx = 0 if t == 0 else 1
            slot = (2 * j + hx) * 16384
            setup = [f"s_add_u32 m0, s32, {slot}", f"s_add_u32 s35, s33, {j * 128 + hx * 1024 * 2048}"]
            d = [f"buffer_load_dwordx4 v{VX+i}, s[{SX}:{SX+3}], s35 offen offset:{i*1024}{opt.get('xflag', '')} lds @tag=ht{n}" for i in range(4)]
        else:
            hw = t - 1
            slot = 65536 + (2 * j + hw) * 16384
            setup = [f"s_add_u32 m0, s32, {slot}", f"s_add_u32 s35, s34, {j * 64 * 8192 + hw * 256}"]
            d = [f"buffer_load_dwordx4 v{VW+i}, s[{SW}:{SW+3}], s35 offen offset:{i*1024}{opt.get('wflag', ' nt')} lds @tag=ht{n}" for i in range(4)]
        return setup, d
    def reads(n):
        j = (n >> 2) & 1; t = n & 3
        out = []
        if t in (0, 3):
            hx = 0 if t == 0 else 1
            slot = (2 * j + hx) * 16384
            for ti in range(4):
                for s_ in range(2):
                    out.append(f"ds_read_b128 {r(fx(hx, ti, s_), 4)}, v{DX+s_} offset:{slot + ti * 2048}")
        else:
            hw = t - 1
            bank = hw ^ j
            slot = (2 * j + hw) * 16384
            for tj in range(4):
                for s_ in range(2):
                    for h2 in range(2):
                        out.append(f"ds_read_b64_tr_b16 {r(fw(bank, tj, s_) + 2 * h2, 2)}, v{DW+tj} offset:{slot + s_ * 8192 + h2 * 1024}")
        return out
    def dma_block(n):
        su, d = dma_setup(n)
        return su + d
    srd(E, SXI, 52, 2048 * 448 * 2)
    E(f"buffer_load_dwordx4 v[24:27], v21, s[{SXI}:{SXI+3}], 0 offen")
    E("s_mov_b32 exec_hi, 0xffff")
    E(f"buffer_load_dwordx4 v[28:31], v21, s[{SXI}:{SXI+3}], 0 offen offset:512")
    E("s_mov_b32 exec_hi, -1")
    for n in range(2): P.extend(dma_block(n))
    srd(E, SO, 6, 160 << 20)
    srd(E, SQ, 56, 448 * 4096 * 2)
    srd(E, SWO, 100, 4096 * 448 * 2)
    E("s_lshr_b32 s38, s25, 1"); E("s_lshl_b32 s38, s38, 2"); E("s_add_u32 s38, s38, s3")
    E("s_mul_i32 s30, s38, 57344"); E("s_lshl_b32 s31, s24, 9"); E("s_add_u32 s30, s30, s31")
    E("s_add_u32 s56, s56, s30"); E("s_addc_u32 s57, s57, 0")
    E("s_mul_i32 s30, s24, 229376"); E("s_lshl_b32 s31, s38, 7"); E("s_add_u32 s30, s30, s31")
    E("s_add_u32 s100, s100, s30"); E("s_addc_u32 s101, s101, 0")
    E("v_and_b32 v62, 3, v0")
    E("v_lshlrev_b32 v60, 7, v62")
    E("v_add_co_u32 v60, vcc, s56, v60"); E("v_mov_b32 v61, s57"); E("v_addc_co_u32 v61, vcc, 0, v61, vcc")
    E("v_mul_u32_u24 v62, 57344, v62")
    E("v_add_co_u32 v62, vcc, s100, v62"); E("v_mov_b32 v63, s101"); E("v_addc_co_u32 v63, vcc, 0, v63, vcc")
    E("s_mov_b64 s[30:31], 0xf0")
    E("v_cndmask_b32 v60, v60, v62, s[30:31]"); E("v_cndmask_b32 v61, v61, v63, s[30:31]")
    E("s_load_dwordx4 s[52:55], s[0:1], 56")
    E("s_load_dwordx2 s[56:57], s[0:1], 72")
    W = []
    F_ = W.append
    F_("v_lshrrev_b32 v23, 4, v20")
    F_("v_mul_u32_u24 v23, 14336, v23")
    F_("v_lshl_add_u32 v23, v22, 8, v23")
    F_("v_and_b32 v20, 15, v20")
    F_("v_lshl_add_u32 v23, v20, 4, v23")
    F_("s_lshr_b32 s28, s3, 1")
    F_("s_and_b32 s29, s3, 1")
    F_("s_lshl_b32 s30, s28, 13")
    F_("v_and_b32 v1, 15, v0")
    F_("v_lshlrev_b32 v1, 7, v1")
    F_("v_add_u32 v1, s30, v1")
    F_("v_bfe_u32 v18, v0, 1, 3")
    F_("v_xor_b32 v17, v16, v18")
    F_("v_lshlrev_b32 v17, 4, v17")
    F_(f"v_add_u32 v{DX}, v17, v1")
    F_(f"v_xor_b32 v{DX+1}, 64, v{DX}")
    F_("v_lshlrev_b32 v1, 3, v16")
    F_("v_bfe_u32 v17, v0, 2, 2")
    F_("v_add_u32 v1, v1, v17")
    F_("v_lshlrev_b32 v1, 8, v1")
    F_("v_bfe_u32 v18, v0, 4, 1")
    F_("v_lshlrev_b32 v18, 2, v18")
    F_("v_or_b32 v17, v17, v18")
    F_("v_lshlrev_b32 v17, 1, v17")
    F_("v_bfe_u32 v19, v0, 1, 1")
    F_("s_lshl_b32 s30, s29, 3")
    F_("v_add_u32 v19, s30, v19")
    F_("v_xor_b32 v19, v19, v17")
    F_("v_lshlrev_b32 v19, 4, v19")
    F_("v_and_b32 v18, 1, v0")
    F_("v_lshlrev_b32 v18, 3, v18")
    F_("v_add3_u32 v1, v1, v18, v19")
    F_(f"v_add_u32 v{DW}, 0x10000, v1")
    for tj in range(1, 4): F_(f"v_xor_b32 v{DW+tj}, {tj << 5}, v{DW}")
    F_("v_lshlrev_b32 v1, 4, v0")
    F_("s_lshl_b32 s58, s24, 20\ns_lshl_b32 s38, s27, 16\ns_add_u32 s58, s58, s38\ns_lshl_b32 s38, s28, 15\ns_add_u32 s58, s58, s38")
    F_("s_add_u32 s38, s26, 11\ns_lshl_b32 s38, s29, s38\ns_add_u32 s58, s58, s38\ns_lshl_b32 s38, s26, 24\ns_add_u32 s58, s58, s38")
    F_(f"s_cmp_eq_u32 s26, 0\ns_mov_b32 s59, 16384\ns_mov_b32 s51, {(1024 - 16384) & 0xffffffff}\ns_mov_b32 s39, 8192\n"
       f"s_cselect_b32 s59, 1024, s59\ns_cselect_b32 s51, {8192 - 1024}, s51\ns_cselect_b32 s39, 4096, s39")
    F_(f"s_lshl_b32 s49, s24, 3\ns_add_u32 s49, s49, s27\ns_lshl_b32 s49, s49, 16\ns_lshl_b32 s38, s3, 14\ns_add_u32 s49, s49, s38\ns_add_u32 s49, s49, {WS_Q}")
    F_(f"s_lshl_b32 s48, s50, 3\ns_lshl_b32 s38, s3, 1\ns_add_u32 s48, s48, s38\ns_mul_i32 s48, s48, 14336\ns_add_u32 s48, s48, {WS_XN}")
    F_(f"s_lshl_b32 s22, s24, 4\ns_add_u32 s22, s22, s50\ns_lshl_b32 s22, s22, 8\ns_add_u32 s22, s22, {WS_FLAG}")
    W += [f"v_mov_b32 v{i}, 0" for i in range(64, 68)]
    F_("s_lshl_b32 s38, s2, 2\ns_add_u32 s38, s38, s3\ns_mul_i32 s38, s38, 6\ns_sub_u32 s38, s38, 8")
    F_("v_add_u32 v56, s38, v0")
    F_("v_min_u32 v56, 5375, v56")
    F_("v_lshrrev_b32 v57, 6, v56")
    F_("v_and_b32 v56, 63, v56")
    F_("v_lshlrev_b32 v56, 7, v56")
    F_("s_waitcnt lgkmcnt(0)")
    F_("v_mov_b32 v58, s52\nv_mov_b32 v59, s53\nv_mov_b32 v62, s54\nv_mov_b32 v63, s55")
    F_("v_cmp_le_u32 vcc, 28, v57\nv_subrev_u32 v54, 28, v57\ns_nop 0\nv_cndmask_b32 v58, v58, v62, vcc\nv_cndmask_b32 v59, v59, v63, vcc\nv_cndmask_b32 v57, v57, v54, vcc")
    F_("v_mov_b32 v62, s56\nv_mov_b32 v63, s57")
    F_("v_cmp_le_u32 vcc, 28, v57\nv_subrev_u32 v54, 28, v57\ns_nop 0\nv_cndmask_b32 v58, v58, v62, vcc\nv_cndmask_b32 v59, v59, v63, vcc\nv_cndmask_b32 v57, v57, v54, vcc")
    F_("v_mul_u32_u24 v57, 57344, v57")
    F_("v_add_u32 v56, v56, v57")
    F_("v_add_co_u32 v58, vcc, v58, v56\ns_nop 1\nv_addc_co_u32 v59, vcc, 0, v59, vcc")
    F_("s_mov_b64 s[30:31], 0x3f00\nv_cndmask_b32 v60, v60, v58, s[30:31]\nv_cndmask_b32 v61, v61, v59, s[30:31]")
    F_("s_mov_b32 s52, 8192\ns_mov_b32 s53, 0")
    rest = []
    for n in range(2, 4):
        su, d = dma_setup(n)
        rest += ["\n".join(su + [d[0]])] + d[1:]
    k = 0
    for i, z in enumerate(W):
        E(z)
        if i % 6 == 3 and k < len(rest):
            E(rest[k]); k += 1
    while k < len(rest): E(rest[k]); k += 1
    P += ST.t(1)
    for i in range(8):
        E(f"v_lshlrev_b32 v{32+2*i}, 16, v{24+i}")
        E(f"v_and_b32 v{33+2*i}, 0xffff0000, v{24+i}")
    def reduce32(x, t):
        for rr in (2, 4, 8):
            E(f"v_add_f32_dpp v{x}, v{x}, v{x} row_ror:{rr} row_mask:0xf bank_mask:0xf")
        for sw in ("v_permlane16_swap_b32", "v_permlane32_swap_b32"):
            E(f"v_mov_b32 v{t}, v{x}"); E(f"{sw} v{x}, v{t}"); E(f"v_add_f32 v{x}, v{x}, v{t}")
    E("v_pk_add_f32 v[48:49], v[32:33], v[34:35]")
    for i in range(2, 8): E(f"v_pk_add_f32 v[48:49], v[48:49], v[{32+2*i}:{33+2*i}]")
    E("v_add_f32 v48, v48, v49")
    reduce32(48, 50)
    E(f"v_mul_f32 v48, {hex(f2u(-1.0/448))}, v48")
    E("v_mov_b32 v49, v48")
    for i in range(4): E(f"v_pk_add_f32 v[{32+2*i}:{33+2*i}], v[{32+2*i}:{33+2*i}], v[48:49]")
    E("s_mov_b32 exec_hi, 0xffff")
    for i in range(4, 8): E(f"v_pk_add_f32 v[{32+2*i}:{33+2*i}], v[{32+2*i}:{33+2*i}], v[48:49]")
    E("s_mov_b32 exec_hi, -1")
    E("v_pk_mul_f32 v[50:51], v[32:33], v[32:33]")
    for i in range(1, 8): E(f"v_pk_fma_f32 v[50:51], v[{32+2*i}:{33+2*i}], v[{32+2*i}:{33+2*i}], v[50:51]")
    E("v_add_f32 v50, v50, v51")
    reduce32(50, 52)
    E(f"v_mov_b32 v51, {hex(f2u(1e-5))}")
    E(f"v_fmac_f32 v51, {hex(f2u(1.0/448))}, v50")
    E("v_rsq_f32 v50, v51")
    E(f"v_mul_f32 v50, {hex(f2u(QSCALE))}, v50")
    E("v_mov_b32 v51, v50")
    for i in range(8): E(f"v_pk_mul_f32 v[{32+2*i}:{33+2*i}], v[{32+2*i}:{33+2*i}], v[50:51]")
    for i in range(8): E(f"v_cvt_pk_bf16_f32 v{24+i}, v{32+2*i}, v{33+2*i}")
    E("WAITVM @need=ht0,ht1")
    E("s_barrier")
    P.extend(reads(0)); P.extend(reads(1))
    E(f"s_mov_b32 s38, {WS_XN}")
    E(f"buffer_store_dwordx4 v[24:27], v23, s[{SO}:{SO+3}], s38 offen sc1")
    E(f"s_mov_b32 s38, {WS_XN + 8192}")
    E("s_mov_b32 exec_hi, 0xffff")
    E(f"buffer_store_dwordx4 v[28:31], v23, s[{SO}:{SO+3}], s38 offen sc1")
    E("s_mov_b32 exec_hi, -1")
    E("s_lshl_b32 s38, s2, 9")
    E(f"s_add_u32 s38, s38, {WS_FLAG}")
    E("s_cmp_eq_u32 s3, 0")
    E(f"s_cselect_b32 s38, s38, {OOB}")
    E("s_mov_b32 exec_hi, 0")
    E(f"buffer_store_dwordx4 v[64:67], v1, s[{SO}:{SO+3}], s38 offen sc1")
    E("s_mov_b32 exec_hi, -1")
    if opt.get("tlb"):
        E("v_lshlrev_b32 v16, 21, v0")
        E("s_lshl_b32 s38, s2, 12"); E("s_lshl_b32 s30, s3, 10"); E("s_add_u32 s38, s38, s30")
        E(f"buffer_load_dword a253, v16, s[{SO}:{SO+3}], s38 offen")
        E("s_add_u32 s38, s38, 0x8000000")
        E(f"buffer_load_dword a252, v16, s[{SO}:{SO+3}], s38 offen")
    E("v_mov_b32 v0, v60"); E("v_mov_b32 v1, v61")
    P += ST.t(2) + cs('first')
    E("s_and_b32 s23, s25, 3")
    E("s_add_u32 s23, s23, 1")
    E("s_mov_b32 s36, 0")
    E("s_cmp_eq_u32 s26, 0")
    stP = sched.State()
    pro = fin(P, stP)
    A.extend(sched.texts(pro))
    A("s_cbranch_scc0 L_firstV")

    def phase_mfmas(which, g, first=False):
        j = (g >> 2) & 1; p = g & 3
        hx = 0 if p < 2 else 1
        hw = [0, 1, 1, 0][p]
        bank = hw ^ j
        m = []
        for ti in range(4):
            for tj in range(4):
                for s_ in range(2):
                    c_ = acc(which, hx, ti, hw, tj); X = fx(hx, ti, s_); W_ = fw(bank, tj, s_)
                    ci = "0" if (first and s_ == 0) else None
                    m.append(mfma16(c_, W_, X, ci) if which == 0 else mfma16(c_, X, W_, ci))
        return m
    PF = ["global_load_dword a254, v[0:1], off", "v_lshl_add_u64 v[0:1], s[52:53], 0, v[0:1]"] if opt.get("wpf", 1) else []
    def drain_quad(hx, hw):
        cv = []; stv = []; src = []
        so = 37 if hx == 0 else 40
        for n in range(8):
            idx = (hx * 2 + hw) * 16 + 2 * n
            if idx >= 60:
                t0 = 84 + 16 * (n & 1); t1 = t0 + 8
                cv += [f"v_accvgpr_read_b32 v{t0+i}, a{64 + 4 * (idx - 60) + i}" for i in range(4)]
                cv += [f"v_accvgpr_read_b32 v{t1+i}, a{64 + 4 * (idx - 60) + 4 + i}" for i in range(4)]
            else:
                t0 = 16 + 4 * idx; t1 = t0 + 4
            cv += [f"v_cvt_pk_bf16_f32 v{t0}, v{t0}, v{t0+1}", f"v_cvt_pk_bf16_f32 v{t0+1}, v{t0+2}, v{t0+3}",
                   f"v_cvt_pk_bf16_f32 v{t0+2}, v{t1}, v{t1+1}", f"v_cvt_pk_bf16_f32 v{t0+3}, v{t1+2}, v{t1+3}"]
            if n == 0:
                stv.append(f"s_mul_i32 s{so}, s13, {hw}")
                stv.append(f"s_add_u32 s{so}, s{so}, s58")
                if hx: stv.append(f"s_add_u32 s{so}, s{so}, {16 * 32768}")
            elif n & 1: stv.append(f"s_add_u32 s{so}, s{so}, s59")
            else: stv.append(f"s_add_u32 s{so}, s{so}, s14")
            src.append(t0)
            d0 = t0 if hx == 0 else HOLD + (hw * 8 + n) * 4
            stv.append(f"buffer_store_dwordx4 {r(d0, 4)}, v1, s[{SO}:{SO+3}], s{so} offen sc1 @tag=kv{hx}")
        return cv, stv, src
    HOLD = 256 + 128
    cv00, st00, _ = drain_quad(0, 0); cv01, st01, _ = drain_quad(0, 1); cv11, st11, src11 = drain_quad(1, 1); cv10, st10, src10 = drain_quad(1, 0)
    hold_mv = [f"v_accvgpr_write_b32 a{HOLD - 256 + (hw * 8 + n) * 4 + i}, v{(src11 if hw else src10)[n] + i}" for hw in (1, 0) for n in (6, 7, 0, 1, 2, 3, 4, 5) for i in range(4)]
    QV = 2; VF = 3; QD = 4
    REGION = [131072, 65536, 0, 98304, 32768]
    def region(sb): return REGION[sb % 5]
    QF = [FX[0], FW[0]]
    QACC = [16, 48]
    def q_dma(sb, u):
        cb, kh = sb >> 1, sb & 1
        ks = kh * 7 + u
        return [f"s_add_u32 m0, s31, {region(sb) + u * 4096}", f"s_mov_b32 s35, {ks * 32 * 8192 + cb * 128}",
                f"buffer_load_dwordx4 v{QV}, s[{SQ}:{SQ+3}], s35 offen lds @tag=sb{sb}"]
    def q_dmas(sb, us): return sum((q_dma(sb, u) for u in us), [])
    def q_reads(sb, dtl):
        n = sb * 4 + dtl
        return [f"ds_read_b64_tr_b16 {r(QF[n & 1] + 4 * u + 2 * h2, 2)}, v{QD+dtl} offset:{u * 4096 + h2 * 512}" for u in range(7) for h2 in range(2)]
    q_setup = ["s_mov_b32 s13, s39", "s_mov_b32 s14, s51", "s_lshl_b32 s31, s3, 10", "s_lshl_b32 s30, s3, 3", "v_lshrrev_b32 v7, 3, v0", "v_add_u32 v7, s30, v7", "v_lshlrev_b32 v7, 13, v7",
               "s_lshl_b32 s30, s24, 9", "v_add_u32 v7, s30, v7", "v_bfe_u32 v8, v0, 4, 1", "s_lshl_b32 s30, s29, 1", "v_or_b32 v8, s30, v8",
               "v_lshlrev_b32 v8, 1, v8", "v_and_b32 v9, 7, v0", "v_xor_b32 v8, v8, v9", f"v_lshl_add_u32 v{QV}, v8, 4, v7"]
    q_setup2 = ["v_lshrrev_b32 v8, 4, v0", "v_lshlrev_b32 v8, 3, v8", "v_bfe_u32 v9, v0, 2, 2", "v_add_u32 v8, v8, v9", "v_lshlrev_b32 v8, 7, v8",
                "v_bfe_u32 v9, v0, 3, 2", "v_lshlrev_b32 v9, 5, v9", "v_add_u32 v8, v8, v9", "v_and_b32 v9, 3, v0", "v_lshl_add_u32 v8, v9, 3, v8",
                f"v_add_u32 v{QD}, {region(0)}, v8"] + [f"v_xor_b32 v{QD+d}, {d << 5}, v{QD}" for d in range(1, 4)] + \
               ["s_lshl_b32 s30, s3, 6", "v_add_u32 v8, s30, v0", "v_lshrrev_b32 v9, 4, v8", "v_min_u32 v9, 1, v9", "v_lshlrev_b32 v9, 30, v9",
                f"v_lshl_add_u32 v{VF}, v8, 8, v9", "v_mov_b32 v9, 1", "s_and_b32 s15, s22, 0xfffff000"]
    adv2 = ["s_add_u32 s33, s33, 256", f"s_add_u32 s34, s34, {128 * 8192}"]
    def steady(which, g, extra=None):
        m = phase_mfmas(which, g)
        su, d = dma_setup(g + 8)
        f = [(15, su[0]), (16, su[1])] + [(17 + 4 * i, d[i]) for i in range(4)]
        f += spread(reads(g + 2), 0, 16)
        return m, f
    for which in (0, 1):
        sfx = "K" if which == 0 else "V"
        lab = "L_loop" + sfx
        A.label("L_first" + sfx)
        st = stP.copy()
        m = []; fixed = []; vm = []; rd = []
        for g in range(8):
            o = 32 * g
            m += phase_mfmas(which, g, first=(g < 4))
            fixed += [(o + 5, f"WAITVM @need=ht{g+2}\ns_waitcnt lgkmcnt(0)\ns_barrier")]
            hts = [4 + 2 * g, 5 + 2 * g] if g < 4 else [g + 8]
            it = []
            for n in hts:
                if n == 8: it += adv2
                it += dma_block(n)
            vm.append((it, o, o + 30))
            rd.append((reads(g + 2), o + 6, o + 25))
        fixed += [(254, "WAITVM @need=ht10,ht11\ns_waitcnt lgkmcnt(0)\ns_barrier"), (255, "\n".join(adv2))]
        if PF: fixed += [(200, PF[0]), (201, PF[1])]
        for nm in CST:
            if nm.startswith('f') and nm[1:].isdigit(): fixed += [(32 * int(nm[1:]) + 1, x) for x in cs(nm)]
        L = sched.pack(m, vm + rd, fixed, VB)
        fi = fin(L, st, pro)
        A.extend(sched.texts(fi))
        A.extend(cs('roll'))
        A(".p2align 6")
        A.label(lab)
        body = []
        for g in range(8):
            m, f = steady(which, g)
            if g == 0 and PF: f += [(18, PF[0]), (19, PF[1])]
            if g == 7:
                f += [(26, adv2[0]), (27, adv2[1]), (28, "s_add_u32 s36, s36, 1"), (31, "s_cmp_eq_u32 s36, s23")]
            if g & 1: f += [(30, "s_waitcnt vmcnt(16) lgkmcnt(0)"), (30, "s_barrier")]
            else: f += [(30, "s_waitcnt lgkmcnt(0)")]
            body += sched.pack(m, [], f)
        st = sched.State()
        lp = sched.finish_loop(body, st, prev=fi, report=rep)
        A.extend(sched.texts(lp))
        A(f"s_cbranch_scc0 {lab}")
        A("s_cmp_eq_u32 s36, 5")
        A(f"s_cbranch_scc0 L_hook")
        st = sched.State()
        st.vm = [(set(), f"ht{n}") for n in range(52, 56) for _ in range(4)]
        L = ST.t(3) + cs('peel')
        xl = [f"s_add_u32 s38, s48, {tt * 14336 + ks * 1024}\n"
              f"buffer_load_dwordx4 {r(XH + (tt * 14 + ks) * 4, 4)}, v1, s[{SO}:{SO+3}], s38 offen sc1"
              for ks in range(14) for tt in range(2)]
        m = []; fixed = []; rd = []
        for g in range(48, 64):
            o = (g - 48) * 32
            if g < 56:
                mm, f = steady(which, g)
                m += mm; fixed += [(o + a_, b_) for a_, b_ in f]
            else:
                m += phase_mfmas(which, g)
                if g + 2 < 64: rd.append((reads(g + 2), o, o + 22))
            if g & 1 and g < 61: fixed += [(o + 30, f"WAITVM @need=ht{g+3},ht{g+4}\ns_waitcnt lgkmcnt(0)\ns_barrier")]
            elif g == 61: fixed += [(o + 30, "s_waitcnt lgkmcnt(0)\ns_barrier")]
        if PF: fixed += [(18, PF[0])]
        fixed += [(19, "v_mbcnt_lo_u32_b32 v0, -1, 0"), (20, "v_mbcnt_hi_u32_b32 v0, -1, v0"), (22, "v_lshlrev_b32 v1, 2, v0"),
                  (23, "global_load_dword v0, v1, s[4:5] sc1 @tag=poll")]
        fixed += [(129, f"v_cmp_ne_u32 vcc, 0x01010101, v0"), (131, f"s_cbranch_vccnz {lab}_spin\n{lab}_spun:"),
                  (133, "v_lshrrev_b32 v0, 2, v1"), (135, "v_lshlrev_b32 v1, 2, v1")]
        for nm in CST:
            if nm.startswith('p') and nm[1:].isdigit(): fixed += [(32 * (int(nm[1:]) - 48) + 1, x) for x in cs(nm)]
        o = 256
        fixed += [(255, x) for x in cs('peel2')]
        fixed += [(o + 7 * 32 + 17, "WAITVM @need=sb0\ns_barrier")]
        vm = [(q_dmas(0, range(7)), o + 12, o + 40), (q_dmas(1, range(4)), o + 40, o + 62),
              (q_dmas(1, range(4, 7)), o + 64, o + 96), (q_dmas(2, range(4)), o + 96, o + 128),
              (q_dmas(2, range(4, 7)), o + 128, o + 160), (q_dmas(3, range(4)), o + 160, o + 192),
              (q_dmas(3, range(4, 7)), o + 192, o + 224), (q_dmas(4, range(7)), o + 224, o + 255)]
        streams = vm + [(xl[:12], 138, 256), (xl[12:], o + 64, o + 190), (st00, o + 190, o + 254)] + rd
        streams.append((q_setup, o + 1, o + 11))
        streams.append((q_setup2, o + 130, o + 160))
        streams.append((codepf("L_q", 4, "v5", 10 + which), o + 44, o + 62))
        streams.append((q_reads(0, 0), o + 7 * 32 + 18, o + 256))
        streams.append((cv00, o + 163, o + 190))
        streams.append((cv01, o + 195, o + 226))
        streams.append((cv11[:24], o + 227, o + 256))
        L += sched.pack(m, streams, fixed, VB)
        pe = fin(L, st, lp)
        A.extend(sched.texts(pe))
        if which == 0: A("s_branch L_q")
        stq = st
    NEGM = 4; TMP = 12; ORA = 24
    S0 = 32; P0 = 64; LS = 96; ONES = 104; O0 = 128
    QR = 256; FR = 320; PARK = 256 + 192; PARTL = 256 + 128
    WV = 112; WD = 119; AVF = 25; AV1 = 26
    def S(kt, tt): return S0 + (kt * 2 + tt) * 4
    def Pf(b, ks, tt): return P0 + 16 * b + (ks * 2 + tt) * 4
    def O(dt, tt): return O0 + (dt * 2 + tt) * 4
    def Q(tt, ds): return QR + (tt * 8 + ds) * 4
    def F(bank, i): return FR + bank * 32 + i * 4
    SWS = SO
    def dma4(kind, slot, half, tag=""):
        sreg = 30 if kind == "K" else 31
        base = (0 if kind == "K" else 65536) + slot * 32768 + half * 4096
        su = [f"s_add_u32 m0, s32, {base}", f"s_add_u32 s35, s{sreg}, {half * 4096}"]
        d = [f"buffer_load_dwordx4 v1, s[{SWS}:{SWS+3}], s35 offen offset:{i*1024} sc1 lds" + (f" @tag={tag}" if tag else "") for i in range(4)]
        return su, d
    def dma_adv(kind):
        sreg = 30 if kind == "K" else 31; cnt = 33 if kind == "K" else 34; t = 20 if kind == "K" else 21
        return [f"s_sub_u32 s{cnt}, s{cnt}, 1", f"s_cmp_eq_u32 s{cnt}, s28\ns_cselect_b32 s{t}, s23, 0x8000",
                f"s_cmp_eq_u32 s{cnt}, s8\ns_cselect_b32 s{t}, s9, s{t}", f"s_add_u32 s{sreg}, s{sreg}, s{t}",
                f"s_cmp_gt_i32 s{cnt}, 0\ns_cselect_b32 s{sreg}, s{sreg}, {OOB}"]
    def dma_blk(kind, slot, tag=""):
        out = []
        for half in range(2):
            su, d = dma4(kind, slot, half, tag); out += su + d
        return out
    def signal(dw, sdata=None):
        return f"buffer_atomic_add v{{d}}, v{{f}}, s[{SWS}:{SWS+3}], s22 offen offset:{4*dw} sc1"
    A.label("L_q")
    L = ST.t(4) + cs('q')
    ng = 32
    def q_pack(cb):
        out = []
        for pr in range(2):
            for tt in range(2):
                a0 = QACC[cb & 1] + ((2 * pr) * 2 + tt) * 4; a1 = QACC[cb & 1] + ((2 * pr + 1) * 2 + tt) * 4
                q_ = Q(tt, cb * 2 + pr) - 256
                out += [f"v_cvt_pk_bf16_f32 v{a0}, v{a0}, v{a0+1}", f"v_cvt_pk_bf16_f32 v{a0+1}, v{a0+2}, v{a0+3}",
                        f"v_cvt_pk_bf16_f32 v{a0+2}, v{a1}, v{a1+1}", f"v_cvt_pk_bf16_f32 v{a0+3}, v{a1+2}, v{a1+3}"]
                out += [f"v_accvgpr_write_b32 a{q_+i}, v{a0+i}" for i in range(4)]
        return out
    m = []; fixed = []; rstreams = []
    for n in range(ng):
        sb, dtl = n >> 2, n & 3
        cb, kh = sb >> 1, sb & 1
        for tt in range(2):
            for u in range(7):
                c_ = QACC[cb & 1] + (dtl * 2 + tt) * 4
                m.append(mfma16(c_, QF[n & 1] + 4 * u, XH + (tt * 14 + kh * 7 + u) * 4, "0" if (kh == 0 and u == 0) else None))
        if n + 1 < ng:
            sb2, d2 = (n + 1) >> 2, (n + 1) & 3
            g0 = 14 * n - 1
            if d2 == 0:
                need = f"sb{sb2}" + (",kv0" if sb2 == opt.get("sigb", 5) else "")
                fixed += [(g0, f"WAITVM @need={need}"), (g0, "s_barrier")]
            if sb2 > 0:
                delta = (region(sb2) - region(sb2 - 1)) & 0xffffffff
                fixed += [(g0 - 1, f"v_add_u32 v{QD+d2}, {hex(delta)}, v{QD+d2}")]
            rstreams.append((q_reads(sb2, d2), 14 * n, 14 * n + 12))
    G = lambda n: 14 * n
    vm = []
    for sb in (2, 3, 4): vm.append((q_dmas(sb + 3, range(7)), G(4 * sb), G(4 * sb + 3) - 2))
    SIGB = opt.get("sigb", 5)
    gs = G(4 * SIGB - 1)
    fixed += [(gs, f"buffer_atomic_add v9, v{VF}, s[{SWS}:{SWS+3}], s15 offen sc1")]
    C_ = 9
    asu = [f"s_lshl_b32 s32, s3, 13", "s_lshl_b32 s30, s24, 20", "s_add_u32 s30, s30, s32", f"s_add_u32 s31, s30, {WS_V}",
           "s_lshl_b32 s21, s27, 1",
           "s_add_u32 s29, s21, 2",
           "s_sub_u32 s20, 32, s21", f"s_min_u32 s33, s20, {NA}",
           "s_sub_u32 s25, s20, s33",
           f"s_sub_i32 s20, {C_}, s29", "s_max_i32 s20, s20, 0", "s_min_u32 s20, s20, s25",
           "s_sub_u32 s21, s25, s20",
           "s_sub_u32 s28, s33, s29", "s_add_u32 s23, s20, 1", "s_mov_b32 s8, 2", "s_add_u32 s9, s21, 1",
           "s_sub_u32 s11, s28, 1",
           f"s_cmp_eq_u32 s26, 0\ns_cselect_b32 s28, s28, s21", f"s_cmp_eq_u32 s26, 0\ns_cselect_b32 s23, s23, s11",
           f"s_cmp_eq_u32 s26, 0\ns_cselect_b32 s8, s8, -1",
           "s_lshl_b32 s23, s23, 15", "s_lshl_b32 s9, s9, 15",
           "s_add_u32 s34, s29, s25",
           f"s_cmp_eq_u32 s26, 0\ns_cselect_b32 s29, s33, s29", f"s_cmp_eq_u32 s26, 0\ns_cselect_b32 s33, s33, s34", "s_mov_b32 s34, s33",
           "s_mov_b32 s10, 0x7fff", "s_mov_b32 s11, 0",
           "s_add_u32 s20, s6, s22\ns_addc_u32 s21, s7, 0"]
    fixed += [(G(19) + 1 + 2 * i, x) for i, x in enumerate(asu)]
    gp = G(opt.get("pollg", 28))
    fixed += [(gp - 30, "s_load_dword s52, s[20:21], 0 glc")]
    fixed += [(gp - 2, "s_waitcnt lgkmcnt(0)"), (gp - 1, "s_cmp_ge_u32 s52, 16\ns_cbranch_scc0 L_spin1\nL_spun1:")]
    vm.append((dma_blk("K", 1, "k0") + dma_adv("K") + dma_blk("V", 1, "v0") + dma_adv("V"), gp + 1, G(32)))
    if opt.get("qst"):
        for k_, g_ in zip((8, 9, 1), opt["qst"]): fixed += [(G(g_) + 2, x) for x in ST.t(k_)]
    for nm in CST:
        if nm.startswith("g"): fixed += [(G(int(nm[1:])) + 2, x) for x in cs(nm)]
    if opt.get("no_st01"): st01 = [x for x in st01 if not x.startswith("buffer")]
    streams = vm + [(st01, 4, G(opt.get("st01end", 12)))] + rstreams
    streams.append((cv11[24:] + cv10, 4, G(8)))
    for cb in range(3): streams.append((q_pack(cb), G(8 * cb + 8) + 3, G(8 * cb + 16) - 2))
    L += sched.pack(m, streams, fixed, VB)
    L += q_pack(3)
    L += ST.t(5) + cs('qend')
    def kreads(slot, kt, bank):
        return [f"ds_read_b128 {r(F(bank, ds), 4)}, v1 offset:{slot * 32768 + (kt * 8 + ds) * 1024}" for ds in range(8)]
    def vreads(slot, grp, bank):
        return [f"ds_read_b128 {r(F(bank, d * 2 + ks), 4)}, v2 offset:{slot * 32768 + (ks * 16 + 4 * grp + d) * 1024}"
                for d in range(4) for ks in range(2)]
    def qk_group(kt, bank, cinit):
        m = []
        for tt in range(2):
            for ds in range(8):
                ci = None if ds else ("0" if cinit == 0 else NEGM + 4 * tt)
                m.append(mfma16(S(kt, tt), F(bank, ds), Q(tt, ds), ci))
        return m
    def pv_group(grp, bank, pb):
        return [mfma16(O(4 * grp + d, tt), F(bank, d * 2 + ks), Pf(pb, ks, tt)) for d in range(4) for tt in range(2) for ks in range(2)]
    def l_mfmas(pb):
        return [mfma16(LS + 4 * tt, ONES, Pf(pb, ks, tt)) for tt in range(2) for ks in range(2)]
    def softmax(pb):
        out = []; n = 0
        for kt in range(4):
            for tt in range(2):
                t = TMP + 4 * (n % 3); s_ = S(kt, tt); d = Pf(pb, kt >> 1, tt) + 2 * (kt & 1)
                out += [f"v_exp_f32 v{t+i}, v{s_+i}" for i in range(4)]
                out += [f"v_cvt_pk_bf16_f32 v{d}, v{t}, v{t+1}", f"v_cvt_pk_bf16_f32 v{d+1}, v{t+2}, v{t+3}"]
                out += [f"v_or_b32 v{ORA}, v{d}, v{d+1}" if n == 0 else f"v_or3_b32 v{ORA}, v{ORA}, v{d}, v{d+1}"]
                n += 1
        return out
    def smtile(pb, n): return softmax(pb)[7 * n:7 * n + 7]
    def mask_code(base):
        L = [f"s_sub_u32 s38, {base}, s29", "s_lshl_b32 s38, s38, 6", "s_lshl_b32 s39, s3, 5", "s_sub_u32 s38, s39, s38",
             "v_add_u32 v12, s38, v3", "v_cvt_f32_i32 v12, v12", "v_add_f32 v12, 0.5, v12", f"v_mul_f32 v12, {hex(f2u(1e30))}, v12"]
        n = 0
        for dd in range(-1, 4):
            for rr in range(4):
                c = rr + 16 * dd
                t = 13 + (n % 4); n += 1
                L.append(f"v_add_f32 v{t}, {hex(f2u(-c * 1e30))}, v12")
                for tt in range(2):
                    kt = dd + tt
                    if 0 <= kt < 4: L.append(f"v_min_f32 v{S(kt, tt)+rr}, v{S(kt, tt)+rr}, v{t}")
        return L
    def rescale(init, pb):
        L = []
        for tt in range(2):
            m_ = 12 + 2 * tt
            regs = [S(kt, tt) + i for kt in range(4) for i in range(4)]
            L.append(f"v_max3_f32 v{m_}, v{regs[0]}, v{regs[1]}, v{regs[2]}")
            for k in range(3, 15, 2): L.append(f"v_max3_f32 v{m_}, v{m_}, v{regs[k]}, v{regs[k+1]}")
            L.append(f"v_max_f32 v{m_}, v{m_}, v{regs[15]}")
        for sw in ("v_permlane16_swap_b32", "v_permlane32_swap_b32"):
            for tt in range(2): L.append(f"v_mov_b32 v{13+2*tt}, v{12+2*tt}")
            for tt in range(2): L.append(f"{sw} v{12+2*tt}, v{13+2*tt}")
            for tt in range(2): L.append(f"v_max_f32 v{12+2*tt}, v{12+2*tt}, v{13+2*tt}")
        for tt in range(2):
            m_ = 12 + 2 * tt
            L.append(f"v_sub_f32 v{m_}, {hex(f2u(-B0))}, v{m_}")
            if not init: L.append(f"v_min_f32 v{m_}, 0, v{m_}")
            L.append(f"v_mov_b32 v{m_+1}, v{m_}")
        for tt in range(2):
            m_ = 12 + 2 * tt
            for i in range(2):
                a_ = NEGM + 4 * tt + 2 * i
                if init: L.append(f"v_pk_mov_b32 v[{a_}:{a_+1}], v[{m_}:{m_+1}], v[{m_}:{m_+1}]")
                else: L.append(f"v_pk_add_f32 v[{a_}:{a_+1}], v[{a_}:{a_+1}], v[{m_}:{m_+1}]")
            for kt in range(4):
                for i in range(2):
                    a_ = S(kt, tt) + 2 * i
                    L.append(f"v_pk_add_f32 v[{a_}:{a_+1}], v[{a_}:{a_+1}], v[{m_}:{m_+1}]")
        if not init:
            for tt in range(2):
                m_ = 12 + 2 * tt
                L.append(f"v_exp_f32 v{m_}, v{m_}")
                L.append(f"v_mov_b32 v{m_+1}, v{m_}")
                for rg in [O(dt, tt) + 2 * i for dt in range(16) for i in range(2)] + [LS + 4 * tt, LS + 4 * tt + 2]:
                    L.append(f"v_pk_mul_f32 v[{rg}:{rg+1}], v[{rg}:{rg+1}], v[{m_}:{m_+1}]")
        L += softmax(pb)
        return L
    zeroO = [f"v_mov_b32 v{i}, 0" for i in range(O0, O0 + 128)] + [f"v_mov_b32 v{i}, 0" for i in range(LS, LS + 8)]
    zeroOpk = [f"v_pk_mov_b32 v[{i}:{i+1}], 0, 0" for i in list(range(O0, O0 + 128, 2)) + list(range(LS, LS + 8, 2))]
    L += [f"v_mov_b32 v{AVF}, v{VF}", "v_add_u32 v2, 0x10000, v1", f"v_mov_b32 v{AV1}, 1"]
    L += ["WAITVM @need=k0", "s_barrier"]
    L += kreads(1, 0, 0)
    m = []; streams = []
    for kt in range(4): m += qk_group(kt, kt & 1, 0)
    qst = [f"s_cmp_eq_u32 s26, 0\ns_cselect_b32 s38, s49, {OOB}"]
    for n in range(16):
        if n and n % 4 == 0: qst.append("s_add_u32 s38, s38, 4096")
        qst.append(f"buffer_store_dwordx4 {r(QR + 4 * n, 4)}, v1, s[{SWS}:{SWS+3}], s38 offen offset:{(n % 4) * 1024} sc1 @tag=qs")
    streams.append((dma_blk("K", 0, "k1") + dma_adv("K"), 0, 34))
    streams.append((qst[:10], 34, 63))
    for kt in range(3): streams.append((kreads(1, kt + 1, (kt + 1) & 1), 16 * kt, 16 * kt + 11))
    setup = ["v_lshrrev_b32 v12, 4, v0", "v_lshlrev_b32 v12, 2, v12", "v_and_b32 v13, 15, v0", "v_sub_u32 v3, v13, v12"] + \
            [f"v_mov_b32 v{ONES+i}, 0x3f803f80" for i in range(4)]
    streams.append((hold_mv + setup, 0, 63))
    L += sched.pack(m, streams, [], VB)
    L += ["s_barrier"]
    def mixv(valu, vm, every):
        out = []; k = 0; groups = []; cur = []
        for x in vm:
            cur.append(x)
            if x.startswith("buffer"): groups.append(cur); cur = []
        if cur: groups[-1] += cur
        for i, x in enumerate(valu):
            out.append(x)
            if i % every == every - 1 and k < len(groups): out += groups[k]; k += 1
        for g in groups[k:]: out += g
        return out
    L += mixv(zeroOpk, qst[10:], 8)
    L += ["s_mov_b32 s36, 3", f"s_cmp_eq_u32 s26, 0\ns_cselect_b32 s37, 2, 3", "s_cmp_eq_u32 s25, 0\ns_cselect_b32 s37, 1, s37"]
    L += ST.t(6) + cs('qk0')
    qq = fin(L, stq, pe)
    A.extend(sched.texts(qq))
    A("s_cmp_lt_u32 s29, s36")
    A("s_cbranch_scc0 L_nomask0")
    emit(mask_code(2))
    A.label("L_nomask0")
    L = rescale(True, 1)
    L.append("s_mov_b32 s38, 0x12492493")
    for p in range(7):
        L += [f"v_add_u32 v12, {p * 64}, v0", "v_mul_hi_u32 v13, v12, s38", "v_mul_u32_u24 v14, 14, v13", "v_sub_u32 v12, v12, v14",
              "v_mul_u32_u24 v13, 896, v13", "v_lshl_add_u32 v12, v12, 4, v13", f"v_subrev_u32 v{WV+p}, {(p % 4) * 1024}, v12"]
    L += ["v_lshrrev_b32 v12, 2, v0", "v_mul_u32_u24 v12, 224, v12", "v_and_b32 v13, 3, v0", f"v_lshl_add_u32 v{WD}, v13, 3, v12"]
    L = mixv(L, dma_blk("K", 1) + dma_adv("K"), 16)
    L += ["s_lshl_b32 s38, 1, s27", f"v_mov_b32 v{AV1}, s38", "s_waitcnt vmcnt(8)", "s_barrier"]
    L += kreads(0, 0, 0)
    L += [f"s_cmp_eq_u32 s26, 0\ns_cselect_b32 s38, s15, {OOB}",
          f"buffer_atomic_add v{AV1}, v{AVF}, s[{SWS}:{SWS+3}], s38 offen offset:8 sc1"]
    k4 = [i for i, x in enumerate(st11) if x.startswith("buffer")][opt.get('hp', [6])[0] - 1]
    L += st11[:k4 + 1] + ["s_waitcnt lgkmcnt(0)"]
    L += ST.t(7) + cs('att')
    emit(L)
    A("s_branch L_top1")
    place = lambda m, f: sched.pack(m, [], f, False)
    def phaseA(par):
        ks_ = (par + 1) & 1
        m = []
        for kt in range(4): m += qk_group(kt, kt & 1, 1)
        f = []
        f += list(zip([0, 1, 3, 4, 5, 7, 8, 9], kreads(ks_, 1, 1)))
        f += list(zip([11, 12, 13, 15, 16, 17, 19, 20], kreads(ks_, 2, 0)))
        f += list(zip([24, 25, 27, 28, 29, 31, 32, 33], kreads(ks_, 3, 1)))
        su0, d0 = dma4("V", ks_, 0); su1, d1 = dma4("V", ks_, 1)
        f += [(0, su0[0]), (1, su0[1])] + [(2 + 4 * i, d0[i]) for i in range(4)]
        f += [(16, su1[0]), (17, su1[1])] + [(18 + 4 * i, d1[i]) for i in range(4)]
        f += list(zip([43, 45, 48, 50, 54], dma_adv("V")))
        t0 = smtile(par ^ 1, 0); t1 = smtile(par ^ 1, 1)
        f += list(zip([21, 23, 34, 35, 24, 38, 39], t0))
        f += [(38, "s_waitcnt vmcnt(16) lgkmcnt(0)"), (38, "s_barrier")]
        su0, d0 = dma4("K", ks_, 0)
        f += [(37, su0[0]), (39, su0[1])] + [(40 + 6 * i, d0[i]) for i in range(4)]
        f += list(zip([36, 37, 42, 44, 41, 47, 49], t1))
        f += [(47 + 2 * i, x) for i, x in enumerate(vreads(par, 0, 0))]
        f += [(62, "s_cmp_le_u32 s29, s36")]
        return place(m, f)
    def phaseB(par):
        mm = l_mfmas(par)
        for grp in range(4): mm += pv_group(grp, grp & 1, par)
        f = []
        for grp in range(3):
            f += [(5 + 16 * grp + 2 * i, x) for i, x in enumerate(vreads(par, grp + 1, (grp + 1) & 1))]
        f += [(56, "s_waitcnt vmcnt(16) lgkmcnt(0)"), (56, "s_barrier")]
        f += [(57 + i, x) for i, x in enumerate(kreads(par, 0, 0))]
        dg = [6, 20, 34, 48]
        eg = [g for g in range(0, 56, 2) if g not in dg]
        su1, d1 = dma4("K", (par + 1) & 1, 1)
        f += [(1, su1[0]), (2, su1[1])] + list(zip(dg, d1))
        f += list(zip([50, 58, 60, 62, 63], dma_adv("K")))
        for t in range(2, 8):
            x = smtile(par ^ 1, t); e = eg[4 * (t - 2):4 * (t - 2) + 4]
            f += list(zip(e, x[:4])) + [(e[1] + 1, x[4]), (e[3] + 1, x[5]), (e[3] + 3, x[6])]
        f += [(59, f"v_and_b32 v{ORA}, 0x40004000, v{ORA}"), (61, f"v_cmp_ne_u32 vcc, 0, v{ORA}")]
        f += [(0, "s_sub_u32 s29, s29, 1"), (66, "s_cmp_le_u32 s29, s10")]
        return place(mm, f)
    st = sched.State()
    whole = phaseA(0) + ["LBL_B0:"] + phaseB(0) + ["LBL_A1:"] + phaseA(1) + ["LBL_B1:"] + phaseB(1)
    lp = sched.texts(sched.finish_loop(whole, st, report=rep))
    iB0 = lp.index("LBL_B0:"); iA1 = lp.index("LBL_A1:"); iB1 = lp.index("LBL_B1:")
    seg = {("A", 0): lp[:iB0], ("B", 0): lp[iB0 + 1:iA1], ("A", 1): lp[iA1 + 1:iB1], ("B", 1): lp[iB1 + 1:]}
    A(".p2align 6")
    for par in range(2):
        A.label(f"L_top{par}")
        A.extend(seg[("A", par)])
        A(f"s_cbranch_scc1 L_mask{par}")
        A.label(f"L_B{par}")
        A.extend(seg[("B", par)])
        A(f"s_cbranch_scc1 L_endg{par}")
        A("s_cbranch_vccnz L_rare0" if par == 0 else "s_cbranch_vccz L_top0")
    PL = NA & 1
    hs = st11 + st10
    def split_stores(lst, cnts):
        out = []; cur = []; k = 0; c = 0
        for x in lst:
            cur.append(x)
            if x.startswith("buffer"):
                c += 1
                if c == cnts[k]: out.append(cur); cur = []; c = 0; k += 1
        return out
    HP = opt.get('hp', [6, 5, 5])
    hparts = split_stores(hs, HP)[1:]
    JS = len(hparts)
    for par in (1, 0):
        A.label(f"L_rare{par}")
        A("s_nop 7")
        emit(rescale(False, par ^ 1))
        A("s_cmp_eq_u32 s29, 1")
        A(f"s_cbranch_scc0 L_top{par ^ 1}")
        A.label(f"L_one{par}")
        if par == 1:
            A("s_cmp_eq_u32 s37, 3")
            A("s_cbranch_scc1 L_preswitch")
        A(f"s_branch L_last{par ^ 1}")
        A.label(f"L_endg{par}")
        A("s_cmp_eq_u32 s10, 1")
        A(f"s_cbranch_scc1 L_endh{par}")
        A("s_add_u32 s11, s11, 1")
        for j in range(6):
            if ((j + 1) & 1) != par: continue
            A(f"s_cmp_eq_u32 s11, {j + 1}")
            A(f"s_cbranch_scc0 L_hk{j}_n")
            if opt.get('hst') and j in opt['hst']: A.extend(ST.t((8, 9, 1)[opt['hst'].index(j)]))
            if j < JS:
                emit(hparts[j])
            elif j == JS:
                A("v_mov_b32 v12, 1")
                A(f"buffer_atomic_add v12, v{AVF}, s[{SWS}:{SWS+3}], s15 offen offset:4 sc1")
            elif j == 5:
                A("s_add_u32 s38, s6, s22"); A("s_addc_u32 s39, s7, 0")
                A("s_load_dword s38, s[38:39], 4 glc")
                A("s_mov_b32 s10, 1")
                A("s_waitcnt lgkmcnt(0)")
                A("s_cmp_ge_u32 s38, 16")
                A("s_cbranch_scc0 L_spin2")
                A.label("L_spun2")
            A.label(f"L_hk{j}_n")
        A("s_cmp_le_u32 s29, 1")
        A(f"s_cbranch_scc1 L_endh{par}")
        A(f"s_cbranch_vccnz L_rare{par}")
        A(f"s_branch L_top{par ^ 1}")
        A.label(f"L_endh{par}")
        if par == 0:
            A("s_cmp_eq_u32 s29, 0")
            A("s_cbranch_scc1 L_switch")
        A(f"s_cbranch_vccnz L_rare{par}")
        A(f"s_branch L_one{par}")
        A.label(f"L_mask{par}")
        if par == 1:
            A("s_lshl_b32 s38, s37, 2")
            A("s_add_u32 s38, s38, s29")
            A("s_cmp_eq_u32 s38, 14")
            A("s_cbranch_scc1 L_getq")
            A.label("L_gotq")
        A("s_nop 7")
        emit(codepf(f"L_last{PL ^ 1}", 13, "v27", 20 + par))
        emit(mask_code(3) + smtile(par ^ 1, 0) + smtile(par ^ 1, 1))
        A(f"s_branch L_B{par}")
    def vpoll(lab, dw, test, done, va=12, vd=13):
        A.label(lab)
        A("s_mov_b32 s12, 0")
        A("s_add_u32 s20, s6, s22"); A("s_addc_u32 s21, s7, 0")
        A.label(lab + "_l")
        A(f"s_load_dword s38, s[20:21], {4*dw} glc")
        A("s_waitcnt lgkmcnt(0)")
        A(test)
        A(f"s_cbranch_scc1 {done}")
        A("s_add_u32 s12, s12, 1")
        A(f"s_cmp_gt_u32 s12, {SPINMAX}")
        A(f"s_cbranch_scc1 {done}")
        A(f"s_sleep {opt.get('sleep', 2)}")
        A(f"s_branch {lab}_l")
    A.label("L_getq")
    A("s_add_u32 s20, s6, s22"); A("s_addc_u32 s21, s7, 0")
    A("s_load_dword s38, s[20:21], 8 glc")
    A("s_waitcnt lgkmcnt(0)")
    A("s_bitcmp1_b32 s38, s27")
    A("s_cbranch_scc1 L_getq2")
    vpoll("L_getq_p", 2, "s_bitcmp1_b32 s38, s27", "L_getq2")
    A.label("L_getq2")
    A("s_mov_b32 s38, s49")
    for n in range(16):
        if n and n % 4 == 0: A("s_add_u32 s38, s38, 4096")
        A(f"buffer_load_dwordx4 {r(QR + 4 * n, 4)}, v1, s[{SWS}:{SWS+3}], s38 offen offset:{(n % 4) * 1024} sc1")
    A("s_branch L_gotq")
    A.label("L_preswitch")
    for i in range(8): A(f"v_mov_b32 v{NEGM+i}, 0")
    A("s_mov_b32 s36, 0")
    A(f"s_cmp_le_u32 s11, {JS}")
    A("s_cbranch_scc1 L_presw2")
    A("s_waitcnt vmcnt(4)")
    A("s_branch L_top0")
    A.label("L_presw2")
    A(f"s_waitcnt vmcnt({4 + min(HP[1:])})")
    A("s_branch L_top0")
    CT = 32
    def ctx(tt, ds): return CT + (tt * 8 + ds) * 4
    def pack_plain(mode):
        L = [f"v_rcp_f32 v{12+2*tt}, v{LS+4*tt}" for tt in range(2)] + [f"v_mov_b32 v{13+2*tt}, v{12+2*tt}" for tt in range(2)]
        n = 0
        for tt in range(2):
            for ds in range(8):
                dst = ctx(tt, ds) if mode == "ctx" else O(2 * ds, tt)
                for h in range(2):
                    o = O(2 * ds + h, tt)
                    for i in range(2):
                        L.append(f"v_pk_mul_f32 v[{o+2*i}:{o+2*i+1}], v[{o+2*i}:{o+2*i+1}], v[{12+2*tt}:{13+2*tt}]")
                    for i in range(2):
                        L.append(f"v_cvt_pk_bf16_f32 v{dst+2*h+i}, v{o+2*i}, v{o+2*i+1}")
                if mode == "park":
                    L += [f"v_accvgpr_write_b32 a{PARK - 256 + 4 * n + i}, v{dst+i}" for i in range(4)]
                if mode == "store":
                    if n and n % 4 == 0: L.append("s_add_u32 s41, s41, 4096")
                    L.append(f"buffer_store_dwordx4 v[{dst}:{dst+3}], v1, s[{SWS}:{SWS+3}], s41 offen offset:{(n % 4) * 1024} sc1 @tag=ps")
                n += 1
        return L
    A.label("L_switch")
    if not (opt.get("qst") or opt.get("hst")): A.extend(ST.t(8))
    A("s_nop 7")
    emit(pack_plain("park") + zeroOpk + rescale(True, 1) + ["s_mov_b32 s29, s25", "s_mov_b32 s37, 0"] + (ST.t(9) if not (opt.get("qst") or opt.get("hst")) else []))
    A("s_cmp_eq_u32 s29, 1")
    A("s_cbranch_scc0 L_top1")
    A("s_branch L_last1")
    OREG = [0, 32768, 131072, 65536, 98304]
    def oregion(sb): return OREG[sb % 5]
    def w_dma(sb):
        c, kh = sb >> 1, sb & 1
        out = []
        for p in range(7):
            if p % 4 == 0:
                out.append(f"s_add_u32 m0, s43, {oregion(sb) + p * 1024}")
                out.append(f"s_add_u32 s35, s48, {kh * 4 * 32 * 896 + c * 224}")
            out.append(f"buffer_load_dwordx4 v{WV+p}, s[{SWO}:{SWO+3}], s35 offen offset:{(p % 4) * 1024} lds @tag=wb{sb}")
        return out
    def lastB(par, vmem):
        mm = l_mfmas(par)
        for grp in range(4): mm += pv_group(grp, grp & 1, par)
        streams = [(vmem, 0, 67)]
        for grp in range(3): streams.append((vreads(par, grp + 1, (grp + 1) & 1), 4 + 16 * grp, 4 + 16 * grp + 12))
        return sched.pack(mm, streams, [], VB)
    mix = mixv
    dm = [w_dma(sb) for sb in range(8)]
    pl = [f"buffer_load_dwordx4 v[108:111], v1, s[{SWS}:{SWS+3}], s42 offen sc1"]
    for n in range(16):
        if n and n % 4 == 0: pl.append("s_add_u32 s41, s41, 4096")
        pl.append(f"buffer_load_dwordx4 {r(PARTL + 4 * n, 4)}, v1, s[{SWS}:{SWS+3}], s41 offen offset:{(n % 4) * 1024} sc1")
    for par in (PL ^ 1, PL):
        A.label(f"L_last{par}")
        if NA <= 18 and par != PL:
            A("s_endpgm"); continue
        A.extend(ST.t(10) + cs('last'))
        L = ["s_add_u32 s20, s6, s22", "s_addc_u32 s21, s7, 0", "s_load_dword s52, s[20:21], 12 glc",
             "s_lshl_b32 s41, s24, 3", "s_add_u32 s41, s41, s27", "s_lshl_b32 s42, s41, 12", "s_lshl_b32 s38, s3, 10", "s_add_u32 s42, s42, s38",
             f"s_add_u32 s42, s42, {WS_PART + (8 << 20)}", "s_lshl_b32 s41, s41, 16", "s_lshl_b32 s38, s3, 14", "s_add_u32 s41, s41, s38",
             f"s_add_u32 s41, s41, {WS_PART}",
             "s_mul_i32 s43, s3, 7168", "s_mul_i32 s48, s24, 229376", f"s_mul_i32 s38, s3, {32 * 896}", "s_add_u32 s48, s48, s38",
             "s_lshl_b32 s51, s24, 7", "s_lshl_b32 s38, s50, 3", "s_add_u32 s51, s51, s38", "s_lshl_b32 s38, s3, 1", "s_add_u32 s51, s51, s38",
             "s_mul_i32 s51, s51, 14336", f"s_add_u32 s51, s51, {WS_Y}",
             "s_waitcnt vmcnt(0) lgkmcnt(0)", "s_barrier"] + vreads(par, 0, 0)
        stL = sched.State()
        l0 = fin(L, stL)
        A.extend(sched.texts(l0))
        if par == PL:
            A("s_cmp_eq_u32 s37, 2")
            A("s_cselect_b32 s38, s52, 0")
            A("s_bitcmp1_b32 s38, s27")
            A("s_cbranch_scc1 L_lastC")
        stN = stL.copy()
        L = lastB(par, dm[0] + dm[1] + dm[2][:5])
        L += ["s_barrier", "s_nop 3"]
        ln = fin(L, stN, l0)
        A.extend(sched.texts(ln))
        if par != PL: A("s_branch L_fin1")
    A("s_cmp_eq_u32 s37, 0")
    A("s_cbranch_scc1 L_pub")
    A("s_cmp_eq_u32 s37, 2")
    A("s_cbranch_scc1 L_late")
    A.label("L_fin1")
    st1 = stN.copy()
    emit(mix(pack_plain("ctx"), dm[2][5:] + dm[3] + dm[4], 7), st1, ln)
    A("s_branch L_oproj")
    A.label("L_pub")
    st0 = stN.copy()
    L = [f"v_mov_b32 v108, v{NEGM}", f"v_mov_b32 v109, v{LS}", f"v_mov_b32 v110, v{NEGM+4}", f"v_mov_b32 v111, v{LS+4}",
         f"buffer_store_dwordx4 v[108:111], v1, s[{SWS}:{SWS+3}], s42 offen sc1 @tag=ps"]
    L += pack_plain("store")
    L += mix([f"v_accvgpr_read_b32 v{CT+i}, a{PARK-256+i}" for i in range(64)], dm[2][5:], 14)
    L += ["WAITVM @need=ps", "s_barrier", f"buffer_atomic_add v{AV1}, v{AVF}, s[{SWS}:{SWS+3}], s15 offen offset:12 sc1"]
    L += dm[3] + dm[4]
    emit(L, st0, ln)
    A("s_branch L_oproj")
    cb = []
    for tt in range(2):
        nb, lb = 108 + 2 * tt, 109 + 2 * tt
        cA, cB = 12 + 4 * tt, 14 + 4 * tt
        cb += [f"v_min_f32 v20, v{NEGM+4*tt}, v{nb}", f"v_sub_f32 v21, v20, v{NEGM+4*tt}", f"v_sub_f32 v22, v20, v{nb}",
               "v_exp_f32 v21, v21", "v_exp_f32 v22, v22", f"v_mul_f32 v22, v22, v{lb}", f"v_fma_f32 v20, v21, v{LS+4*tt}, v22",
               "v_rcp_f32 v20, v20", f"v_mul_f32 v{cA}, v21, v20", f"v_mul_f32 v{cB}, v22, v20",
               f"v_mov_b32 v{cA+1}, v{cA}", f"v_mov_b32 v{cB+1}, v{cB}"]
    n = 0
    for tt in range(2):
        cA, cB = 12 + 4 * tt, 14 + 4 * tt
        for ds in range(8):
            for h in range(2):
                o = O(2 * ds + h, tt)
                for i in range(2):
                    c_ = ctx(tt, ds) + 2 * h + i
                    t = 120 + 2 * (n % 4); n += 1
                    cb += [f"v_accvgpr_read_b32 v{c_}, a{PARTL - 256 + c_ - CT}",
                           f"v_pk_mul_f32 v[{o+2*i}:{o+2*i+1}], v[{o+2*i}:{o+2*i+1}], v[{cA}:{cA+1}]",
                           f"v_lshlrev_b32 v{t}, 16, v{c_}", f"v_and_b32 v{t+1}, 0xffff0000, v{c_}",
                           f"v_pk_fma_f32 v[{t}:{t+1}], v[{t}:{t+1}], v[{cB}:{cB+1}], v[{o+2*i}:{o+2*i+1}]",
                           f"v_cvt_pk_bf16_f32 v{c_}, v{t}, v{t+1}"]
    A.label("L_late")
    emit(dm[2][5:])
    vpoll("L_part_p", 3, "s_bitcmp1_b32 s38, s27", "L_late2")
    A.label("L_late2")
    emit(pl + mix(cb, dm[3] + dm[4], 24), sched.State())
    A("s_branch L_oproj")
    A.label("L_lastC")
    stC = stL.copy()
    L = lastB(PL, pl) + ["s_barrier"] + dm[0][:6] + mix(cb, dm[0][6:] + dm[1] + dm[2] + dm[3] + dm[4], 13)
    emit(L, stC, l0)
    A.label("L_oproj")
    st = sched.State()
    st.vm = [(set(), f"wb{sb}") for sb in range(5) for _ in range(7)]
    YA = [128, 184]
    def ya(c, mt, tt): return YA[c & 1] + (mt * 2 + tt) * 4
    def wf(n, u): return FR + (n & 3) * 16 + u * 4
    groups = [(sb, mt) for sb in range(8) for mt in range(7)]
    def w_pre(n):
        sb, mt = groups[n]
        pre = []
        if mt == 0:
            pre += [f"WAITVM @need=wb{sb}", "s_barrier"]
            if sb > 0: pre.append(f"v_add_u32 v{WD}, {hex((oregion(sb) - oregion(sb - 1)) & 0xffffffff)}, v{WD}")
        return pre
    def w_reads(n):
        sb, mt = groups[n]
        return [f"ds_read_b64_tr_b16 {r(wf(n, u) + 2 * h2, 2)}, v{WD} offset:{u * 7168 + h2 * 16 * 224 + mt * 32}" for u in range(4) for h2 in range(2)]
    def y_drain(pair):
        out = []
        t0, t1 = 2 * pair, 2 * pair + 1
        for tt in range(2):
            a0 = ya(t0 // 7, t0 % 7, tt); a1 = ya(t1 // 7, t1 % 7, tt)
            out += [f"v_cvt_pk_bf16_f32 v{a0}, v{a0}, v{a0+1}", f"v_cvt_pk_bf16_f32 v{a0+1}, v{a0+2}, v{a0+3}",
                    f"v_cvt_pk_bf16_f32 v{a0+2}, v{a1}, v{a1+1}", f"v_cvt_pk_bf16_f32 v{a0+3}, v{a1+2}, v{a1+3}",
                    f"s_add_u32 s38, s51, {tt * 14336 + pair * 1024}\n"
                    f"buffer_store_dwordx4 v[{a0}:{a0+3}], v1, s[{SWS}:{SWS+3}], s38 offen" + opt.get("yflag", " sc1") + " @tag=ys"]
        return out
    L = ST.t(11) + cs('oproj')
    for n in range(2): L += w_pre(n) + w_reads(n)
    m = []; fixed = []; rs_ = []; vm = []; dr = []
    tail = []
    for n, (sb, mt) in enumerate(groups):
        c, kh = sb >> 1, sb & 1
        for tt in range(2):
            for u in range(4):
                m.append(mfma16(ya(c, mt, tt), wf(n, u), ctx(tt, kh * 4 + u), "0" if (kh == 0 and u == 0) else None))
        if n + 2 < len(groups):
            fixed += [(8 * n - 1, x) for x in w_pre(n + 2)]
            rs_.append((w_reads(n + 2), 8 * n, 8 * n + 7))
    for sb in (2, 3, 4): vm.append((dm[sb + 3], 56 * sb, 56 * sb + 38))
    for c in range(4):
        prs = [p for p in range(14) if (2 * p + 1) // 7 == c]
        items = sum((y_drain(p) for p in prs), [])
        if c < 3:
            dr.append((items, 112 * (c + 1) + 3, 112 * (c + 2) - 10))
        else:
            for p in prs:
                n_end = [n for n, (sb, mt) in enumerate(groups) if sb == 7 and 21 + mt == 2 * p + 1][0]
                if n_end + 2 < len(groups): dr.append((y_drain(p), 8 * (n_end + 1) + 3, 8 * (n_end + 3) - 1))
                else: tail += y_drain(p)
    if opt.get("fuse", 1): vm.append((codepf("L_tail", 12, "v13", 30), 20, 60))
    if opt.get("x_noy"): dr = [([x for x in it if "buffer_store" not in x], a_, b_) for it, a_, b_ in dr]
    if opt.get("x_nord"): rs_ = []
    L += sched.pack(m, vm + dr + rs_, fixed, VB)
    L += tail
    L += ST.t(12) + cs('oend')
    oo = fin(L, st)
    A.extend(sched.texts(oo))
    tcold = None
    if opt.get("fuse", 1):
        A.label("L_tail")
        tcold = tailmod.gen_tail(A, opt, ST0, cs, rep, st, oo, SPINMAX)
    if ST.en:
        A("s_waitcnt vmcnt(0)")
        A.extend(ST.t(13) + cs('end'))
        if opt.get("dbgout") is not None:
            A("s_waitcnt lgkmcnt(0)")
            A(f"s_cmp_eq_u32 s2, {opt['dbgout']}"); A("s_cbranch_scc0 L_end")
            A("s_cmp_eq_u32 s3, 0"); A("s_cbranch_scc0 L_end")
            A("v_mov_b32 v0, 0")
            for i in range(1, 14):
                A(f"s_sub_u32 s38, s{60+2*i}, s60"); A("v_mov_b32 v1, s38"); A(f"global_store_dword v0, v1, s[4:5] offset:{4*i}")
            A("s_sub_u32 s38, s94, s88"); A("v_mov_b32 v1, s38"); A(f"global_store_dword v0, v1, s[4:5] offset:0")
        else:
            ST.write(A, 6, 0)
    A.label("L_end")
    A("s_endpgm")
    A.label("L_hook")
    A("s_mov_b32 s23, 5")
    A("s_cmp_eq_u32 s3, 0")
    A("s_cbranch_scc0 L_hook_ret")
    A("s_add_u32 s20, s4, s2")
    A("s_addc_u32 s21, s5, 0")
    A("s_mov_b32 exec_lo, 0")
    A("s_mov_b32 exec_hi, 0x80000000")
    A("v_readlane_b32 s38, v0, 63")
    A("v_readlane_b32 s30, v1, 63")
    A("v_mov_b32 v0, 0")
    A("v_mov_b32 v1, 1")
    A("global_store_byte v0, v1, s[20:21] sc1")
    A("s_nop 1")
    A("v_mov_b32 v0, s38")
    A("v_mov_b32 v1, s30")
    A("s_mov_b64 exec, -1")
    A.label("L_hook_ret")
    A("s_cmp_eq_u32 s26, 0")
    A("s_cbranch_scc1 L_loopK")
    A("s_branch L_loopV")
    for which in (0, 1):
        lab = "L_loopK" if which == 0 else "L_loopV"
        A.label(lab + "_spin")
        A("s_mov_b32 s30, 0")
        A.label(lab + "_spin_l")
        A("s_add_u32 s30, s30, 1")
        A(f"s_cmp_gt_u32 s30, {SPINMAX}")
        A(f"s_cbranch_scc1 {lab}_spun")
        A("s_sleep 1")
        A("global_load_dword v0, v1, s[4:5] sc1")
        A("s_waitcnt vmcnt(0)")
        A("v_cmp_ne_u32 vcc, 0x01010101, v0")
        A("s_nop 4")
        A(f"s_cbranch_vccnz {lab}_spin_l")
        A(f"s_branch {lab}_spun")
    vpoll("L_spin1", 0, "s_cmp_ge_u32 s38, 16", "L_spun1", 8, 8)
    vpoll("L_spin2", 1, "s_cmp_ge_u32 s38, 16", "L_spun2")
    if tcold: tcold(A)
    if opt.get("report"):
        for x in rep: print("HAZ", x)
    return kernel_header(name) + A.text() + kernel_desc(name, vgpr=512, accum=256)
```

```python
from common import *
import sched, tail as tailmod
import math, struct

QSCALE = math.log2(math.e) / 16.0
B0 = 6.0
OOB = 0x70000000
SPINMAX = 100000
def f2u(x): return struct.unpack("<I", struct.pack("<f", x))[0]

def gen_k12(name, opt):
    A = Asm()
    ST0 = Stamps2(opt.get("stamps", 0))
    class STX:
        en = ST0.en
        def t(self, i): return [] if (opt.get("tst") and 1 <= i <= 10) else ST0.t(i)
        def c(self, i): return ST0.c(i)
        def write(self, *a): return ST0.write(*a)
    ST = STX()
    rep = []
    NA = opt.get("NA", 19)
    CST = opt.get("cst", ["start", "att", "last", "end"])
    def cs(nm): return ST.c(CST.index(nm)) if nm in CST else []
    VB = opt.get("verbose")
    fin = lambda L, st=None, prev=None: sched.finish(L, st, prev, rep)
    emit = lambda L, st=None, prev=None: A.extend(sched.texts(fin(L, st, prev)))
    def codepf(lab, vt, dst, n):
        if not opt.get("jit", 1): return []
        return [f"s_getpc_b64 s[20:21]\nL_pcx{n}:\ns_add_u32 s20, s20, {lab}-L_pcx{n}\ns_addc_u32 s21, s21, 0",
                f"s_lshl_b32 s38, s3, 13\nv_lshl_add_u32 v{vt}, v0, 7, s38",
                f"v_min_u32 v{vt}, L_textend-{lab}-4, v{vt}",
                f"global_load_dword {dst}, v{vt}, s[20:21]"]
    VX, VW, DX, DW = 2, 6, 10, 12
    def acc(which, hx, ti, hw, tj):
        i = (hx * 2 + hw) * 16 + (ti * 4 + tj if which == 0 else tj * 4 + ti)
        return 16 + 4 * i if i < 60 else 256 + 64 + 4 * (i - 60)
    FX = [256 + 80, 256 + 0]; FW = [256 + 112, 256 + 32]
    XH = 400
    def fx(hx, ti, s_): return FX[hx] + (ti * 2 + s_) * 4
    def fw(bank, tj, s_): return FW[bank] + (tj * 2 + s_) * 4
    SX, SW, SO, SQ, SXI = 8, 12, 16, 40, 44
    SWO = 44
    P = []
    E = P.append
    A("s_cmp_ge_u32 s2, 256")
    A("s_cbranch_scc1 L_end")
    A.extend(ST.t(0) + cs('start'))
    E("s_load_dwordx4 s[52:55], s[0:1], 0")
    E("s_load_dwordx2 s[56:57], s[0:1], 16")
    E("s_load_dwordx4 s[20:23], s[0:1], 24")
    E("s_load_dwordx2 s[100:101], s[0:1], 40")
    E("s_load_dwordx4 s[4:7], s[0:1], 88")
    E("s_getpc_b64 s[30:31]")
    E("L_pc0:")
    E("v_lshrrev_b32 v1, 6, v0")
    E("s_lshr_b32 s25, s2, 3")
    E("s_and_b32 s38, s25, 3")
    E("s_lshl_b32 s38, s38, 15")
    E("v_lshlrev_b32 v16, 7, v0")
    E("v_add_u32 v16, s38, v16")
    E("v_min_u32 v16, L_textend-L_pc0-4, v16")
    if opt.get("codepf", 1): E("global_load_dword a255, v16, s[30:31]")
    E("v_and_b32 v0, 63, v0")
    E("v_readfirstlane_b32 s3, v1")
    if opt.get("map", 0) == 0:
        E("s_and_b32 s24, s2, 7")
        E("s_and_b32 s26, s25, 1")
        E("s_lshl_b32 s24, s24, 1")
        E("s_add_u32 s24, s24, s26")
        E("s_bfe_u32 s26, s25, 0x10001")
    else:
        E("s_and_b32 s24, s2, 6")
        E("s_and_b32 s26, s25, 3")
        E("s_lshl_b32 s24, s24, 1")
        E("s_add_u32 s24, s24, s26")
        E("s_and_b32 s26, s2, 1")
        if opt.get("map", 0) == 2: E("s_xor_b32 s26, s26, 1")
    E("s_lshr_b32 s27, s25, 2")
    E("s_sub_u32 s50, 15, s27")
    E("s_cmp_eq_u32 s26, 0")
    E("s_cselect_b32 s50, s50, s27")
    E("s_lshl_b32 s28, s2, 3")
    E("s_lshl_b32 s29, s3, 1")
    E("s_add_u32 s28, s28, s29")
    E("v_and_b32 v20, 1, v0")
    E("v_add_u32 v20, s28, v20")
    E("v_mul_u32_u24 v21, 896, v20")
    E("v_lshrrev_b32 v22, 1, v0")
    E("v_lshl_add_u32 v21, v22, 4, v21")
    E("s_lshl_b32 s28, s27, 7")
    E("s_lshl_b32 s29, s3, 5")
    E("s_add_u32 s28, s28, s29")
    E("v_lshrrev_b32 v1, 3, v0")
    E("v_add_u32 v1, s28, v1")
    E("v_lshlrev_b32 v1, 11, v1")
    E("v_lshrrev_b32 v16, 4, v0")
    E("v_and_b32 v17, 7, v0")
    E("v_xor_b32 v17, v17, v16")
    E("v_lshlrev_b32 v17, 4, v17")
    for i in range(4):
        E(f"v_xor_b32 v18, {64 if i & 1 else 0}, v17")
        E(f"v_add_u32 v18, v18, v1")
        E(f"v_add_u32 v{VX+i}, {i * (8 * 2048 - 1024)}, v18")
    E("s_lshl_b32 s28, s3, 4")
    E("v_add_u32 v1, s28, v16")
    E("v_lshlrev_b32 v1, 13, v1")
    E("s_lshl_b32 s28, s24, 9")
    E("v_add_u32 v1, s28, v1")
    E("v_and_b32 v17, 15, v0")
    E("v_lshlrev_b32 v18, 1, v16")
    E("v_xor_b32 v17, v17, v18")
    E("v_lshlrev_b32 v17, 4, v17")
    for i in range(4):
        E(f"v_xor_b32 v18, {128 if i & 2 else 0}, v17")
        E(f"v_add_u32 v18, v18, v1")
        E(f"v_add_u32 v{VW+i}, {i * (4 * 8192 - 1024)}, v18")
    E("s_lshl_b32 s32, s3, 12")
    E("s_mov_b32 s33, 0")
    E("s_mov_b32 s34, 0")
    for i in range(28, 32): E(f"v_mov_b32 v{i}, 0")
    E("s_waitcnt lgkmcnt(0)")
    srd(E, SX, 54, 2048 * 1024 * 2)
    E("s_cmp_eq_u32 s26, 0")
    E("s_cselect_b32 s20, s20, s22")
    E("s_cselect_b32 s21, s21, s23")
    srd(E, SW, 20, 1024 * 4096 * 2)
    def dma_setup(n):
        j = (n >> 2) & 1; t = n & 3
        if t in (0, 3):
            hx = 0 if t == 0 else 1
            slot = (2 * j + hx) * 16384
            setup = [f"s_add_u32 m0, s32, {slot}", f"s_add_u32 s35, s33, {j * 128 + hx * 1024 * 2048}"]
            d = [f"buffer_load_dwordx4 v{VX+i}, s[{SX}:{SX+3}], s35 offen offset:{i*1024}{opt.get('xflag', '')} lds @tag=ht{n}" for i in range(4)]
        else:
            hw = t - 1
            slot = 65536 + (2 * j + hw) * 16384
            setup = [f"s_add_u32 m0, s32, {slot}", f"s_add_u32 s35, s34, {j * 64 * 8192 + hw * 256}"]
            d = [f"buffer_load_dwordx4 v{VW+i}, s[{SW}:{SW+3}], s35 offen offset:{i*1024}{opt.get('wflag', ' nt')} lds @tag=ht{n}" for i in range(4)]
        return setup, d
    def reads(n):
        j = (n >> 2) & 1; t = n & 3
        out = []
        if t in (0, 3):
            hx = 0 if t == 0 else 1
            slot = (2 * j + hx) * 16384
            for ti in range(4):
                for s_ in range(2):
                    out.append(f"ds_read_b128 {r(fx(hx, ti, s_), 4)}, v{DX+s_} offset:{slot + ti * 2048}")
        else:
            hw = t - 1
            bank = hw ^ j
            slot = (2 * j + hw) * 16384
            for tj in range(4):
                for s_ in range(2):
                    for h2 in range(2):
                        out.append(f"ds_read_b64_tr_b16 {r(fw(bank, tj, s_) + 2 * h2, 2)}, v{DW+tj} offset:{slot + s_ * 8192 + h2 * 1024}")
        return out
    def dma_block(n):
        su, d = dma_setup(n)
        return su + d
    srd(E, SXI, 52, 2048 * 448 * 2)
    E(f"buffer_load_dwordx4 v[24:27], v21, s[{SXI}:{SXI+3}], 0 offen")
    E("s_mov_b32 exec_hi, 0xffff")
    E(f"buffer_load_dwordx4 v[28:31], v21, s[{SXI}:{SXI+3}], 0 offen offset:512")
    E("s_mov_b32 exec_hi, -1")
    for n in range(2): P.extend(dma_block(n))
    srd(E, SO, 6, 160 << 20)
    srd(E, SQ, 56, 448 * 4096 * 2)
    srd(E, SWO, 100, 4096 * 448 * 2)
    E("s_lshl_b32 s38, s50, 2"); E("s_add_u32 s38, s38, s3")
    E("s_mul_i32 s30, s38, 57344"); E("s_lshl_b32 s31, s24, 9"); E("s_add_u32 s30, s30, s31")
    E("s_add_u32 s56, s56, s30"); E("s_addc_u32 s57, s57, 0")
    E("s_mul_i32 s30, s24, 229376"); E("s_lshl_b32 s31, s38, 7"); E("s_add_u32 s30, s30, s31")
    E("s_add_u32 s100, s100, s30"); E("s_addc_u32 s101, s101, 0")
    E("v_and_b32 v62, 3, v0")
    E("v_lshlrev_b32 v60, 7, v62")
    E("v_add_co_u32 v60, vcc, s56, v60"); E("v_mov_b32 v61, s57"); E("v_addc_co_u32 v61, vcc, 0, v61, vcc")
    E("v_mul_u32_u24 v62, 57344, v62")
    E("v_add_co_u32 v62, vcc, s100, v62"); E("v_mov_b32 v63, s101"); E("v_addc_co_u32 v63, vcc, 0, v63, vcc")
    E("s_mov_b64 s[30:31], 0xf0")
    E("v_cndmask_b32 v60, v60, v62, s[30:31]"); E("v_cndmask_b32 v61, v61, v63, s[30:31]")
    E("s_load_dwordx4 s[52:55], s[0:1], 56")
    E("s_load_dwordx2 s[56:57], s[0:1], 72")
    W = []
    F_ = W.append
    F_("v_lshrrev_b32 v23, 4, v20")
    F_("v_mul_u32_u24 v23, 14336, v23")
    F_("v_lshl_add_u32 v23, v22, 8, v23")
    F_("v_and_b32 v20, 15, v20")
    F_("v_lshl_add_u32 v23, v20, 4, v23")
    F_("s_lshr_b32 s28, s3, 1")
    F_("s_and_b32 s29, s3, 1")
    F_("s_lshl_b32 s30, s28, 13")
    F_("v_and_b32 v1, 15, v0")
    F_("v_lshlrev_b32 v1, 7, v1")
    F_("v_add_u32 v1, s30, v1")
    F_("v_bfe_u32 v18, v0, 1, 3")
    F_("v_xor_b32 v17, v16, v18")
    F_("v_lshlrev_b32 v17, 4, v17")
    F_(f"v_add_u32 v{DX}, v17, v1")
    F_(f"v_xor_b32 v{DX+1}, 64, v{DX}")
    F_("v_lshlrev_b32 v1, 3, v16")
    F_("v_bfe_u32 v17, v0, 2, 2")
    F_("v_add_u32 v1, v1, v17")
    F_("v_lshlrev_b32 v1, 8, v1")
    F_("v_bfe_u32 v18, v0, 4, 1")
    F_("v_lshlrev_b32 v18, 2, v18")
    F_("v_or_b32 v17, v17, v18")
    F_("v_lshlrev_b32 v17, 1, v17")
    F_("v_bfe_u32 v19, v0, 1, 1")
    F_("s_lshl_b32 s30, s29, 3")
    F_("v_add_u32 v19, s30, v19")
    F_("v_xor_b32 v19, v19, v17")
    F_("v_lshlrev_b32 v19, 4, v19")
    F_("v_and_b32 v18, 1, v0")
    F_("v_lshlrev_b32 v18, 3, v18")
    F_("v_add3_u32 v1, v1, v18, v19")
    F_(f"v_add_u32 v{DW}, 0x10000, v1")
    for tj in range(1, 4): F_(f"v_xor_b32 v{DW+tj}, {tj << 5}, v{DW}")
    F_("v_lshlrev_b32 v1, 4, v0")
    F_("s_lshl_b32 s58, s24, 20\ns_lshl_b32 s38, s27, 16\ns_add_u32 s58, s58, s38\ns_lshl_b32 s38, s28, 15\ns_add_u32 s58, s58, s38")
    F_("s_add_u32 s38, s26, 11\ns_lshl_b32 s38, s29, s38\ns_add_u32 s58, s58, s38\ns_lshl_b32 s38, s26, 24\ns_add_u32 s58, s58, s38")
    F_(f"s_cmp_eq_u32 s26, 0\ns_mov_b32 s59, 16384\ns_mov_b32 s51, {(1024 - 16384) & 0xffffffff}\ns_mov_b32 s39, 8192\n"
       f"s_cselect_b32 s59, 1024, s59\ns_cselect_b32 s51, {8192 - 1024}, s51\ns_cselect_b32 s39, 4096, s39")
    F_(f"s_lshl_b32 s49, s24, 3\ns_add_u32 s49, s49, s27\ns_lshl_b32 s49, s49, 16\ns_lshl_b32 s38, s3, 14\ns_add_u32 s49, s49, s38\ns_add_u32 s49, s49, {WS_Q}")
    F_(f"s_lshl_b32 s48, s50, 3\ns_lshl_b32 s38, s3, 1\ns_add_u32 s48, s48, s38\ns_mul_i32 s48, s48, 14336\ns_add_u32 s48, s48, {WS_XN}")
    F_(f"s_lshl_b32 s22, s24, 4\ns_add_u32 s22, s22, s50\ns_lshl_b32 s22, s22, 8\ns_add_u32 s22, s22, {WS_FLAG}")
    W += [f"v_mov_b32 v{i}, 0" for i in range(64, 68)]
    F_("s_lshl_b32 s38, s2, 2\ns_add_u32 s38, s38, s3\ns_mul_i32 s38, s38, 6\ns_sub_u32 s38, s38, 8")
    F_("v_add_u32 v56, s38, v0")
    F_("v_min_u32 v56, 5375, v56")
    F_("v_lshrrev_b32 v57, 6, v56")
    F_("v_and_b32 v56, 63, v56")
    F_("v_lshlrev_b32 v56, 7, v56")
    F_("s_waitcnt lgkmcnt(0)")
    F_("v_mov_b32 v58, s52\nv_mov_b32 v59, s53\nv_mov_b32 v62, s54\nv_mov_b32 v63, s55")
    F_("v_cmp_le_u32 vcc, 28, v57\nv_subrev_u32 v54, 28, v57\ns_nop 0\nv_cndmask_b32 v58, v58, v62, vcc\nv_cndmask_b32 v59, v59, v63, vcc\nv_cndmask_b32 v57, v57, v54, vcc")
    F_("v_mov_b32 v62, s56\nv_mov_b32 v63, s57")
    F_("v_cmp_le_u32 vcc, 28, v57\nv_subrev_u32 v54, 28, v57\ns_nop 0\nv_cndmask_b32 v58, v58, v62, vcc\nv_cndmask_b32 v59, v59, v63, vcc\nv_cndmask_b32 v57, v57, v54, vcc")
    F_("v_mul_u32_u24 v57, 57344, v57")
    F_("v_add_u32 v56, v56, v57")
    F_("v_add_co_u32 v58, vcc, v58, v56\ns_nop 1\nv_addc_co_u32 v59, vcc, 0, v59, vcc")
    F_("s_mov_b64 s[30:31], 0x3f00\nv_cndmask_b32 v60, v60, v58, s[30:31]\nv_cndmask_b32 v61, v61, v59, s[30:31]")
    F_("s_mov_b32 s52, 8192\ns_mov_b32 s53, 0")
    rest = []
    for n in range(2, 4):
        su, d = dma_setup(n)
        rest += ["\n".join(su + [d[0]])] + d[1:]
    k = 0
    for i, z in enumerate(W):
        E(z)
        if i % 6 == 3 and k < len(rest):
            E(rest[k]); k += 1
    while k < len(rest): E(rest[k]); k += 1
    P += ST.t(1)
    for i in range(8):
        E(f"v_lshlrev_b32 v{32+2*i}, 16, v{24+i}")
        E(f"v_and_b32 v{33+2*i}, 0xffff0000, v{24+i}")
    def reduce32(x, t):
        for rr in (2, 4, 8):
            E(f"v_add_f32_dpp v{x}, v{x}, v{x} row_ror:{rr} row_mask:0xf bank_mask:0xf")
        for sw in ("v_permlane16_swap_b32", "v_permlane32_swap_b32"):
            E(f"v_mov_b32 v{t}, v{x}"); E(f"{sw} v{x}, v{t}"); E(f"v_add_f32 v{x}, v{x}, v{t}")
    E("v_pk_add_f32 v[48:49], v[32:33], v[34:35]")
    for i in range(2, 8): E(f"v_pk_add_f32 v[48:49], v[48:49], v[{32+2*i}:{33+2*i}]")
    E("v_add_f32 v48, v48, v49")
    reduce32(48, 50)
    E(f"v_mul_f32 v48, {hex(f2u(-1.0/448))}, v48")
    E("v_mov_b32 v49, v48")
    for i in range(4): E(f"v_pk_add_f32 v[{32+2*i}:{33+2*i}], v[{32+2*i}:{33+2*i}], v[48:49]")
    E("s_mov_b32 exec_hi, 0xffff")
    for i in range(4, 8): E(f"v_pk_add_f32 v[{32+2*i}:{33+2*i}], v[{32+2*i}:{33+2*i}], v[48:49]")
    E("s_mov_b32 exec_hi, -1")
    E("v_pk_mul_f32 v[50:51], v[32:33], v[32:33]")
    for i in range(1, 8): E(f"v_pk_fma_f32 v[50:51], v[{32+2*i}:{33+2*i}], v[{32+2*i}:{33+2*i}], v[50:51]")
    E("v_add_f32 v50, v50, v51")
    reduce32(50, 52)
    E(f"v_mov_b32 v51, {hex(f2u(1e-5))}")
    E(f"v_fmac_f32 v51, {hex(f2u(1.0/448))}, v50")
    E("v_rsq_f32 v50, v51")
    E(f"v_mul_f32 v50, {hex(f2u(QSCALE))}, v50")
    E("v_mov_b32 v51, v50")
    for i in range(8): E(f"v_pk_mul_f32 v[{32+2*i}:{33+2*i}], v[{32+2*i}:{33+2*i}], v[50:51]")
    for i in range(8): E(f"v_cvt_pk_bf16_f32 v{24+i}, v{32+2*i}, v{33+2*i}")
    E("WAITVM @need=ht0,ht1")
    E("s_barrier")
    P.extend(reads(0)); P.extend(reads(1))
    E(f"s_mov_b32 s38, {WS_XN}")
    E(f"buffer_store_dwordx4 v[24:27], v23, s[{SO}:{SO+3}], s38 offen sc1")
    E(f"s_mov_b32 s38, {WS_XN + 8192}")
    E("s_mov_b32 exec_hi, 0xffff")
    E(f"buffer_store_dwordx4 v[28:31], v23, s[{SO}:{SO+3}], s38 offen sc1")
    E("s_mov_b32 exec_hi, -1")
    E("s_lshl_b32 s38, s2, 9")
    E(f"s_add_u32 s38, s38, {WS_FLAG}")
    E("s_cmp_eq_u32 s3, 0")
    E(f"s_cselect_b32 s38, s38, {OOB}")
    E("s_mov_b32 exec_hi, 0")
    E(f"buffer_store_dwordx4 v[64:67], v1, s[{SO}:{SO+3}], s38 offen sc1")
    E("s_mov_b32 exec_hi, -1")
    if opt.get("tlb"):
        E("v_lshlrev_b32 v16, 21, v0")
        E("s_lshl_b32 s38, s2, 12"); E("s_lshl_b32 s30, s3, 10"); E("s_add_u32 s38, s38, s30")
        E(f"buffer_load_dword a253, v16, s[{SO}:{SO+3}], s38 offen")
        E("s_add_u32 s38, s38, 0x8000000")
        E(f"buffer_load_dword a252, v16, s[{SO}:{SO+3}], s38 offen")
    E("v_mov_b32 v0, v60"); E("v_mov_b32 v1, v61")
    P += ST.t(2) + cs('first')
    E("s_and_b32 s23, s25, 3")
    E("s_add_u32 s23, s23, 1")
    E("s_mov_b32 s36, 0")
    E("s_cmp_eq_u32 s26, 0")
    stP = sched.State()
    pro = fin(P, stP)
    A.extend(sched.texts(pro))
    A("s_cbranch_scc0 L_firstV")

    def phase_mfmas(which, g, first=False):
        j = (g >> 2) & 1; p = g & 3
        hx = 0 if p < 2 else 1
        hw = [0, 1, 1, 0][p]
        bank = hw ^ j
        m = []
        for ti in range(4):
            for tj in range(4):
                for s_ in range(2):
                    c_ = acc(which, hx, ti, hw, tj); X = fx(hx, ti, s_); W_ = fw(bank, tj, s_)
                    ci = "0" if (first and s_ == 0) else None
                    m.append(mfma16(c_, W_, X, ci) if which == 0 else mfma16(c_, X, W_, ci))
        return m
    PF = ["global_load_dword a254, v[0:1], off", "v_lshl_add_u64 v[0:1], s[52:53], 0, v[0:1]"] if opt.get("wpf", 1) else []
    def drain_quad(hx, hw):
        cv = []; stv = []; src = []
        so = 37 if hx == 0 else 40
        for n in range(8):
            idx = (hx * 2 + hw) * 16 + 2 * n
            if idx >= 60:
                t0 = 84 + 16 * (n & 1); t1 = t0 + 8
                cv += [f"v_accvgpr_read_b32 v{t0+i}, a{64 + 4 * (idx - 60) + i}" for i in range(4)]
                cv += [f"v_accvgpr_read_b32 v{t1+i}, a{64 + 4 * (idx - 60) + 4 + i}" for i in range(4)]
            else:
                t0 = 16 + 4 * idx; t1 = t0 + 4
            cv += [f"v_cvt_pk_bf16_f32 v{t0}, v{t0}, v{t0+1}", f"v_cvt_pk_bf16_f32 v{t0+1}, v{t0+2}, v{t0+3}",
                   f"v_cvt_pk_bf16_f32 v{t0+2}, v{t1}, v{t1+1}", f"v_cvt_pk_bf16_f32 v{t0+3}, v{t1+2}, v{t1+3}"]
            if n == 0:
                stv.append(f"s_mul_i32 s{so}, s13, {hw}")
                stv.append(f"s_add_u32 s{so}, s{so}, s58")
                if hx: stv.append(f"s_add_u32 s{so}, s{so}, {16 * 32768}")
            elif n & 1: stv.append(f"s_add_u32 s{so}, s{so}, s59")
            else: stv.append(f"s_add_u32 s{so}, s{so}, s14")
            src.append(t0)
            d0 = t0 if hx == 0 else HOLD + (hw * 8 + n) * 4
            stv.append(f"buffer_store_dwordx4 {r(d0, 4)}, v1, s[{SO}:{SO+3}], s{so} offen sc1 @tag=kv{hx}")
        return cv, stv, src
    HOLD = 256 + 128
    cv00, st00, _ = drain_quad(0, 0); cv01, st01, _ = drain_quad(0, 1); cv11, st11, src11 = drain_quad(1, 1); cv10, st10, src10 = drain_quad(1, 0)
    hold_mv = [f"v_accvgpr_write_b32 a{HOLD - 256 + (hw * 8 + n) * 4 + i}, v{(src11 if hw else src10)[n] + i}" for hw in (1, 0) for n in (6, 7, 0, 1, 2, 3, 4, 5) for i in range(4)]
    QV = 2; VF = 3; QD = 4
    REGION = [131072, 65536, 0, 98304, 32768]
    def region(sb): return REGION[sb % 5]
    QF = [FX[0], FW[0]]
    QACC = [16, 48]
    def q_dma(sb, u):
        cb, kh = sb >> 1, sb & 1
        ks = kh * 7 + u
        return [f"s_add_u32 m0, s31, {region(sb) + u * 4096}", f"s_mov_b32 s35, {ks * 32 * 8192 + cb * 128}",
                f"buffer_load_dwordx4 v{QV}, s[{SQ}:{SQ+3}], s35 offen lds @tag=sb{sb}"]
    def q_dmas(sb, us): return sum((q_dma(sb, u) for u in us), [])
    def q_reads(sb, dtl):
        n = sb * 4 + dtl
        return [f"ds_read_b64_tr_b16 {r(QF[n & 1] + 4 * u + 2 * h2, 2)}, v{QD+dtl} offset:{u * 4096 + h2 * 512}" for u in range(7) for h2 in range(2)]
    q_setup = ["s_mov_b32 s13, s39", "s_mov_b32 s14, s51", "s_lshl_b32 s31, s3, 10", "s_lshl_b32 s30, s3, 3", "v_lshrrev_b32 v7, 3, v0", "v_add_u32 v7, s30, v7", "v_lshlrev_b32 v7, 13, v7",
               "s_lshl_b32 s30, s24, 9", "v_add_u32 v7, s30, v7", "v_bfe_u32 v8, v0, 4, 1", "s_lshl_b32 s30, s29, 1", "v_or_b32 v8, s30, v8",
               "v_lshlrev_b32 v8, 1, v8", "v_and_b32 v9, 7, v0", "v_xor_b32 v8, v8, v9", f"v_lshl_add_u32 v{QV}, v8, 4, v7"]
    q_setup2 = ["v_lshrrev_b32 v8, 4, v0", "v_lshlrev_b32 v8, 3, v8", "v_bfe_u32 v9, v0, 2, 2", "v_add_u32 v8, v8, v9", "v_lshlrev_b32 v8, 7, v8",
                "v_bfe_u32 v9, v0, 3, 2", "v_lshlrev_b32 v9, 5, v9", "v_add_u32 v8, v8, v9", "v_and_b32 v9, 3, v0", "v_lshl_add_u32 v8, v9, 3, v8",
                f"v_add_u32 v{QD}, {region(0)}, v8"] + [f"v_xor_b32 v{QD+d}, {d << 5}, v{QD}" for d in range(1, 4)] + \
               ["s_lshl_b32 s30, s3, 6", "v_add_u32 v8, s30, v0", "v_lshrrev_b32 v9, 4, v8", "v_min_u32 v9, 1, v9", "v_lshlrev_b32 v9, 30, v9",
                f"v_lshl_add_u32 v{VF}, v8, 8, v9", "v_mov_b32 v9, 1", "s_and_b32 s15, s22, 0xfffff000"]
    adv2 = ["s_add_u32 s33, s33, 256", f"s_add_u32 s34, s34, {128 * 8192}"]
    def steady(which, g, extra=None):
        m = phase_mfmas(which, g)
        su, d = dma_setup(g + 8)
        f = [(15, su[0]), (16, su[1])] + [(17 + 4 * i, d[i]) for i in range(4)]
        f += spread(reads(g + 2), 0, 16)
        return m, f
    for which in (0, 1):
        sfx = "K" if which == 0 else "V"
        lab = "L_loop" + sfx
        A.label("L_first" + sfx)
        st = stP.copy()
        m = []; fixed = []; vm = []; rd = []
        for g in range(8):
            o = 32 * g
            m += phase_mfmas(which, g, first=(g < 4))
            fixed += [(o + 5, f"WAITVM @need=ht{g+2}\ns_waitcnt lgkmcnt(0)\ns_barrier")]
            hts = [4 + 2 * g, 5 + 2 * g] if g < 4 else [g + 8]
            it = []
            for n in hts:
                if n == 8: it += adv2
                it += dma_block(n)
            vm.append((it, o, o + 30))
            rd.append((reads(g + 2), o + 6, o + 25))
        fixed += [(254, "WAITVM @need=ht10,ht11\ns_waitcnt lgkmcnt(0)\ns_barrier"), (255, "\n".join(adv2))]
        if PF: fixed += [(200, PF[0]), (201, PF[1])]
        for nm in CST:
            if nm.startswith('f') and nm[1:].isdigit(): fixed += [(32 * int(nm[1:]) + 1, x) for x in cs(nm)]
        L = sched.pack(m, vm + rd, fixed, VB)
        fi = fin(L, st, pro)
        A.extend(sched.texts(fi))
        A.extend(cs('roll'))
        A(".p2align 6")
        A.label(lab)
        body = []
        for g in range(8):
            m, f = steady(which, g)
            if g == 0 and PF: f += [(18, PF[0]), (19, PF[1])]
            if g == 7:
                f += [(26, adv2[0]), (27, adv2[1]), (28, "s_add_u32 s36, s36, 1"), (31, "s_cmp_eq_u32 s36, s23")]
            if g & 1: f += [(30, "s_waitcnt vmcnt(16) lgkmcnt(0)"), (30, "s_barrier")]
            else: f += [(30, "s_waitcnt lgkmcnt(0)")]
            body += sched.pack(m, [], f)
        st = sched.State()
        lp = sched.finish_loop(body, st, prev=fi, report=rep)
        A.extend(sched.texts(lp))
        A(f"s_cbranch_scc0 {lab}")
        A("s_cmp_eq_u32 s36, 5")
        A(f"s_cbranch_scc0 L_hook")
        st = sched.State()
        st.vm = [(set(), f"ht{n}") for n in range(52, 56) for _ in range(4)]
        L = ST.t(3) + cs('peel')
        xl = [f"s_add_u32 s38, s48, {tt * 14336 + ks * 1024}\n"
              f"buffer_load_dwordx4 {r(XH + (tt * 14 + ks) * 4, 4)}, v1, s[{SO}:{SO+3}], s38 offen sc1"
              for ks in range(14) for tt in range(2)]
        m = []; fixed = []; rd = []
        for g in range(48, 64):
            o = (g - 48) * 32
            if g < 56:
                mm, f = steady(which, g)
                m += mm; fixed += [(o + a_, b_) for a_, b_ in f]
            else:
                m += phase_mfmas(which, g)
                if g + 2 < 64: rd.append((reads(g + 2), o, o + 22))
            if g & 1 and g < 61: fixed += [(o + 30, f"WAITVM @need=ht{g+3},ht{g+4}\ns_waitcnt lgkmcnt(0)\ns_barrier")]
            elif g == 61: fixed += [(o + 30, "s_waitcnt lgkmcnt(0)\ns_barrier")]
        if PF: fixed += [(18, PF[0])]
        fixed += [(19, "v_mbcnt_lo_u32_b32 v0, -1, 0"), (20, "v_mbcnt_hi_u32_b32 v0, -1, v0"), (22, "v_lshlrev_b32 v1, 2, v0"),
                  (23, "global_load_dword v0, v1, s[4:5] sc1 @tag=poll")]
        fixed += [(129, f"v_cmp_ne_u32 vcc, 0x01010101, v0"), (131, f"s_cbranch_vccnz {lab}_spin\n{lab}_spun:"),
                  (133, "v_lshrrev_b32 v0, 2, v1"), (135, "v_lshlrev_b32 v1, 2, v1")]
        for nm in CST:
            if nm.startswith('p') and nm[1:].isdigit(): fixed += [(32 * (int(nm[1:]) - 48) + 1, x) for x in cs(nm)]
        o = 256
        fixed += [(255, x) for x in cs('peel2')]
        fixed += [(o + 7 * 32 + 17, "WAITVM @need=sb0\ns_barrier")]
        vm = [(q_dmas(0, range(7)), o + 12, o + 40), (q_dmas(1, range(4)), o + 40, o + 62),
              (q_dmas(1, range(4, 7)), o + 64, o + 96), (q_dmas(2, range(4)), o + 96, o + 128),
              (q_dmas(2, range(4, 7)), o + 128, o + 160), (q_dmas(3, range(4)), o + 160, o + 192),
              (q_dmas(3, range(4, 7)), o + 192, o + 224), (q_dmas(4, range(7)), o + 224, o + 255)]
        streams = vm + [(xl[:12], 138, 256), (xl[12:], o + 64, o + 190), (st00, o + 190, o + 254)] + rd
        streams.append((q_setup, o + 1, o + 11))
        streams.append((q_setup2, o + 130, o + 160))
        streams.append((codepf("L_q", 4, "v5", 10 + which), o + 44, o + 62))
        streams.append((q_reads(0, 0), o + 7 * 32 + 18, o + 256))
        streams.append((cv00, o + 163, o + 190))
        streams.append((cv01, o + 195, o + 226))
        streams.append((cv11[:24], o + 227, o + 256))
        L += sched.pack(m, streams, fixed, VB)
        pe = fin(L, st, lp)
        A.extend(sched.texts(pe))
        if which == 0: A("s_branch L_q")
        stq = st
    NEGM = 4; TMP = 12; ORA = 24
    S0 = 32; P0 = 64; LS = 96; ONES = 104; O0 = 128
    QR = 256; FR = 320; PARK = 256 + 192; PARTL = 256 + 128
    WV = 112; WD = 119; AVF = 25; AV1 = 26
    def S(kt, tt): return S0 + (kt * 2 + tt) * 4
    def Pf(b, ks, tt): return P0 + 16 * b + (ks * 2 + tt) * 4
    def O(dt, tt): return O0 + (dt * 2 + tt) * 4
    def Q(tt, ds): return QR + (tt * 8 + ds) * 4
    def F(bank, i): return FR + bank * 32 + i * 4
    SWS = SO
    def dma4(kind, slot, half, tag=""):
        sreg = 30 if kind == "K" else 31
        base = (0 if kind == "K" else 65536) + slot * 32768 + half * 4096
        su = [f"s_add_u32 m0, s32, {base}", f"s_add_u32 s35, s{sreg}, {half * 4096}"]
        d = [f"buffer_load_dwordx4 v1, s[{SWS}:{SWS+3}], s35 offen offset:{i*1024} sc1 lds" + (f" @tag={tag}" if tag else "") for i in range(4)]
        return su, d
    def dma_adv(kind):
        sreg = 30 if kind == "K" else 31; cnt = 33 if kind == "K" else 34; t = 20 if kind == "K" else 21
        return [f"s_sub_u32 s{cnt}, s{cnt}, 1", f"s_cmp_eq_u32 s{cnt}, s28\ns_cselect_b32 s{t}, s23, 0x8000",
                f"s_cmp_eq_u32 s{cnt}, s8\ns_cselect_b32 s{t}, s9, s{t}", f"s_add_u32 s{sreg}, s{sreg}, s{t}",
                f"s_cmp_gt_i32 s{cnt}, 0\ns_cselect_b32 s{sreg}, s{sreg}, {OOB}"]
    def dma_blk(kind, slot, tag=""):
        out = []
        for half in range(2):
            su, d = dma4(kind, slot, half, tag); out += su + d
        return out
    def signal(dw, sdata=None):
        return f"buffer_atomic_add v{{d}}, v{{f}}, s[{SWS}:{SWS+3}], s22 offen offset:{4*dw} sc1"
    A.label("L_q")
    L = ST.t(4) + cs('q')
    ng = 32
    def q_pack(cb):
        out = []
        for pr in range(2):
            for tt in range(2):
                a0 = QACC[cb & 1] + ((2 * pr) * 2 + tt) * 4; a1 = QACC[cb & 1] + ((2 * pr + 1) * 2 + tt) * 4
                q_ = Q(tt, cb * 2 + pr) - 256
                out += [f"v_cvt_pk_bf16_f32 v{a0}, v{a0}, v{a0+1}", f"v_cvt_pk_bf16_f32 v{a0+1}, v{a0+2}, v{a0+3}",
                        f"v_cvt_pk_bf16_f32 v{a0+2}, v{a1}, v{a1+1}", f"v_cvt_pk_bf16_f32 v{a0+3}, v{a1+2}, v{a1+3}"]
                out += [f"v_accvgpr_write_b32 a{q_+i}, v{a0+i}" for i in range(4)]
        return out
    m = []; fixed = []; rstreams = []
    for n in range(ng):
        sb, dtl = n >> 2, n & 3
        cb, kh = sb >> 1, sb & 1
        for tt in range(2):
            for u in range(7):
                c_ = QACC[cb & 1] + (dtl * 2 + tt) * 4
                m.append(mfma16(c_, QF[n & 1] + 4 * u, XH + (tt * 14 + kh * 7 + u) * 4, "0" if (kh == 0 and u == 0) else None))
        if n + 1 < ng:
            sb2, d2 = (n + 1) >> 2, (n + 1) & 3
            g0 = 14 * n - 1
            if d2 == 0:
                need = f"sb{sb2}" + (",kv0" if sb2 == opt.get("sigb", 5) else "")
                fixed += [(g0, f"WAITVM @need={need}"), (g0, "s_barrier")]
            if sb2 > 0:
                delta = (region(sb2) - region(sb2 - 1)) & 0xffffffff
                fixed += [(g0 - 1, f"v_add_u32 v{QD+d2}, {hex(delta)}, v{QD+d2}")]
            rstreams.append((q_reads(sb2, d2), 14 * n, 14 * n + 12))
    G = lambda n: 14 * n
    vm = []
    for sb in (2, 3, 4): vm.append((q_dmas(sb + 3, range(7)), G(4 * sb), G(4 * sb + 3) - 2))
    SIGB = opt.get("sigb", 5)
    gs = G(4 * SIGB - 1)
    fixed += [(gs, f"buffer_atomic_add v9, v{VF}, s[{SWS}:{SWS+3}], s15 offen sc1")]
    C_ = 9
    asu = [f"s_lshl_b32 s32, s3, 13", "s_lshl_b32 s30, s24, 20", "s_add_u32 s30, s30, s32", f"s_add_u32 s31, s30, {WS_V}",
           "s_lshl_b32 s21, s27, 1",
           "s_add_u32 s29, s21, 2",
           "s_sub_u32 s20, 32, s21", f"s_min_u32 s33, s20, {NA}",
           "s_sub_u32 s25, s20, s33",
           f"s_sub_i32 s20, {C_}, s29", "s_max_i32 s20, s20, 0", "s_min_u32 s20, s20, s25",
           "s_sub_u32 s21, s25, s20",
           "s_sub_u32 s28, s33, s29", "s_add_u32 s23, s20, 1", "s_mov_b32 s8, 2", "s_add_u32 s9, s21, 1",
           "s_sub_u32 s11, s28, 1",
           f"s_cmp_eq_u32 s26, 0\ns_cselect_b32 s28, s28, s21", f"s_cmp_eq_u32 s26, 0\ns_cselect_b32 s23, s23, s11",
           f"s_cmp_eq_u32 s26, 0\ns_cselect_b32 s8, s8, -1",
           "s_lshl_b32 s23, s23, 15", "s_lshl_b32 s9, s9, 15",
           "s_add_u32 s34, s29, s25",
           f"s_cmp_eq_u32 s26, 0\ns_cselect_b32 s29, s33, s29", f"s_cmp_eq_u32 s26, 0\ns_cselect_b32 s33, s33, s34", "s_mov_b32 s34, s33",
           "s_mov_b32 s10, 0x7fff", "s_mov_b32 s11, 0",
           "s_add_u32 s20, s6, s22\ns_addc_u32 s21, s7, 0"]
    fixed += [(G(19) + 1 + 2 * i, x) for i, x in enumerate(asu)]
    gp = G(opt.get("pollg", 28))
    fixed += [(gp - 30, "s_load_dword s52, s[20:21], 0 glc")]
    fixed += [(gp - 2, "s_waitcnt lgkmcnt(0)"), (gp - 1, "s_cmp_ge_u32 s52, 16\ns_cbranch_scc0 L_spin1\nL_spun1:")]
    vm.append((dma_blk("K", 1, "k0") + dma_adv("K") + dma_blk("V", 1, "v0") + dma_adv("V"), gp + 1, G(32)))
    if opt.get("qst"):
        for k_, g_ in zip((8, 9, 1), opt["qst"]): fixed += [(G(g_) + 2, x) for x in ST.t(k_)]
    for nm in CST:
        if nm.startswith("g"): fixed += [(G(int(nm[1:])) + 2, x) for x in cs(nm)]
    if opt.get("no_st01"): st01 = [x for x in st01 if not x.startswith("buffer")]
    streams = vm + [(st01, 4, G(opt.get("st01end", 12)))] + rstreams
    streams.append((cv11[24:] + cv10, 4, G(8)))
    for cb in range(3): streams.append((q_pack(cb), G(8 * cb + 8) + 3, G(8 * cb + 16) - 2))
    L += sched.pack(m, streams, fixed, VB)
    L += q_pack(3)
    L += ST.t(5) + cs('qend')
    def kreads(slot, kt, bank):
        return [f"ds_read_b128 {r(F(bank, ds), 4)}, v1 offset:{slot * 32768 + (kt * 8 + ds) * 1024}" for ds in range(8)]
    def vreads(slot, grp, bank):
        return [f"ds_read_b128 {r(F(bank, d * 2 + ks), 4)}, v2 offset:{slot * 32768 + (ks * 16 + 4 * grp + d) * 1024}"
                for d in range(4) for ks in range(2)]
    def qk_group(kt, bank, cinit):
        m = []
        for tt in range(2):
            for ds in range(8):
                ci = None if ds else ("0" if cinit == 0 else NEGM + 4 * tt)
                m.append(mfma16(S(kt, tt), F(bank, ds), Q(tt, ds), ci))
        return m
    def pv_group(grp, bank, pb):
        return [mfma16(O(4 * grp + d, tt), F(bank, d * 2 + ks), Pf(pb, ks, tt)) for d in range(4) for tt in range(2) for ks in range(2)]
    def l_mfmas(pb):
        return [mfma16(LS + 4 * tt, ONES, Pf(pb, ks, tt)) for tt in range(2) for ks in range(2)]
    def softmax(pb):
        out = []; n = 0
        for kt in range(4):
            for tt in range(2):
                t = TMP + 4 * (n % 3); s_ = S(kt, tt); d = Pf(pb, kt >> 1, tt) + 2 * (kt & 1)
                out += [f"v_exp_f32 v{t+i}, v{s_+i}" for i in range(4)]
                out += [f"v_cvt_pk_bf16_f32 v{d}, v{t}, v{t+1}", f"v_cvt_pk_bf16_f32 v{d+1}, v{t+2}, v{t+3}"]
                out += [f"v_or_b32 v{ORA}, v{d}, v{d+1}" if n == 0 else f"v_or3_b32 v{ORA}, v{ORA}, v{d}, v{d+1}"]
                n += 1
        return out
    def smtile(pb, n): return softmax(pb)[7 * n:7 * n + 7]
    def mask_code(base):
        L = [f"s_sub_u32 s38, {base}, s29", "s_lshl_b32 s38, s38, 6", "s_lshl_b32 s39, s3, 5", "s_sub_u32 s38, s39, s38",
             "v_add_u32 v12, s38, v3", "v_cvt_f32_i32 v12, v12", "v_add_f32 v12, 0.5, v12", f"v_mul_f32 v12, {hex(f2u(1e30))}, v12"]
        n = 0
        for dd in range(-1, 4):
            for rr in range(4):
                c = rr + 16 * dd
                t = 13 + (n % 4); n += 1
                L.append(f"v_add_f32 v{t}, {hex(f2u(-c * 1e30))}, v12")
                for tt in range(2):
                    kt = dd + tt
                    if 0 <= kt < 4: L.append(f"v_min_f32 v{S(kt, tt)+rr}, v{S(kt, tt)+rr}, v{t}")
        return L
    def rescale(init, pb):
        L = []
        for tt in range(2):
            m_ = 12 + 2 * tt
            regs = [S(kt, tt) + i for kt in range(4) for i in range(4)]
            L.append(f"v_max3_f32 v{m_}, v{regs[0]}, v{regs[1]}, v{regs[2]}")
            for k in range(3, 15, 2): L.append(f"v_max3_f32 v{m_}, v{m_}, v{regs[k]}, v{regs[k+1]}")
            L.append(f"v_max_f32 v{m_}, v{m_}, v{regs[15]}")
        for sw in ("v_permlane16_swap_b32", "v_permlane32_swap_b32"):
            for tt in range(2): L.append(f"v_mov_b32 v{13+2*tt}, v{12+2*tt}")
            for tt in range(2): L.append(f"{sw} v{12+2*tt}, v{13+2*tt}")
            for tt in range(2): L.append(f"v_max_f32 v{12+2*tt}, v{12+2*tt}, v{13+2*tt}")
        for tt in range(2):
            m_ = 12 + 2 * tt
            L.append(f"v_sub_f32 v{m_}, {hex(f2u(-B0))}, v{m_}")
            if not init: L.append(f"v_min_f32 v{m_}, 0, v{m_}")
            L.append(f"v_mov_b32 v{m_+1}, v{m_}")
        for tt in range(2):
            m_ = 12 + 2 * tt
            for i in range(2):
                a_ = NEGM + 4 * tt + 2 * i
                if init: L.append(f"v_pk_mov_b32 v[{a_}:{a_+1}], v[{m_}:{m_+1}], v[{m_}:{m_+1}]")
                else: L.append(f"v_pk_add_f32 v[{a_}:{a_+1}], v[{a_}:{a_+1}], v[{m_}:{m_+1}]")
            for kt in range(4):
                for i in range(2):
                    a_ = S(kt, tt) + 2 * i
                    L.append(f"v_pk_add_f32 v[{a_}:{a_+1}], v[{a_}:{a_+1}], v[{m_}:{m_+1}]")
        if not init:
            for tt in range(2):
                m_ = 12 + 2 * tt
                L.append(f"v_exp_f32 v{m_}, v{m_}")
                L.append(f"v_mov_b32 v{m_+1}, v{m_}")
                for rg in [O(dt, tt) + 2 * i for dt in range(16) for i in range(2)] + [LS + 4 * tt, LS + 4 * tt + 2]:
                    L.append(f"v_pk_mul_f32 v[{rg}:{rg+1}], v[{rg}:{rg+1}], v[{m_}:{m_+1}]")
        L += softmax(pb)
        return L
    zeroO = [f"v_mov_b32 v{i}, 0" for i in range(O0, O0 + 128)] + [f"v_mov_b32 v{i}, 0" for i in range(LS, LS + 8)]
    zeroOpk = [f"v_pk_mov_b32 v[{i}:{i+1}], 0, 0" for i in list(range(O0, O0 + 128, 2)) + list(range(LS, LS + 8, 2))]
    L += [f"v_mov_b32 v{AVF}, v{VF}", "v_add_u32 v2, 0x10000, v1", f"v_mov_b32 v{AV1}, 1"]
    L += ["WAITVM @need=k0", "s_barrier"]
    L += kreads(1, 0, 0)
    m = []; streams = []
    for kt in range(4): m += qk_group(kt, kt & 1, 0)
    qst = [f"s_cmp_eq_u32 s26, 0\ns_cselect_b32 s38, s49, {OOB}"]
    for n in range(16):
        if n and n % 4 == 0: qst.append("s_add_u32 s38, s38, 4096")
        qst.append(f"buffer_store_dwordx4 {r(QR + 4 * n, 4)}, v1, s[{SWS}:{SWS+3}], s38 offen offset:{(n % 4) * 1024} sc1 @tag=qs")
    streams.append((dma_blk("K", 0, "k1") + dma_adv("K"), 0, 34))
    streams.append((qst[:10], 34, 63))
    for kt in range(3): streams.append((kreads(1, kt + 1, (kt + 1) & 1), 16 * kt, 16 * kt + 11))
    setup = ["v_lshrrev_b32 v12, 4, v0", "v_lshlrev_b32 v12, 2, v12", "v_and_b32 v13, 15, v0", "v_sub_u32 v3, v13, v12"] + \
            [f"v_mov_b32 v{ONES+i}, 0x3f803f80" for i in range(4)]
    streams.append((hold_mv + setup, 0, 63))
    L += sched.pack(m, streams, [], VB)
    L += ["s_barrier"]
    def mixv(valu, vm, every):
        out = []; k = 0; groups = []; cur = []
        for x in vm:
            cur.append(x)
            if x.startswith("buffer"): groups.append(cur); cur = []
        if cur: groups[-1] += cur
        for i, x in enumerate(valu):
            out.append(x)
            if i % every == every - 1 and k < len(groups): out += groups[k]; k += 1
        for g in groups[k:]: out += g
        return out
    L += mixv(zeroOpk, qst[10:], 8)
    L += ["s_mov_b32 s36, 3", f"s_cmp_eq_u32 s26, 0\ns_cselect_b32 s37, 2, 3", "s_cmp_eq_u32 s25, 0\ns_cselect_b32 s37, 1, s37"]
    L += ST.t(6) + cs('qk0')
    qq = fin(L, stq, pe)
    A.extend(sched.texts(qq))
    A("s_cmp_lt_u32 s29, s36")
    A("s_cbranch_scc0 L_nomask0")
    emit(mask_code(2))
    A.label("L_nomask0")
    L = rescale(True, 1)
    L.append("s_mov_b32 s38, 0x12492493")
    for p in range(7):
        L += [f"v_add_u32 v12, {p * 64}, v0", "v_mul_hi_u32 v13, v12, s38", "v_mul_u32_u24 v14, 14, v13", "v_sub_u32 v12, v12, v14",
              "v_mul_u32_u24 v13, 896, v13", "v_lshl_add_u32 v12, v12, 4, v13", f"v_subrev_u32 v{WV+p}, {(p % 4) * 1024}, v12"]
    L += ["v_lshrrev_b32 v12, 2, v0", "v_mul_u32_u24 v12, 224, v12", "v_and_b32 v13, 3, v0", f"v_lshl_add_u32 v{WD}, v13, 3, v12"]
    L = mixv(L, dma_blk("K", 1) + dma_adv("K"), 16)
    L += ["s_lshl_b32 s38, 1, s27", f"v_mov_b32 v{AV1}, s38", "s_waitcnt vmcnt(8)", "s_barrier"]
    L += kreads(0, 0, 0)
    L += [f"s_cmp_eq_u32 s26, 0\ns_cselect_b32 s38, s15, {OOB}",
          f"buffer_atomic_add v{AV1}, v{AVF}, s[{SWS}:{SWS+3}], s38 offen offset:8 sc1"]
    k4 = [i for i, x in enumerate(st11) if x.startswith("buffer")][opt.get('hp', [6])[0] - 1]
    L += st11[:k4 + 1] + ["s_waitcnt lgkmcnt(0)"]
    L += ST.t(7) + cs('att')
    emit(L)
    A("s_branch L_top1")
    place = lambda m, f: sched.pack(m, [], f, False)
    def phaseA(par):
        ks_ = (par + 1) & 1
        m = []
        for kt in range(4): m += qk_group(kt, kt & 1, 1)
        f = []
        f += list(zip([0, 1, 3, 4, 5, 7, 8, 9], kreads(ks_, 1, 1)))
        f += list(zip([11, 12, 13, 15, 16, 17, 19, 20], kreads(ks_, 2, 0)))
        f += list(zip([24, 25, 27, 28, 29, 31, 32, 33], kreads(ks_, 3, 1)))
        su0, d0 = dma4("V", ks_, 0); su1, d1 = dma4("V", ks_, 1)
        f += [(0, su0[0]), (1, su0[1])] + [(2 + 4 * i, d0[i]) for i in range(4)]
        f += [(16, su1[0]), (17, su1[1])] + [(18 + 4 * i, d1[i]) for i in range(4)]
        f += list(zip([43, 45, 48, 50, 54], dma_adv("V")))
        t0 = smtile(par ^ 1, 0); t1 = smtile(par ^ 1, 1)
        f += list(zip([21, 23, 34, 35, 24, 38, 39], t0))
        f += [(38, "s_waitcnt vmcnt(16) lgkmcnt(0)"), (38, "s_barrier")]
        su0, d0 = dma4("K", ks_, 0)
        f += [(37, su0[0]), (39, su0[1])] + [(40 + 6 * i, d0[i]) for i in range(4)]
        f += list(zip([36, 37, 42, 44, 41, 47, 49], t1))
        f += [(47 + 2 * i, x) for i, x in enumerate(vreads(par, 0, 0))]
        f += [(62, "s_cmp_le_u32 s29, s36")]
        return place(m, f)
    def phaseB(par):
        mm = l_mfmas(par)
        for grp in range(4): mm += pv_group(grp, grp & 1, par)
        f = []
        for grp in range(3):
            f += [(5 + 16 * grp + 2 * i, x) for i, x in enumerate(vreads(par, grp + 1, (grp + 1) & 1))]
        f += [(56, "s_waitcnt vmcnt(16) lgkmcnt(0)"), (56, "s_barrier")]
        f += [(57 + i, x) for i, x in enumerate(kreads(par, 0, 0))]
        dg = [6, 20, 34, 48]
        eg = [g for g in range(0, 56, 2) if g not in dg]
        su1, d1 = dma4("K", (par + 1) & 1, 1)
        f += [(1, su1[0]), (2, su1[1])] + list(zip(dg, d1))
        f += list(zip([50, 58, 60, 62, 63], dma_adv("K")))
        for t in range(2, 8):
            x = smtile(par ^ 1, t); e = eg[4 * (t - 2):4 * (t - 2) + 4]
            f += list(zip(e, x[:4])) + [(e[1] + 1, x[4]), (e[3] + 1, x[5]), (e[3] + 3, x[6])]
        f += [(59, f"v_and_b32 v{ORA}, 0x40004000, v{ORA}"), (61, f"v_cmp_ne_u32 vcc, 0, v{ORA}")]
        f += [(0, "s_sub_u32 s29, s29, 1"), (66, "s_cmp_le_u32 s29, s10")]
        return place(mm, f)
    st = sched.State()
    whole = phaseA(0) + ["LBL_B0:"] + phaseB(0) + ["LBL_A1:"] + phaseA(1) + ["LBL_B1:"] + phaseB(1)
    lp = sched.texts(sched.finish_loop(whole, st, report=rep))
    iB0 = lp.index("LBL_B0:"); iA1 = lp.index("LBL_A1:"); iB1 = lp.index("LBL_B1:")
    seg = {("A", 0): lp[:iB0], ("B", 0): lp[iB0 + 1:iA1], ("A", 1): lp[iA1 + 1:iB1], ("B", 1): lp[iB1 + 1:]}
    A(".p2align 6")
    for par in range(2):
        A.label(f"L_top{par}")
        A.extend(seg[("A", par)])
        A(f"s_cbranch_scc1 L_mask{par}")
        A.label(f"L_B{par}")
        A.extend(seg[("B", par)])
        A(f"s_cbranch_scc1 L_endg{par}")
        A("s_cbranch_vccnz L_rare0" if par == 0 else "s_cbranch_vccz L_top0")
    PL = NA & 1
    hs = st11 + st10
    def split_stores(lst, cnts):
        out = []; cur = []; k = 0; c = 0
        for x in lst:
            cur.append(x)
            if x.startswith("buffer"):
                c += 1
                if c == cnts[k]: out.append(cur); cur = []; c = 0; k += 1
        return out
    HP = opt.get('hp', [6, 5, 5])
    hparts = split_stores(hs, HP)[1:]
    JS = len(hparts)
    for par in (1, 0):
        A.label(f"L_rare{par}")
        A("s_nop 7")
        emit(rescale(False, par ^ 1))
        A("s_cmp_eq_u32 s29, 1")
        A(f"s_cbranch_scc0 L_top{par ^ 1}")
        A.label(f"L_one{par}")
        if par == 1:
            A("s_cmp_eq_u32 s37, 3")
            A("s_cbranch_scc1 L_preswitch")
        A(f"s_branch L_last{par ^ 1}")
        A.label(f"L_endg{par}")
        A("s_cmp_eq_u32 s10, 1")
        A(f"s_cbranch_scc1 L_endh{par}")
        A("s_add_u32 s11, s11, 1")
        for j in range(6):
            if ((j + 1) & 1) != par: continue
            A(f"s_cmp_eq_u32 s11, {j + 1}")
            A(f"s_cbranch_scc0 L_hk{j}_n")
            if opt.get('hst') and j in opt['hst']: A.extend(ST.t((8, 9, 1)[opt['hst'].index(j)]))
            if j < JS:
                emit(hparts[j])
            elif j == JS:
                A("v_mov_b32 v12, 1")
                A(f"buffer_atomic_add v12, v{AVF}, s[{SWS}:{SWS+3}], s15 offen offset:4 sc1")
            elif j == 5:
                A("s_add_u32 s38, s6, s22"); A("s_addc_u32 s39, s7, 0")
                A("s_load_dword s38, s[38:39], 4 glc")
                A("s_mov_b32 s10, 1")
                A("s_waitcnt lgkmcnt(0)")
                A("s_cmp_ge_u32 s38, 16")
                A("s_cbranch_scc0 L_spin2")
                A.label("L_spun2")
            A.label(f"L_hk{j}_n")
        A("s_cmp_le_u32 s29, 1")
        A(f"s_cbranch_scc1 L_endh{par}")
        A(f"s_cbranch_vccnz L_rare{par}")
        A(f"s_branch L_top{par ^ 1}")
        A.label(f"L_endh{par}")
        if par == 0:
            A("s_cmp_eq_u32 s29, 0")
            A("s_cbranch_scc1 L_switch")
        A(f"s_cbranch_vccnz L_rare{par}")
        A(f"s_branch L_one{par}")
        A.label(f"L_mask{par}")
        if par == 1:
            A("s_lshl_b32 s38, s37, 2")
            A("s_add_u32 s38, s38, s29")
            A("s_cmp_eq_u32 s38, 14")
            A("s_cbranch_scc1 L_getq")
            A.label("L_gotq")
        A("s_nop 7")
        emit(codepf(f"L_last{PL ^ 1}", 13, "v27", 20 + par))
        emit(mask_code(3) + smtile(par ^ 1, 0) + smtile(par ^ 1, 1))
        A(f"s_branch L_B{par}")
    def vpoll(lab, dw, test, done, va=12, vd=13):
        A.label(lab)
        A("s_mov_b32 s39, 0")
        A("s_add_u32 s20, s6, s22"); A("s_addc_u32 s21, s7, 0")
        A.label(lab + "_l")
        A(f"s_load_dword s38, s[20:21], {4*dw} glc")
        A("s_waitcnt lgkmcnt(0)")
        A(test)
        A(f"s_cbranch_scc1 {done}")
        A("s_add_u32 s39, s39, 1")
        A(f"s_cmp_gt_u32 s39, {SPINMAX}")
        A(f"s_cbranch_scc1 {done}")
        A(f"s_sleep {opt.get('sleep', 2)}")
        A(f"s_branch {lab}_l")
    A.label("L_getq")
    A("s_add_u32 s20, s6, s22"); A("s_addc_u32 s21, s7, 0")
    A("s_load_dword s38, s[20:21], 8 glc")
    A("s_waitcnt lgkmcnt(0)")
    A("s_bitcmp1_b32 s38, s27")
    A("s_cbranch_scc1 L_getq2")
    vpoll("L_getq_p", 2, "s_bitcmp1_b32 s38, s27", "L_getq2")
    A.label("L_getq2")
    A("s_mov_b32 s38, s49")
    for n in range(16):
        if n and n % 4 == 0: A("s_add_u32 s38, s38, 4096")
        A(f"buffer_load_dwordx4 {r(QR + 4 * n, 4)}, v1, s[{SWS}:{SWS+3}], s38 offen offset:{(n % 4) * 1024} sc1")
    A("s_branch L_gotq")
    A.label("L_preswitch")
    for i in range(8): A(f"v_mov_b32 v{NEGM+i}, 0")
    A("s_mov_b32 s36, 0")
    A(f"s_cmp_le_u32 s11, {JS}")
    A("s_cbranch_scc1 L_presw2")
    A("s_waitcnt vmcnt(4)")
    A("s_branch L_top0")
    A.label("L_presw2")
    A(f"s_waitcnt vmcnt({4 + min(HP[1:])})")
    A("s_branch L_top0")
    CT = 32
    def ctx(tt, ds): return CT + (tt * 8 + ds) * 4
    def pack_plain(mode):
        L = [f"v_rcp_f32 v{12+2*tt}, v{LS+4*tt}" for tt in range(2)] + [f"v_mov_b32 v{13+2*tt}, v{12+2*tt}" for tt in range(2)]
        n = 0
        for tt in range(2):
            for ds in range(8):
                dst = ctx(tt, ds) if mode == "ctx" else O(2 * ds, tt)
                for h in range(2):
                    o = O(2 * ds + h, tt)
                    for i in range(2):
                        L.append(f"v_pk_mul_f32 v[{o+2*i}:{o+2*i+1}], v[{o+2*i}:{o+2*i+1}], v[{12+2*tt}:{13+2*tt}]")
                    for i in range(2):
                        L.append(f"v_cvt_pk_bf16_f32 v{dst+2*h+i}, v{o+2*i}, v{o+2*i+1}")
                if mode == "park":
                    L += [f"v_accvgpr_write_b32 a{PARK - 256 + 4 * n + i}, v{dst+i}" for i in range(4)]
                if mode == "store":
                    if n and n % 4 == 0: L.append("s_add_u32 s41, s41, 4096")
                    L.append(f"buffer_store_dwordx4 v[{dst}:{dst+3}], v1, s[{SWS}:{SWS+3}], s41 offen offset:{(n % 4) * 1024} sc1 @tag=ps")
                n += 1
        return L
    A.label("L_switch")
    if not (opt.get("qst") or opt.get("hst")): A.extend(ST.t(8))
    A("s_nop 7")
    emit(pack_plain("park") + zeroOpk + rescale(True, 1) + ["s_mov_b32 s29, s25", "s_mov_b32 s37, 0"] + (ST.t(9) if not (opt.get("qst") or opt.get("hst")) else []))
    A("s_cmp_eq_u32 s29, 1")
    A("s_cbranch_scc0 L_top1")
    A("s_branch L_last1")
    OREG = [0, 32768, 131072, 65536, 98304]
    def oregion(sb): return OREG[sb % 5]
    def w_dma(sb):
        c, kh = sb >> 1, sb & 1
        out = []
        for p in range(7):
            if p % 4 == 0:
                out.append(f"s_add_u32 m0, s43, {oregion(sb) + p * 1024}")
                out.append(f"s_add_u32 s35, s48, {kh * 4 * 32 * 896 + c * 224}")
            out.append(f"buffer_load_dwordx4 v{WV+p}, s[{SWO}:{SWO+3}], s35 offen offset:{(p % 4) * 1024} lds @tag=wb{sb}")
        return out
    def lastB(par, vmem):
        mm = l_mfmas(par)
        for grp in range(4): mm += pv_group(grp, grp & 1, par)
        streams = [(vmem, 0, 67)]
        for grp in range(3): streams.append((vreads(par, grp + 1, (grp + 1) & 1), 4 + 16 * grp, 4 + 16 * grp + 12))
        return sched.pack(mm, streams, [], VB)
    mix = mixv
    dm = [w_dma(sb) for sb in range(8)]
    pl = [f"buffer_load_dwordx4 v[108:111], v1, s[{SWS}:{SWS+3}], s42 offen sc1"]
    for n in range(16):
        if n and n % 4 == 0: pl.append("s_add_u32 s41, s41, 4096")
        pl.append(f"buffer_load_dwordx4 {r(PARTL + 4 * n, 4)}, v1, s[{SWS}:{SWS+3}], s41 offen offset:{(n % 4) * 1024} sc1")
    for par in (PL ^ 1, PL):
        A.label(f"L_last{par}")
        if NA <= 18 and par != PL:
            A("s_endpgm"); continue
        A.extend(ST.t(10) + cs('last'))
        L = ["s_add_u32 s20, s6, s22", "s_addc_u32 s21, s7, 0", "s_load_dword s54, s[20:21], 12 glc"] + (tailmod.pre_setup()[0] if opt.get("fuse", 1) else []) + [
             "s_lshl_b32 s41, s24, 3", "s_add_u32 s41, s41, s27", "s_lshl_b32 s42, s41, 12", "s_lshl_b32 s38, s3, 10", "s_add_u32 s42, s42, s38",
             f"s_add_u32 s42, s42, {WS_PART + (8 << 20)}", "s_lshl_b32 s41, s41, 16", "s_lshl_b32 s38, s3, 14", "s_add_u32 s41, s41, s38",
             f"s_add_u32 s41, s41, {WS_PART}",
             "s_mul_i32 s43, s3, 7168", "s_mul_i32 s48, s24, 229376", f"s_mul_i32 s38, s3, {32 * 896}", "s_add_u32 s48, s48, s38",
             "s_lshl_b32 s51, s24, 7", "s_lshl_b32 s38, s50, 3", "s_add_u32 s51, s51, s38", "s_lshl_b32 s38, s3, 1", "s_add_u32 s51, s51, s38",
             "s_mul_i32 s51, s51, 14336", f"s_add_u32 s51, s51, {WS_Y}",
             "s_waitcnt vmcnt(0) lgkmcnt(0)", "s_barrier"] + vreads(par, 0, 0)
        stL = sched.State()
        l0 = fin(L, stL)
        A.extend(sched.texts(l0))
        if par == PL:
            A("s_cmp_eq_u32 s37, 2")
            A("s_cselect_b32 s38, s54, 0")
            A("s_bitcmp1_b32 s38, s27")
            A("s_cbranch_scc1 L_lastC")
        stN = stL.copy()
        L = lastB(par, dm[0] + dm[1] + dm[2][:5])
        L += ["s_barrier", "s_nop 3"]
        ln = fin(L, stN, l0)
        A.extend(sched.texts(ln))
        if par != PL: A("s_branch L_fin1")
    A("s_cmp_eq_u32 s37, 0")
    A("s_cbranch_scc1 L_pub")
    A("s_cmp_eq_u32 s37, 2")
    A("s_cbranch_scc1 L_late")
    A.label("L_fin1")
    st1 = stN.copy()
    emit(mix(pack_plain("ctx"), dm[2][5:] + dm[3] + dm[4], 7), st1, ln)
    A("s_branch L_oproj")
    A.label("L_pub")
    st0 = stN.copy()
    L = [f"v_mov_b32 v108, v{NEGM}", f"v_mov_b32 v109, v{LS}", f"v_mov_b32 v110, v{NEGM+4}", f"v_mov_b32 v111, v{LS+4}",
         f"buffer_store_dwordx4 v[108:111], v1, s[{SWS}:{SWS+3}], s42 offen sc1 @tag=ps"]
    L += pack_plain("store")
    L += mix([f"v_accvgpr_read_b32 v{CT+i}, a{PARK-256+i}" for i in range(64)], dm[2][5:], 14)
    L += ["WAITVM @need=ps", "s_barrier", f"buffer_atomic_add v{AV1}, v{AVF}, s[{SWS}:{SWS+3}], s15 offen offset:12 sc1"]
    L += dm[3] + dm[4]
    emit(L, st0, ln)
    A("s_branch L_oproj")
    cb = []
    for tt in range(2):
        nb, lb = 108 + 2 * tt, 109 + 2 * tt
        cA, cB = 12 + 4 * tt, 14 + 4 * tt
        cb += [f"v_min_f32 v20, v{NEGM+4*tt}, v{nb}", f"v_sub_f32 v21, v20, v{NEGM+4*tt}", f"v_sub_f32 v22, v20, v{nb}",
               "v_exp_f32 v21, v21", "v_exp_f32 v22, v22", f"v_mul_f32 v22, v22, v{lb}", f"v_fma_f32 v20, v21, v{LS+4*tt}, v22",
               "v_rcp_f32 v20, v20", f"v_mul_f32 v{cA}, v21, v20", f"v_mul_f32 v{cB}, v22, v20",
               f"v_mov_b32 v{cA+1}, v{cA}", f"v_mov_b32 v{cB+1}, v{cB}"]
    n = 0
    for tt in range(2):
        cA, cB = 12 + 4 * tt, 14 + 4 * tt
        for ds in range(8):
            for h in range(2):
                o = O(2 * ds + h, tt)
                for i in range(2):
                    c_ = ctx(tt, ds) + 2 * h + i
                    t = 120 + 2 * (n % 4); n += 1
                    cb += [f"v_accvgpr_read_b32 v{c_}, a{PARTL - 256 + c_ - CT}",
                           f"v_pk_mul_f32 v[{o+2*i}:{o+2*i+1}], v[{o+2*i}:{o+2*i+1}], v[{cA}:{cA+1}]",
                           f"v_lshlrev_b32 v{t}, 16, v{c_}", f"v_and_b32 v{t+1}, 0xffff0000, v{c_}",
                           f"v_pk_fma_f32 v[{t}:{t+1}], v[{t}:{t+1}], v[{cB}:{cB+1}], v[{o+2*i}:{o+2*i+1}]",
                           f"v_cvt_pk_bf16_f32 v{c_}, v{t}, v{t+1}"]
    A.label("L_late")
    emit(dm[2][5:])
    vpoll("L_part_p", 3, "s_bitcmp1_b32 s38, s27", "L_late2")
    A.label("L_late2")
    emit(pl + mix(cb, dm[3] + dm[4], 24), sched.State())
    A("s_branch L_oproj")
    A.label("L_lastC")
    stC = stL.copy()
    L = lastB(PL, pl) + ["s_barrier"] + dm[0][:6] + mix(cb, dm[0][6:] + dm[1] + dm[2] + dm[3] + dm[4], 13)
    emit(L, stC, l0)
    A.label("L_oproj")
    st = sched.State()
    st.vm = [(set(), f"wb{sb}") for sb in range(5) for _ in range(7)]
    YA = [128, 184]
    def ya(c, mt, tt): return YA[c & 1] + (mt * 2 + tt) * 4
    def wf(n, u): return FR + (n & 3) * 16 + u * 4
    groups = [(sb, mt) for sb in range(8) for mt in range(7)]
    def w_pre(n):
        sb, mt = groups[n]
        pre = []
        if mt == 0:
            pre += [f"WAITVM @need=wb{sb}", "s_barrier"]
            if sb > 0: pre.append(f"v_add_u32 v{WD}, {hex((oregion(sb) - oregion(sb - 1)) & 0xffffffff)}, v{WD}")
        return pre
    def w_reads(n):
        sb, mt = groups[n]
        return [f"ds_read_b64_tr_b16 {r(wf(n, u) + 2 * h2, 2)}, v{WD} offset:{u * 7168 + h2 * 16 * 224 + mt * 32}" for u in range(4) for h2 in range(2)]
    def y_drain(pair):
        out = []
        t0, t1 = 2 * pair, 2 * pair + 1
        for tt in range(2):
            a0 = ya(t0 // 7, t0 % 7, tt); a1 = ya(t1 // 7, t1 % 7, tt)
            out += [f"v_cvt_pk_bf16_f32 v{a0}, v{a0}, v{a0+1}", f"v_cvt_pk_bf16_f32 v{a0+1}, v{a0+2}, v{a0+3}",
                    f"v_cvt_pk_bf16_f32 v{a0+2}, v{a1}, v{a1+1}", f"v_cvt_pk_bf16_f32 v{a0+3}, v{a1+2}, v{a1+3}",
                    f"s_add_u32 s38, s51, {tt * 14336 + pair * 1024}\n"
                    f"buffer_store_dwordx4 v[{a0}:{a0+3}], v1, s[{SWS}:{SWS+3}], s38 offen" + opt.get("yflag", " sc1") + " @tag=ys"]
        return out
    L = ST.t(11) + cs('oproj')
    for n in range(2): L += w_pre(n) + w_reads(n)
    m = []; fixed = []; rs_ = []; vm = []; dr = []
    tail = []
    for n, (sb, mt) in enumerate(groups):
        c, kh = sb >> 1, sb & 1
        for tt in range(2):
            for u in range(4):
                m.append(mfma16(ya(c, mt, tt), wf(n, u), ctx(tt, kh * 4 + u), "0" if (kh == 0 and u == 0) else None))
        if n + 2 < len(groups):
            fixed += [(8 * n - 1, x) for x in w_pre(n + 2)]
            rs_.append((w_reads(n + 2), 8 * n, 8 * n + 7))
    for sb in (2, 3, 4): vm.append((dm[sb + 3], 56 * sb, 56 * sb + 38))
    ready = {}
    for p in range(14):
        t1 = 2 * p + 1
        n_end = [n for n, (sb, mt) in enumerate(groups) if sb == 2 * (t1 // 7) + 1 and mt == t1 % 7][0]
        ready[p] = 8 * (n_end + 1) + 3
    SP = opt.get("ysp", 26)
    cur = 0
    for p in range(14):
        g0 = max(ready[p], cur)
        if g0 >= 444: tail += y_drain(p); continue
        g1 = min(g0 + SP, 448)
        t0 = 2 * p
        if t0 // 7 < 2: assert g1 <= 112 * (t0 // 7 + 2) + 8 * (t0 % 7), (p, g1)
        dr.append((y_drain(p), g0, g1)); cur = g1
    low = []
    if opt.get("fuse", 1):
        vm.append((codepf("L_tail", 12, "v13", 30), 20, 60))
        tld, ts1, ts2, txl = tailmod.pre_setup()
        low = [(ts1, 8, 200), (ts2, 200, 400)]
        low = [(ts1, 2, 60), (ts2, 100, 400)]
        vm.append((txl, 62, 90))
        fixed += [(410, "s_load_dword s36, s[20:21], 16 glc")]
    if opt.get("x_noy"): dr = [([x for x in it if "buffer_store" not in x], a_, b_) for it, a_, b_ in dr]
    if opt.get("x_nord"): rs_ = []
    L += sched.pack(m, vm + dr + rs_ + low, fixed, VB)
    L += tail
    L += ST.t(12) + cs('oend')
    oo = fin(L, st)
    A.extend(sched.texts(oo))
    tcold = None
    if opt.get("fuse", 1):
        A.label("L_tail")
        tcold = tailmod.gen_tail(A, opt, ST0, cs, rep, st, oo, SPINMAX)
    if ST.en:
        A("s_waitcnt vmcnt(0)")
        A.extend(ST.t(13) + cs('end'))
        if opt.get("dbgout") is not None:
            A("s_waitcnt lgkmcnt(0)")
            A(f"s_cmp_eq_u32 s2, {opt['dbgout']}"); A("s_cbranch_scc0 L_end")
            A("s_cmp_eq_u32 s3, 0"); A("s_cbranch_scc0 L_end")
            A("v_mov_b32 v0, 0")
            for i in range(1, 14):
                A(f"s_sub_u32 s38, s{60+2*i}, s60"); A("v_mov_b32 v1, s38"); A(f"global_store_dword v0, v1, s[4:5] offset:{4*i}")
            A("s_sub_u32 s38, s94, s88"); A("v_mov_b32 v1, s38"); A(f"global_store_dword v0, v1, s[4:5] offset:0")
        else:
            ST.write(A, 6, 0)
    A.label("L_end")
    A("s_endpgm")
    A.label("L_hook")
    A("s_mov_b32 s23, 5")
    A("s_cmp_eq_u32 s3, 0")
    A("s_cbranch_scc0 L_hook_ret")
    A("s_add_u32 s20, s4, s2")
    A("s_addc_u32 s21, s5, 0")
    A("s_mov_b32 exec_lo, 0")
    A("s_mov_b32 exec_hi, 0x80000000")
    A("v_readlane_b32 s38, v0, 63")
    A("v_readlane_b32 s30, v1, 63")
    A("v_mov_b32 v0, 0")
    A("v_mov_b32 v1, 1")
    A("global_store_byte v0, v1, s[20:21] sc1")
    A("s_nop 1")
    A("v_mov_b32 v0, s38")
    A("v_mov_b32 v1, s30")
    A("s_mov_b64 exec, -1")
    A.label("L_hook_ret")
    A("s_cmp_eq_u32 s26, 0")
    A("s_cbranch_scc1 L_loopK")
    A("s_branch L_loopV")
    for which in (0, 1):
        lab = "L_loopK" if which == 0 else "L_loopV"
        A.label(lab + "_spin")
        A("s_mov_b32 s30, 0")
        A.label(lab + "_spin_l")
        A("s_add_u32 s30, s30, 1")
        A(f"s_cmp_gt_u32 s30, {SPINMAX}")
        A(f"s_cbranch_scc1 {lab}_spun")
        A("s_sleep 1")
        A("global_load_dword v0, v1, s[4:5] sc1")
        A("s_waitcnt vmcnt(0)")
        A("v_cmp_ne_u32 vcc, 0x01010101, v0")
        A("s_nop 4")
        A(f"s_cbranch_vccnz {lab}_spin_l")
        A(f"s_branch {lab}_spun")
    vpoll("L_spin1", 0, "s_cmp_ge_u32 s38, 16", "L_spun1", 8, 8)
    vpoll("L_spin2", 1, "s_cmp_ge_u32 s38, 16", "L_spun2")
    if tcold: tcold(A)
    if opt.get("report"):
        for x in rep: print("HAZ", x)
    return kernel_header(name) + A.text() + kernel_desc(name, vgpr=512, accum=256)
```

```python
from common import *
import sched, math, struct
def f2u(x): return struct.unpack("<I", struct.pack("<f", x))[0]
OOB = 0x70000000

def mixv(valu, vm, every, start=0):
    out = []; k = 0; groups = []; cur = []
    for x in vm:
        cur.append(x)
        if "buffer_" in x: groups.append(cur); cur = []
    if cur: groups[-1] += cur
    for i, x in enumerate(valu):
        out.append(x)
        if i >= start and (i - start) % every == every - 1 and k < len(groups): out += groups[k]; k += 1
    for g in groups[k:]: out += g
    return out

SO = 16; SW13 = 8; SW2 = 12; SXO = 52; SOUT = 56
WV, WD, VF, ONE = 2, 9, 10, 11
W2V, W2D = 16, 23
REG = [65536, 98304, 0, 32768, 131072]
STATS = 28672
def region(sb): return REG[sb % 5]
def w_dma(sb):
    out = []
    for p in range(7):
        if p % 4 == 0:
            out.append(f"s_add_u32 m0, s43, {region(sb) + p * 1024}")
            out.append(f"s_add_u32 s35, s49, {sb * 64 * 3584}")
        out.append(f"buffer_load_dwordx4 v{WV+p}, s[{SW13}:{SW13+3}], s35 offen offset:{(p % 4) * 1024} lds @tag=fb{sb}")
    return out

def pre_setup():
    ld = ["s_load_dwordx2 s[8:9], s[0:1], 56", "s_load_dwordx2 s[100:101], s[0:1], 64", "s_load_dwordx2 s[12:13], s[0:1], 72",
          "s_load_dwordx2 s[56:57], s[0:1], 80", "s_load_dwordx2 s[52:53], s[0:1], 0"]
    L = []; F = L.append
    L += ["s_cmp_lt_u32 s3, 2\ns_cselect_b32 s8, s8, s100\ns_cselect_b32 s9, s9, s101"]
    for d, nb in ((SXO, 2048 * 448 * 2), (SW13, 448 * 1792 * 2), (SW2, 448 * 1792 * 2), (SOUT, 2048 * 448 * 2)):
        L += [f"s_and_b32 s{d+1}, s{d+1}, 0xffff", f"s_mov_b32 s{d+2}, {nb}", f"s_mov_b32 s{d+3}, 0x00020000"]
    F("s_lshl_b32 s25, s50, 3"); F("s_lshr_b32 s39, s24, 1"); F("s_add_u32 s25, s25, s39")
    F("s_and_b32 s26, s24, 1")
    F("v_and_b32 v14, 7, v0"); F("v_bfe_u32 v15, v0, 3, 2"); F("v_lshrrev_b32 v26, 5, v0")
    F("s_lshl_b32 s39, s25, 4"); F("s_lshl_b32 s37, s26, 3"); F("s_add_u32 s39, s39, s37")
    F("v_add_u32 v106, s39, v14"); F("v_mul_u32_u24 v106, 896, v106"); F("v_lshl_add_u32 v106, v15, 3, v106"); F("v_lshl_add_u32 v106, v26, 5, v106")
    F("s_lshl_b32 s37, s3, 6"); F("v_add_u32 v106, s37, v106")
    F(f"s_cmp_lt_u32 s3, 2\ns_cselect_b32 s28, 0, {OOB}\ns_cselect_b32 s29, 1.0, 0")
    n1 = len(L)
    F("s_mul_i32 s27, s25, 14336"); F("s_lshl_b32 s39, s26, 7"); F("s_add_u32 s27, s27, s39"); F("s_lshl_b32 s39, s3, 10"); F("s_add_u32 s27, s27, s39")
    F(f"s_add_u32 s27, s27, {WS_Y}")
    F("v_lshlrev_b32 v27, 4, v14"); F("v_lshl_add_u32 v27, v15, 8, v27")
    F("s_mov_b32 s39, 1835008"); F("v_mad_u32_u24 v104, v26, s39, v27")
    F(f"s_mov_b32 s37, {WS_HN - WS_H}"); F("v_sub_u32 v105, 1, v26"); F("v_mad_u32_u24 v105, v105, s37, v27")
    F("v_lshlrev_b32 v107, 4, v14"); F(f"v_add_u32 v107, {STATS}, v107")
    F("s_lshl_b32 s39, s3, 2"); F("v_add_u32 v108, s39, v107")
    F("s_mov_b32 s33, 0x00003f80"); F("s_mov_b32 s34, 0x3f800000")
    F("v_and_b32 v14, 0x40000000, v25"); F(f"v_lshl_add_u32 v{VF}, v0, 12, v14"); F("s_lshl_b32 s39, 1, s24"); F(f"v_mov_b32 v{ONE}, s39")
    F("s_lshl_b32 s39, s3, 2"); F("s_lshl_b32 s32, 15, s39")
    F("s_mov_b32 s37, 0x12492493"); F("s_and_b32 s39, s24, 1"); F("s_lshl_b32 s39, s39, 1")
    for p in range(7):
        L += [f"v_add_u32 v14, {p * 64}, v0", "v_mul_hi_u32 v15, v14, s37", "v_mul_u32_u24 v26, 14, v15", "v_sub_u32 v14, v14, v26",
              "v_add_u32 v14, s39, v14", "v_subrev_u32 v26, 14, v14", "v_min_u32 v14, v14, v26",
              "v_mul_u32_u24 v15, 3584, v15", "v_lshl_add_u32 v14, v14, 4, v15", f"v_subrev_u32 v{WV+p}, {(p % 4) * 1024}, v14"]
    L += ["s_and_b32 s39, s3, 1", f"s_mul_i32 s49, s39, {32 * 3584}", "s_mul_i32 s39, s24, 224", "s_add_u32 s49, s49, s39"]
    L += ["v_lshrrev_b32 v14, 2, v0", "v_mul_u32_u24 v14, 224, v14", "v_and_b32 v15, 3, v0", f"v_lshl_add_u32 v14, v15, 3, v14",
          f"v_add_u32 v{WD}, {region(0)}, v14", f"v_add_u32 v{W2D}, s43, v14", f"v_add_u32 v{W2D+1}, 0x10000, v{W2D}", f"v_add_u32 v{W2D+2}, 0x20000, v{W2D}"]
    L += [f"v_mov_b32 v{W2V+p}, v{112+p}" for p in range(7)]
    L += ["s_lshl_b32 s23, s50, 8", f"s_add_u32 s23, s23, {WS_FLAG}", "s_add_u32 s20, s6, s22\ns_addc_u32 s21, s7, 0"]
    L += ["s_and_b32 s39, s24, 3", "s_mul_i32 s39, s39, 224", f"s_mul_i32 s42, s3, {14 * 32 * 896}", "s_add_u32 s42, s42, s39"]
    xl = [f"buffer_load_dwordx2 v[{96+2*q}:{97+2*q}], v106, s[{SXO}:{SXO+3}], {'s28' if q == 3 else '0'} offen offset:{q*256}" for q in range(4)]
    return ld, L[:n1], L[n1:], xl

def gen_tail(A, opt, ST, cs, rep, st, prev, SPINMAX):
    VB = opt.get("verbose")
    T = (lambda i: ST.t(i)) if opt.get("tst") else (lambda i: [])
    spins = []
    def poll(dw, n):
        spins.append((dw, n))
        return [f"s_load_dword s38, s[20:21], {16+4*dw} glc", "s_waitcnt lgkmcnt(0)", "s_andn2_b32 s38, s32, s38", f"s_cbranch_scc1 L_tspin{n}", f"L_tspun{n}:"]
    def sig(dw): return f"buffer_atomic_add v{ONE}, v{VF}, s[{SO}:{SO+3}], s23 offen offset:{16+4*dw} sc1"
    USLOT = [3, 4, 2, 3, 4, 2, 3, 4, 0, 1, 2, 3, 4, 0]
    quads = [256 + 176 + 4 * i for i in range(20)] + [152 + 4 * i for i in range(26)]
    def w2f(u, mt):
        if u < 6: return quads[u * 7 + mt]
        if u < 9: return 256 + (u - 6) * 28 + mt * 4
        return quads[(u - 9) * 7 + mt]
    def w2_dma(u):
        out = []
        for p in range(7):
            if p % 4 == 0:
                out.append(f"s_add_u32 m0, s43, {REG[USLOT[u]] + p * 1024}")
                out.append(f"s_add_u32 s35, s42, {u * 32 * 896}")
            out.append(f"buffer_load_dwordx4 v{W2V+p}, s[{SW2}:{SW2+3}], s35 offen offset:{(p % 4) * 1024} lds @tag=wu{u}")
        return out
    def w2_reads(u):
        a_ = REG[USLOT[u]]; b = W2D + (a_ >> 16); o = a_ & 0xffff
        return [f"ds_read_b64_tr_b16 {r(w2f(u, mt) + 2 * h2, 2)}, v{b} offset:{o + h2 * 16 * 224 + mt * 32}" for mt in range(7) for h2 in range(2)]
    def rd_only(u): return [f"WAITVM @need=wu{u}"] + w2_reads(u)
    L = []; E = L.append
    YB = 128; AC = 32
    def yissue(n, chk=True):
        o = ([f"s_cmp_lg_u32 s37, 0\ns_cbranch_scc0 L_ypoll{n}\nL_ygot{n}:"] if chk else []) + ["s_ff1_i32_b32 s36, s37", "s_bitset0_b32 s37, s36", "s_bitset0_b32 s51, s36",
             "s_mul_i32 s36, s36, 1835008", "s_add_u32 s36, s36, s27"]
        for q in range(4):
            y = YB + (n * 4 + q) * 4
            if q == 3: o.append(f"s_add_u32 s36, s36, s28")
            o.append(f"s_add_u32 s38, s36, {q * 4096}")
            o.append(f"buffer_load_dwordx4 v[{y}:{y+3}], v104, s[{SO}:{SO+3}], s38 offen sc1" + opt.get("ylflag", ""))
        return o
    def yacc(k):
        o = []
        for q in range(4):
            for d in range(4):
                y = YB + (k * 4 + q) * 4 + d; a_ = AC + q * 8 + 2 * d
                if k == 0: o += [f"v_lshlrev_b32 v{a_}, 16, v{y}", f"v_and_b32 v{a_+1}, 0xffff0000, v{y}"]
                else: o += [f"v_dot2_f32_bf16 v{a_}, v{y}, s33, v{a_}", f"v_dot2_f32_bf16 v{a_+1}, v{y}, s34, v{a_+1}"]
        return o
    LAG = opt.get("ylag", 4)
    untag = lambda lst: [x.split(" @")[0] for x in lst]
    NX = 3
    H = ["s_mov_b32 s51, 0x5555", "s_lshr_b32 s37, s36, 1", "s_and_b32 s37, s37, s36", "s_and_b32 s37, s37, s51", "s_bcnt1_i32_b32 s38, s37",
         f"s_cmp_ge_u32 s38, {NX}", "s_cselect_b32 s40, 1, 0"]
    h = sched.finish(H, st, prev, rep); A.extend(sched.texts(h))
    A("s_cbranch_scc1 L_tfast" if opt.get("two", 1) else "s_mov_b32 s40, 0")
    stx = st.copy()
    X = sum((yissue(n, False) for n in range(NX)), []) + ["WAITVM @need=ys", "s_barrier", sig(0)] + T(1)
    xcode = sched.texts(sched.finish(X, stx, h, rep))
    L += w_dma(0) + ["WAITVM @need=ys", "s_barrier", sig(0)] + T(1)
    for n in range(NX): L += yissue(n)
    L += ["L_tjoin:"]
    for n in range(NX, 8):
        L += yissue(n)
        if n >= LAG - 1 and n < 7: L += yacc(n - LAG + 1)
    L += T(2)
    E(f"s_sub_u32 s27, s27, {WS_Y}")
    E("s_cmp_eq_u32 s40, 1\ns_cbranch_scc1 L_tfb0\nL_tfb0r:")
    rest = sum((yacc(k) for k in range(8 - LAG, 8)), [])
    L += mixv(rest, w_dma(1), 15)
    prev = None
    L += T(3)
    V = []; E = V.append
    R = 64; U = 112
    for q in range(4):
        for j in range(4): E(f"v_permlane32_swap_b32 v{AC+q*8+j}, v{AC+q*8+4+j}")
    for q in range(4):
        for j in range(2): E(f"v_pk_add_f32 v[{R+4*q+2*j}:{R+4*q+2*j+1}], v[{AC+q*8+2*j}:{AC+q*8+2*j+1}], v[{AC+q*8+4+2*j}:{AC+q*8+4+2*j+1}]")
    for d in range(8): E(f"v_cvt_pk_bf16_f32 v{32+d}, v{R+2*d}, v{R+2*d+1}")
    for d in range(8):
        E(f"v_lshlrev_b32 v{R+2*d}, 16, v{96+d}"); E(f"v_and_b32 v{R+2*d+1}, 0xffff0000, v{96+d}")
    for d in range(8):
        E(f"v_dot2_f32_bf16 v{R+2*d}, v{32+d}, s33, v{R+2*d}"); E(f"v_dot2_f32_bf16 v{R+2*d+1}, v{32+d}, s34, v{R+2*d+1}")
    def hreg(d): return 80 + 4 * (d >> 1) + 2 + (d & 1)
    def nreg(d): return 80 + 4 * (d >> 1) + (d & 1)
    for d in range(8): E(f"v_cvt_pk_bf16_f32 v{hreg(d)}, v{R+2*d}, v{R+2*d+1}")
    for d in range(8):
        E(f"v_lshlrev_b32 v{R+2*d}, 16, v{hreg(d)}"); E(f"v_and_b32 v{R+2*d+1}, 0xffff0000, v{hreg(d)}")
    def cross(x, off):
        E(f"v_add_f32_dpp v{x}, v{x}, v{x} row_ror:8 row_mask:0xf bank_mask:0xf")
        for sw in ("v_permlane16_swap_b32", "v_permlane32_swap_b32"):
            E(f"v_mov_b32 v12, v{x}"); E(f"{sw} v{x}, v12"); E(f"v_add_f32 v{x}, v{x}, v12")
        E(f"ds_write_b32 v108, v{x} offset:{off}")
        E("s_waitcnt lgkmcnt(0)"); E("s_barrier")
        E(f"ds_read_b128 v[12:15], v107 offset:{off}")
        E("v_pk_add_f32 v[12:13], v[12:13], v[14:15]")
        E(f"v_add_f32 v{x}, v12, v13")
    E(f"v_pk_add_f32 v[32:33], v[{R}:{R+1}], v[{R+2}:{R+3}]")
    for d in range(2, 8): E(f"v_pk_add_f32 v[32:33], v[32:33], v[{R+2*d}:{R+2*d+1}]")
    E("v_add_f32 v32, v32, v33")
    cross(32, 0)
    E(f"v_mul_f32 v32, {hex(f2u(-1.0/448))}, v32"); E("v_mov_b32 v33, v32")
    E("v_mul_f32 v34, s29, v32"); E("v_mov_b32 v35, v34")
    for d in range(8):
        m_ = 32 if d < 6 else 34
        E(f"v_pk_add_f32 v[{R+2*d}:{R+2*d+1}], v[{R+2*d}:{R+2*d+1}], v[{m_}:{m_+1}]")
    E(f"v_pk_mul_f32 v[36:37], v[{R}:{R+1}], v[{R}:{R+1}]")
    for d in range(1, 8): E(f"v_pk_fma_f32 v[36:37], v[{R+2*d}:{R+2*d+1}], v[{R+2*d}:{R+2*d+1}], v[36:37]")
    E("v_add_f32 v36, v36, v37")
    cross(36, 256)
    E(f"v_mov_b32 v37, {hex(f2u(1e-5))}"); E(f"v_fmac_f32 v37, {hex(f2u(1.0/448))}, v36"); E("v_rsq_f32 v36, v37"); E("v_mov_b32 v37, v36")
    for d in range(8): E(f"v_pk_mul_f32 v[{R+2*d}:{R+2*d+1}], v[{R+2*d}:{R+2*d+1}], v[36:37]")
    for d in range(8): E(f"v_cvt_pk_bf16_f32 v{nreg(d)}, v{R+2*d}, v{R+2*d+1}")
    E(f"s_add_u32 s36, s27, {WS_H}")
    for q in range(4):
        for j in range(2): E(f"v_permlane32_swap_b32 v{80+4*q+j}, v{80+4*q+2+j}")
    L += mixv(V, w2_dma(0) + w2_dma(1)[:6], 15)
    E = L.append
    for q in range(4):
        if q == 3: E("s_add_u32 s36, s36, s28")
        E(f"s_add_u32 s38, s36, {q * 4096}")
        E(f"buffer_store_dwordx4 v[{80+4*q}:{83+4*q}], v105, s[{SO}:{SO+3}], s38 offen sc1 @tag=hs")
    L += w2_dma(1)[6:] + w2_dma(2)
    L += ["s_lshl_b32 s25, s50, 3", "s_lshl_b32 s38, s3, 1", "s_add_u32 s25, s25, s38",
          "s_mul_i32 s36, s25, 14336", f"s_add_u32 s36, s36, {WS_HN}",
          "s_lshr_b32 s37, s25, 1", f"s_mul_i32 s37, s37, {8 * 14336}", "s_lshr_b32 s38, s24, 1", "s_mul_i32 s38, s38, 14336", "s_add_u32 s37, s37, s38",
          f"s_add_u32 s37, s37, {WS_H1}", "s_and_b32 s38, s24, 1", "s_lshl_b32 s39, s38, 13", "s_add_u32 s26, s37, s39",
          "s_lshl_b32 s38, s38, 10", "s_add_u32 s27, s37, s38", "s_add_u32 s27, s27, 6144",
          "s_and_b32 s28, s24, 3", "s_lshr_b32 s29, s24, 2", "s_lshl_b32 s38, s50, 2", "s_add_u32 s29, s29, s38",
          f"s_mul_i32 s34, s29, {8 * 14336}", f"s_mul_i32 s38, s3, {2 * 14336}", "s_add_u32 s34, s34, s38", f"s_add_u32 s34, s34, {WS_H1}"]
    L += ["WAITVM @need=hs", "s_barrier", sig(1)]
    L += T(4)
    L += rd_only(0) + rd_only(1) + ["s_waitcnt lgkmcnt(0)"] + w2_dma(3) + w2_dma(4) + rd_only(2)
    XH = 256 + 64
    def xh(tt, ks): return XH + (tt * 14 + ks) * 4
    def xload(ks): return [f"s_add_u32 s38, s36, {tt * 14336 + ks * 1024}\nbuffer_load_dwordx4 {r(xh(tt, ks), 4)}, v1, s[{SO}:{SO+3}], s38 offen sc1" for tt in range(2)]
    def ac(mat, ft, tt): return 32 + ((mat * 7 + ft) * 2 + tt) * 4
    def wf(n, u): return 256 + (n & 3) * 16 + u * 4
    groups = [(sb, ft) for sb in range(7) for ft in range(7)]
    def w_pre(n):
        sb, ft = groups[n]
        if ft or sb == 0: return []
        pre = [f"WAITVM @need=fb{sb}\ns_barrier"] if sb >= 2 else []
        return pre + [f"v_add_u32 v{WD}, {hex((region(sb) - region(sb - 1)) & 0xffffffff)}, v{WD}"]
    def w_reads(n):
        sb, ft = groups[n]
        return [f"ds_read_b64_tr_b16 {r(wf(n, u) + 2 * h2, 2)}, v{WD} offset:{u * 7168 + h2 * 16 * 224 + ft * 32}" for u in range(4) for h2 in range(2)]
    L += w_reads(0) + w_reads(1)
    L += poll(1, 1)
    L += T(5)
    for ks in range(4): L += xload(ks)
    L += w_dma(2) + rd_only(3) + rd_only(4) + ["s_waitcnt lgkmcnt(0)"]
    NL2E = hex(f2u(-math.log2(math.e)))
    def epi(ft, pk):
        out = []
        for tt in range(2):
            g = ac(0, ft, tt); u = ac(1, ft, tt); t = 144 + tt * 4
            d = ac(0, ft & ~1, tt) + 2 * (ft & 1) if ft < 6 else 28 + 2 * tt
            if pk: out += [f"v_pk_mul_f32 v[{t+2*i}:{t+2*i+1}], v[{g+2*i}:{g+2*i+1}], s[30:31]" for i in range(2)]
            else: out += [f"v_mul_f32 v{t+i}, s30, v{g+i}" for i in range(4)]
            out += [f"v_exp_f32 v{t+i}, v{t+i}" for i in range(4)]
            if pk:
                out += [f"v_pk_mul_f32 v[{u+2*i}:{u+2*i+1}], v[{g+2*i}:{g+2*i+1}], v[{u+2*i}:{u+2*i+1}]" for i in range(2)]
                out += [f"v_pk_add_f32 v[{t+2*i}:{t+2*i+1}], v[{t+2*i}:{t+2*i+1}], 1.0 op_sel_hi:[1,0]" for i in range(2)]
            else:
                out += [f"v_mul_f32 v{u+i}, v{g+i}, v{u+i}" for i in range(4)]
                out += [f"v_add_f32 v{t+i}, 1.0, v{t+i}" for i in range(4)]
            out += [f"v_rcp_f32 v{t+i}, v{t+i}" for i in range(4)]
            if pk: out += [f"v_pk_mul_f32 v[{u+2*i}:{u+2*i+1}], v[{u+2*i}:{u+2*i+1}], v[{t+2*i}:{t+2*i+1}]" for i in range(2)]
            else: out += [f"v_mul_f32 v{u+i}, v{u+i}, v{t+i}" for i in range(4)]
            out += [f"v_cvt_pk_bf16_f32 v{d}, v{u}, v{u+1}", f"v_cvt_pk_bf16_f32 v{d+1}, v{u+2}, v{u+3}"]
            if ft < 6 and ft & 1:
                j = (ft >> 1) * 2 + tt; d0 = ac(0, ft - 1, tt)
                out.append(f"s_add_u32 s38, s26, {j * 1024}\nbuffer_store_dwordx4 v[{d0}:{d0+3}], v1, s[{SO}:{SO+3}], s38 offen sc1 @tag=h1s")
        if ft == 6: out.append(f"buffer_store_dwordx4 v[28:31], v1, s[{SO}:{SO+3}], s27 offen sc1 @tag=h1s")
        return out
    m = []; fixed = []; rs_ = []
    for n, (sb, ft) in enumerate(groups):
        for mat in range(2):
            for tt in range(2):
                for k in range(2):
                    m.append(mfma16(ac(mat, ft, tt), wf(n, mat * 2 + k), xh(tt, 2 * sb + k), "0" if (sb == 0 and k == 0) else None))
        if n + 2 < len(groups):
            fixed += [(8 * n - 1, x) for x in w_pre(n + 2)]
            rs_.append((w_reads(n + 2), 8 * n, 8 * n + 7))
    fixed += [(2, f"s_mov_b32 s30, {NL2E}"), (3, f"s_mov_b32 s31, {NL2E}")]
    xs = lambda a_, b_: sum((xload(ks) for ks in range(a_, b_)), [])
    vm = [(xs(4, 6) + w_dma(3) + xs(6, 8) + w_dma(4) + xs(8, 10), 0, 110), (w_dma(5) + xs(10, 12), 112, 160), (w_dma(6) + xs(12, 14), 168, 216),
          (w2_dma(5), 224, 262), (w2_dma(6), 280, 318), (w2_dma(7), 336, 374)]
    L += sched.pack(m, vm + rs_ + [(epi(0, False)[:34], 336 + 11, 392)], fixed, VB)
    L += T(6)
    e = epi(0, False)[34:]
    for ft in range(1, 7): e += epi(ft, True)
    L += ["s_barrier"]
    L += mixv(e, w2_dma(8) + w2_dma(9), 16)
    L += T(7)
    L += rd_only(5) + rd_only(6) + rd_only(7)
    L += ["s_and_b32 s25, s3, 1", "s_lshr_b32 s26, s3, 1", "s_mul_i32 s38, s28, 7", "s_add_u32 s26, s26, s38",
          "s_lshl_b32 s27, s29, 1", "s_add_u32 s27, s27, s25",
          "s_mul_i32 s36, s27, 14336", f"s_add_u32 s36, s36, {WS_H}", "s_lshr_b32 s38, s26, 1", "s_lshl_b32 s38, s38, 10", "s_add_u32 s36, s36, s38",
          "s_and_b32 s38, s26, 1", "s_lshl_b32 s38, s38, 3", "s_add_u32 s36, s36, s38",
          "s_lshl_b32 s27, s27, 4", "v_and_b32 v12, 15, v0", "v_add_u32 v12, s27, v12", "v_mul_u32_u24 v12, 896, v12",
          "v_lshrrev_b32 v13, 4, v0", "v_lshl_add_u32 v12, v13, 3, v12", "s_lshl_b32 s38, s26, 5", "v_add_u32 v12, s38, v12"]
    L += ["s_waitcnt lgkmcnt(0)"] + w2_dma(10)
    L += ["WAITVM @need=h1s", "s_barrier", sig(2)]
    L += T(8)
    L += rd_only(8) + w2_dma(11) + w2_dma(12) + ["s_waitcnt lgkmcnt(0)"] + w2_dma(13)
    L += [f"buffer_load_dwordx2 v[{2+2*k}:{3+2*k}], v1, s[{SO}:{SO+3}], s36 offen offset:{k*1024} sc1" for k in range(4)]
    L += poll(2, 2)
    L += T(9)
    hq = {}
    av = [256 + 84 + 4 * i for i in range(23)] + [104]
    vv = [88, 92, 96, 100]
    for u in range(14):
        for tt in range(2): hq[u, tt] = vv.pop(0) if u in (3, 10) else av.pop(0)
    def hload(u):
        return [f"s_add_u32 s38, s34, {(u * 2 + tt) * 1024}\nbuffer_load_dwordx4 {r(hq[u, tt], 4)}, v1, s[{SO}:{SO+3}], s38 offen sc1" for tt in range(2)]
    NH = opt.get("t3h", 6)
    for u in range(NH): L += hload(u)
    def a3(mt, tt): return 32 + (mt * 2 + tt) * 4
    m = []; fixed = []; rs_ = []
    for u in range(11):
        if u in (3, 10):
            fixed += [(14 * u - 3, f"v_swap_b32 v{hq[u, 0]+2}, v{hq[u, 1]}"), (14 * u - 3, f"v_swap_b32 v{hq[u, 0]+3}, v{hq[u, 1]+1}")]
        m += [mfma16(a3(mt, tt), w2f(u, mt), hq[u, tt], "0" if u == 0 else None) for mt in range(7) for tt in range(2)]
    for mt in range(7):
        for tt in range(2):
            m += [mfma16(a3(mt, tt), w2f(u, mt), hq[u, tt]) for u in (11, 12, 13)]
    for u in range(9, 14):
        g = 14 * (u - 4)
        fixed += [(g - 1, f"WAITVM @need=wu{u}")]
        rs_.append((w2_reads(u), g, g + 13))
    fixed += [(150, "v_add_u32 v13, s43, v1"), (153, "s_waitcnt lgkmcnt(0)")]
    wr = [f"ds_write_b128 v13, v[{32+4*t_}:{35+4*t_}] offset:{(t_ // 7) * 32768 + (t_ % 7) * 1024}" for t_ in range(14)]
    nin = 11
    fixed += [(154 + 3 * t_ + 2 + 8, wr[t_]) for t_ in range(nin)]
    L += sched.pack(m, [(sum((hload(u) for u in range(NH, 14)), []), 0, opt.get("t3e", 66))] + rs_, fixed, VB)
    L += T(10)
    L += wr[nin:]
    D7 = 32768 - 7168
    L += ["s_lshl_b32 s38, s3, 10", "v_add_u32 v15, s38, v1", f"s_cmp_eq_u32 s3, 3\ns_cselect_b32 s38, {D7}, 0", "v_add_u32 v14, s38, v15"]
    L += ["s_waitcnt lgkmcnt(0)", "s_barrier"]
    for k in range(4):
        for w in range(4):
            if k == 1: reg, off = 14, 4096
            else: reg, off = 15, k * 4096 + (D7 if k >= 2 else 0)
            L.append(f"ds_read_b128 v[{128+(k*4+w)*4}:{131+(k*4+w)*4}], v{reg} offset:{off + w * 7168}")
    L += ["s_mov_b32 s33, 0x00003f80", "s_mov_b32 s34, 0x3f800000"]
    for k in range(4):
        b = 128 + k * 16
        for i in range(2):
            L += [f"v_lshlrev_b32 v{32+4*k+2*i}, 16, v{2+2*k+i}", f"v_and_b32 v{33+4*k+2*i}, 0xffff0000, v{2+2*k+i}"]
        for w in range(1, 4):
            for i in range(2): L.append(f"v_pk_add_f32 v[{b+2*i}:{b+2*i+1}], v[{b+2*i}:{b+2*i+1}], v[{b+4*w+2*i}:{b+4*w+2*i+1}]")
        L += [f"v_cvt_pk_bf16_f32 v{b+4}, v{b}, v{b+1}", f"v_cvt_pk_bf16_f32 v{b+5}, v{b+2}, v{b+3}"]
        for i in range(2):
            L += [f"v_dot2_f32_bf16 v{32+4*k+2*i}, v{b+4+i}, s33, v{32+4*k+2*i}", f"v_dot2_f32_bf16 v{33+4*k+2*i}, v{b+4+i}, s34, v{33+4*k+2*i}"]
    for k in range(4):
        b = 128 + k * 16
        L += [f"v_cvt_pk_bf16_f32 v{b+4}, v{32+4*k}, v{33+4*k}", f"v_cvt_pk_bf16_f32 v{b+5}, v{34+4*k}, v{35+4*k}"]
        if k == 3: L += [f"s_cmp_lt_u32 s3, 2\ns_cselect_b32 s38, 0, {OOB}"]
        L.append(f"buffer_store_dwordx2 v[{b+4}:{b+5}], v12, s[{SOUT}:{SOUT+3}], {'s38' if k == 3 else '0'} offen offset:{k*64}")
    A.extend(sched.texts(sched.finish(L, st, prev, rep)))
    def cold(A):
        A.label("L_tfast")
        A.extend(xcode)
        A("s_branch L_tjoin")
        A.label("L_tfb0")
        A.extend(sched.texts(sched.finish(untag(w_dma(0)))))
        A("s_branch L_tfb0r")
        for n in range(8):
            A.label(f"L_ypoll{n}")
            A("s_mov_b32 s39, 0")
            A.label(f"L_ypoll{n}_l")
            A(f"s_load_dword s38, s[20:21], 16 glc")
            A("s_add_u32 s39, s39, 1")
            A("s_waitcnt lgkmcnt(0)")
            A("s_lshr_b32 s37, s38, 1")
            A("s_and_b32 s37, s37, s38")
            A(f"s_cmp_gt_u32 s39, {SPINMAX}")
            A("s_cselect_b32 s37, -1, s37")
            A("s_and_b32 s37, s37, s51")
            A(f"s_cbranch_scc1 L_ygot{n}")
            A(f"s_sleep {opt.get('sleep', 2)}")
            A(f"s_branch L_ypoll{n}_l")
        for dw, n in spins:
            A.label(f"L_tspin{n}")
            A("s_mov_b32 s39, 0")
            A.label(f"L_tspin{n}_l")
            A("s_add_u32 s39, s39, 1")
            A(f"s_cmp_gt_u32 s39, {SPINMAX}")
            A(f"s_cbranch_scc1 L_tspun{n}")
            A(f"s_load_dword s38, s[20:21], {16+4*dw} glc")
            A("s_waitcnt lgkmcnt(0)")
            A("s_andn2_b32 s38, s32, s38")
            A(f"s_cbranch_scc0 L_tspun{n}")
            A(f"s_sleep {opt.get('sleep', 2)}")
            A(f"s_branch L_tspin{n}_l")
    return cold
```

```python
from common import *
import sched, tail as tailmod
import math, struct

QSCALE = math.log2(math.e) / 16.0
B0 = 6.0
OOB = 0x70000000
SPINMAX = 100000
def f2u(x): return struct.unpack("<I", struct.pack("<f", x))[0]

def gen_k12(name, opt):
    A = Asm()
    ST0 = Stamps2(opt.get("stamps", 0))
    class STX:
        en = ST0.en
        def t(self, i): return [] if (opt.get("tst") and 1 <= i <= 10) else ST0.t(i)
        def c(self, i): return ST0.c(i)
        def write(self, *a): return ST0.write(*a)
    ST = STX()
    rep = []
    NA = opt.get("NA", 19)
    CST = opt.get("cst", ["start", "att", "last", "end"])
    def cs(nm): return ST.c(CST.index(nm)) if nm in CST else []
    VB = opt.get("verbose")
    fin = lambda L, st=None, prev=None: sched.finish(L, st, prev, rep)
    emit = lambda L, st=None, prev=None: A.extend(sched.texts(fin(L, st, prev)))
    def codepf(lab, vt, dst, n):
        if not opt.get("jit", 1): return []
        return [f"s_getpc_b64 s[20:21]\nL_pcx{n}:\ns_add_u32 s20, s20, {lab}-L_pcx{n}\ns_addc_u32 s21, s21, 0",
                f"s_lshl_b32 s38, s3, 13\nv_lshl_add_u32 v{vt}, v0, 7, s38",
                f"v_min_u32 v{vt}, L_textend-{lab}-4, v{vt}",
                f"global_load_dword {dst}, v{vt}, s[20:21]"]
    VX, VW, DX, DW = 2, 6, 10, 12
    def acc(which, hx, ti, hw, tj):
        i = (hx * 2 + hw) * 16 + (ti * 4 + tj if which == 0 else tj * 4 + ti)
        return 16 + 4 * i if i < 60 else 256 + 64 + 4 * (i - 60)
    FX = [256 + 80, 256 + 0]; FW = [256 + 112, 256 + 32]
    XH = 400
    def fx(hx, ti, s_): return FX[hx] + (ti * 2 + s_) * 4
    def fw(bank, tj, s_): return FW[bank] + (tj * 2 + s_) * 4
    SX, SW, SO, SQ, SXI = 8, 12, 16, 40, 44
    SWO = 44
    P = []
    E = P.append
    A("s_cmp_ge_u32 s2, 256")
    A("s_cbranch_scc1 L_end")
    A.extend(ST.t(0) + cs('start'))
    E("s_load_dwordx4 s[52:55], s[0:1], 0")
    E("s_load_dwordx2 s[56:57], s[0:1], 16")
    E("s_load_dwordx4 s[20:23], s[0:1], 24")
    E("s_load_dwordx2 s[100:101], s[0:1], 40")
    E("s_load_dwordx4 s[4:7], s[0:1], 88")
    E("s_getpc_b64 s[30:31]")
    E("L_pc0:")
    E("v_lshrrev_b32 v1, 6, v0")
    E("s_lshr_b32 s25, s2, 3")
    E("s_and_b32 s38, s25, 3")
    E("s_lshl_b32 s38, s38, 15")
    E("v_lshlrev_b32 v16, 7, v0")
    E("v_add_u32 v16, s38, v16")
    E("v_min_u32 v16, L_textend-L_pc0-4, v16")
    if opt.get("codepf", 1): E("global_load_dword a255, v16, s[30:31]")
    E("v_and_b32 v0, 63, v0")
    E("v_readfirstlane_b32 s3, v1")
    if opt.get("map", 0) == 0:
        E("s_and_b32 s24, s2, 7")
        E("s_and_b32 s26, s25, 1")
        E("s_lshl_b32 s24, s24, 1")
        E("s_add_u32 s24, s24, s26")
        E("s_bfe_u32 s26, s25, 0x10001")
    else:
        E("s_and_b32 s24, s2, 6")
        E("s_and_b32 s26, s25, 3")
        E("s_lshl_b32 s24, s24, 1")
        E("s_add_u32 s24, s24, s26")
        E("s_and_b32 s26, s2, 1")
        if opt.get("map", 0) == 2: E("s_xor_b32 s26, s26, 1")
    E("s_lshr_b32 s27, s25, 2")
    E("s_sub_u32 s50, 15, s27")
    E("s_cmp_eq_u32 s26, 0")
    E("s_cselect_b32 s50, s50, s27")
    E("s_lshl_b32 s28, s2, 3")
    E("s_lshl_b32 s29, s3, 1")
    E("s_add_u32 s28, s28, s29")
    E("v_and_b32 v20, 1, v0")
    E("v_add_u32 v20, s28, v20")
    E("v_mul_u32_u24 v21, 896, v20")
    E("v_lshrrev_b32 v22, 1, v0")
    E("v_lshl_add_u32 v21, v22, 4, v21")
    E("s_lshl_b32 s28, s27, 7")
    E("s_lshl_b32 s29, s3, 5")
    E("s_add_u32 s28, s28, s29")
    E("v_lshrrev_b32 v1, 3, v0")
    E("v_add_u32 v1, s28, v1")
    E("v_lshlrev_b32 v1, 11, v1")
    E("v_lshrrev_b32 v16, 4, v0")
    E("v_and_b32 v17, 7, v0")
    E("v_xor_b32 v17, v17, v16")
    E("v_lshlrev_b32 v17, 4, v17")
    for i in range(4):
        E(f"v_xor_b32 v18, {64 if i & 1 else 0}, v17")
        E(f"v_add_u32 v18, v18, v1")
        E(f"v_add_u32 v{VX+i}, {i * (8 * 2048 - 1024)}, v18")
    E("s_lshl_b32 s28, s3, 4")
    E("v_add_u32 v1, s28, v16")
    E("v_lshlrev_b32 v1, 13, v1")
    E("s_lshl_b32 s28, s24, 9")
    E("v_add_u32 v1, s28, v1")
    E("v_and_b32 v17, 15, v0")
    E("v_lshlrev_b32 v18, 1, v16")
    E("v_xor_b32 v17, v17, v18")
    E("v_lshlrev_b32 v17, 4, v17")
    for i in range(4):
        E(f"v_xor_b32 v18, {128 if i & 2 else 0}, v17")
        E(f"v_add_u32 v18, v18, v1")
        E(f"v_add_u32 v{VW+i}, {i * (4 * 8192 - 1024)}, v18")
    E("s_lshl_b32 s32, s3, 12")
    E("s_mov_b32 s33, 0")
    E("s_mov_b32 s34, 0")
    for i in range(28, 32): E(f"v_mov_b32 v{i}, 0")
    E("s_waitcnt lgkmcnt(0)")
    srd(E, SX, 54, 2048 * 1024 * 2)
    E("s_cmp_eq_u32 s26, 0")
    E("s_cselect_b32 s20, s20, s22")
    E("s_cselect_b32 s21, s21, s23")
    srd(E, SW, 20, 1024 * 4096 * 2)
    def dma_setup(n):
        j = (n >> 2) & 1; t = n & 3
        if t in (0, 3):
            hx = 0 if t == 0 else 1
            slot = (2 * j + hx) * 16384
            setup = [f"s_add_u32 m0, s32, {slot}", f"s_add_u32 s35, s33, {j * 128 + hx * 1024 * 2048}"]
            d = [f"buffer_load_dwordx4 v{VX+i}, s[{SX}:{SX+3}], s35 offen offset:{i*1024}{opt.get('xflag', '')} lds @tag=ht{n}" for i in range(4)]
        else:
            hw = t - 1
            slot = 65536 + (2 * j + hw) * 16384
            setup = [f"s_add_u32 m0, s32, {slot}", f"s_add_u32 s35, s34, {j * 64 * 8192 + hw * 256}"]
            d = [f"buffer_load_dwordx4 v{VW+i}, s[{SW}:{SW+3}], s35 offen offset:{i*1024}{opt.get('wflag', ' nt')} lds @tag=ht{n}" for i in range(4)]
        return setup, d
    def reads(n):
        j = (n >> 2) & 1; t = n & 3
        out = []
        if t in (0, 3):
            hx = 0 if t == 0 else 1
            slot = (2 * j + hx) * 16384
            for ti in range(4):
                for s_ in range(2):
                    out.append(f"ds_read_b128 {r(fx(hx, ti, s_), 4)}, v{DX+s_} offset:{slot + ti * 2048}")
        else:
            hw = t - 1
            bank = hw ^ j
            slot = (2 * j + hw) * 16384
            for tj in range(4):
                for s_ in range(2):
                    for h2 in range(2):
                        out.append(f"ds_read_b64_tr_b16 {r(fw(bank, tj, s_) + 2 * h2, 2)}, v{DW+tj} offset:{slot + s_ * 8192 + h2 * 1024}")
        return out
    def dma_block(n):
        su, d = dma_setup(n)
        return su + d
    srd(E, SXI, 52, 2048 * 448 * 2)
    E(f"buffer_load_dwordx4 v[24:27], v21, s[{SXI}:{SXI+3}], 0 offen")
    E("s_mov_b32 exec_hi, 0xffff")
    E(f"buffer_load_dwordx4 v[28:31], v21, s[{SXI}:{SXI+3}], 0 offen offset:512")
    E("s_mov_b32 exec_hi, -1")
    for n in range(2): P.extend(dma_block(n))
    srd(E, SO, 6, 160 << 20)
    srd(E, SQ, 56, 448 * 4096 * 2)
    srd(E, SWO, 100, 4096 * 448 * 2)
    E("s_lshl_b32 s38, s50, 2"); E("s_add_u32 s38, s38, s3")
    E("s_mul_i32 s30, s38, 57344"); E("s_lshl_b32 s31, s24, 9"); E("s_add_u32 s30, s30, s31")
    E("s_add_u32 s56, s56, s30"); E("s_addc_u32 s57, s57, 0")
    E("s_mul_i32 s30, s24, 229376"); E("s_lshl_b32 s31, s38, 7"); E("s_add_u32 s30, s30, s31")
    E("s_add_u32 s100, s100, s30"); E("s_addc_u32 s101, s101, 0")
    E("v_and_b32 v62, 3, v0")
    E("v_lshlrev_b32 v60, 7, v62")
    E("v_add_co_u32 v60, vcc, s56, v60"); E("v_mov_b32 v61, s57"); E("v_addc_co_u32 v61, vcc, 0, v61, vcc")
    E("v_mul_u32_u24 v62, 57344, v62")
    E("v_add_co_u32 v62, vcc, s100, v62"); E("v_mov_b32 v63, s101"); E("v_addc_co_u32 v63, vcc, 0, v63, vcc")
    E("s_mov_b64 s[30:31], 0xf0")
    E("v_cndmask_b32 v60, v60, v62, s[30:31]"); E("v_cndmask_b32 v61, v61, v63, s[30:31]")
    E("s_load_dwordx4 s[52:55], s[0:1], 56")
    E("s_load_dwordx2 s[56:57], s[0:1], 72")
    W = []
    F_ = W.append
    F_("v_lshrrev_b32 v23, 1, v20")
    F_("v_mul_u32_u24 v23, 1792, v23")
    F_("v_lshl_add_u32 v23, v0, 4, v23")
    F_("s_lshr_b32 s28, s3, 1")
    F_("s_and_b32 s29, s3, 1")
    F_("s_lshl_b32 s30, s28, 13")
    F_("v_and_b32 v1, 15, v0")
    F_("v_lshlrev_b32 v1, 7, v1")
    F_("v_add_u32 v1, s30, v1")
    F_("v_bfe_u32 v18, v0, 1, 3")
    F_("v_xor_b32 v17, v16, v18")
    F_("v_lshlrev_b32 v17, 4, v17")
    F_(f"v_add_u32 v{DX}, v17, v1")
    F_(f"v_xor_b32 v{DX+1}, 64, v{DX}")
    F_("v_lshlrev_b32 v1, 3, v16")
    F_("v_bfe_u32 v17, v0, 2, 2")
    F_("v_add_u32 v1, v1, v17")
    F_("v_lshlrev_b32 v1, 8, v1")
    F_("v_bfe_u32 v18, v0, 4, 1")
    F_("v_lshlrev_b32 v18, 2, v18")
    F_("v_or_b32 v17, v17, v18")
    F_("v_lshlrev_b32 v17, 1, v17")
    F_("v_bfe_u32 v19, v0, 1, 1")
    F_("s_lshl_b32 s30, s29, 3")
    F_("v_add_u32 v19, s30, v19")
    F_("v_xor_b32 v19, v19, v17")
    F_("v_lshlrev_b32 v19, 4, v19")
    F_("v_and_b32 v18, 1, v0")
    F_("v_lshlrev_b32 v18, 3, v18")
    F_("v_add3_u32 v1, v1, v18, v19")
    F_(f"v_add_u32 v{DW}, 0x10000, v1")
    for tj in range(1, 4): F_(f"v_xor_b32 v{DW+tj}, {tj << 5}, v{DW}")
    F_("v_lshlrev_b32 v1, 4, v0")
    F_("s_lshl_b32 s58, s24, 20\ns_lshl_b32 s38, s27, 16\ns_add_u32 s58, s58, s38\ns_lshl_b32 s38, s28, 15\ns_add_u32 s58, s58, s38")
    F_("s_add_u32 s38, s26, 11\ns_lshl_b32 s38, s29, s38\ns_add_u32 s58, s58, s38\ns_lshl_b32 s38, s26, 24\ns_add_u32 s58, s58, s38")
    F_(f"s_cmp_eq_u32 s26, 0\ns_mov_b32 s59, 16384\ns_mov_b32 s51, {(1024 - 16384) & 0xffffffff}\ns_mov_b32 s39, 8192\n"
       f"s_cselect_b32 s59, 1024, s59\ns_cselect_b32 s51, {8192 - 1024}, s51\ns_cselect_b32 s39, 4096, s39")
    F_(f"s_lshl_b32 s49, s24, 3\ns_add_u32 s49, s49, s27\ns_lshl_b32 s49, s49, 16\ns_lshl_b32 s38, s3, 14\ns_add_u32 s49, s49, s38\ns_add_u32 s49, s49, {WS_Q}")
    F_(f"s_lshl_b32 s48, s50, 3\ns_lshl_b32 s38, s3, 1\ns_add_u32 s48, s48, s38\ns_mul_i32 s48, s48, 14336\ns_add_u32 s48, s48, {WS_XN}")
    F_(f"s_lshl_b32 s22, s24, 4\ns_add_u32 s22, s22, s50\ns_lshl_b32 s22, s22, 8\ns_add_u32 s22, s22, {WS_FLAG}")
    W += [f"v_mov_b32 v{i}, 0" for i in range(64, 68)]
    F_("s_lshl_b32 s38, s2, 2\ns_add_u32 s38, s38, s3\ns_mul_i32 s38, s38, 6\ns_sub_u32 s38, s38, 8")
    F_("v_add_u32 v56, s38, v0")
    F_("v_min_u32 v56, 5375, v56")
    F_("v_lshrrev_b32 v57, 6, v56")
    F_("v_and_b32 v56, 63, v56")
    F_("v_lshlrev_b32 v56, 7, v56")
    F_("s_waitcnt lgkmcnt(0)")
    F_("v_mov_b32 v58, s52\nv_mov_b32 v59, s53\nv_mov_b32 v62, s54\nv_mov_b32 v63, s55")
    F_("v_cmp_le_u32 vcc, 28, v57\nv_subrev_u32 v54, 28, v57\ns_nop 0\nv_cndmask_b32 v58, v58, v62, vcc\nv_cndmask_b32 v59, v59, v63, vcc\nv_cndmask_b32 v57, v57, v54, vcc")
    F_("v_mov_b32 v62, s56\nv_mov_b32 v63, s57")
    F_("v_cmp_le_u32 vcc, 28, v57\nv_subrev_u32 v54, 28, v57\ns_nop 0\nv_cndmask_b32 v58, v58, v62, vcc\nv_cndmask_b32 v59, v59, v63, vcc\nv_cndmask_b32 v57, v57, v54, vcc")
    F_("v_mul_u32_u24 v57, 57344, v57")
    F_("v_add_u32 v56, v56, v57")
    F_("v_add_co_u32 v58, vcc, v58, v56\ns_nop 1\nv_addc_co_u32 v59, vcc, 0, v59, vcc")
    F_("s_mov_b64 s[30:31], 0x3f00\nv_cndmask_b32 v60, v60, v58, s[30:31]\nv_cndmask_b32 v61, v61, v59, s[30:31]")
    if opt.get("xpf", 0):
        F_(f"s_and_b32 s38, s24, 1\ns_lshl_b32 s38, s38, 12\ns_add_u32 s38, s38, s48\ns_sub_u32 s38, s38, {2 * 8192 + 4096}\ns_add_u32 s30, s6, s38\ns_addc_u32 s31, s7, 0")
        F_("v_lshlrev_b32 v56, 7, v0")
        F_("v_mov_b32 v59, s31\nv_add_co_u32 v58, vcc, s30, v56\ns_nop 1\nv_addc_co_u32 v59, vcc, 0, v59, vcc")
        F_("s_mov_b32 s30, 0\ns_mov_b32 s31, -1\nv_cndmask_b32 v60, v60, v58, s[30:31]\nv_cndmask_b32 v61, v61, v59, s[30:31]")
    F_("s_mov_b32 s52, 8192\ns_mov_b32 s53, 0")
    rest = []
    for n in range(2, 4):
        su, d = dma_setup(n)
        rest += ["\n".join(su + [d[0]])] + d[1:]
    k = 0
    for i, z in enumerate(W):
        E(z)
        if i % 6 == 3 and k < len(rest):
            E(rest[k]); k += 1
    while k < len(rest): E(rest[k]); k += 1
    P += ST.t(1)
    for i in range(8):
        E(f"v_lshlrev_b32 v{32+2*i}, 16, v{24+i}")
        E(f"v_and_b32 v{33+2*i}, 0xffff0000, v{24+i}")
    def reduce32(x, t):
        for rr in (2, 4, 8):
            E(f"v_add_f32_dpp v{x}, v{x}, v{x} row_ror:{rr} row_mask:0xf bank_mask:0xf")
        for sw in ("v_permlane16_swap_b32", "v_permlane32_swap_b32"):
            E(f"v_mov_b32 v{t}, v{x}"); E(f"{sw} v{x}, v{t}"); E(f"v_add_f32 v{x}, v{x}, v{t}")
    E("v_pk_add_f32 v[48:49], v[32:33], v[34:35]")
    for i in range(2, 8): E(f"v_pk_add_f32 v[48:49], v[48:49], v[{32+2*i}:{33+2*i}]")
    E("v_add_f32 v48, v48, v49")
    reduce32(48, 50)
    E(f"v_mul_f32 v48, {hex(f2u(-1.0/448))}, v48")
    E("v_mov_b32 v49, v48")
    for i in range(4): E(f"v_pk_add_f32 v[{32+2*i}:{33+2*i}], v[{32+2*i}:{33+2*i}], v[48:49]")
    E("s_mov_b32 exec_hi, 0xffff")
    for i in range(4, 8): E(f"v_pk_add_f32 v[{32+2*i}:{33+2*i}], v[{32+2*i}:{33+2*i}], v[48:49]")
    E("s_mov_b32 exec_hi, -1")
    E("v_pk_mul_f32 v[50:51], v[32:33], v[32:33]")
    for i in range(1, 8): E(f"v_pk_fma_f32 v[50:51], v[{32+2*i}:{33+2*i}], v[{32+2*i}:{33+2*i}], v[50:51]")
    E("v_add_f32 v50, v50, v51")
    reduce32(50, 52)
    E(f"v_mov_b32 v51, {hex(f2u(1e-5))}")
    E(f"v_fmac_f32 v51, {hex(f2u(1.0/448))}, v50")
    E("v_rsq_f32 v50, v51")
    E(f"v_mul_f32 v50, {hex(f2u(QSCALE))}, v50")
    E("v_mov_b32 v51, v50")
    for i in range(8): E(f"v_pk_mul_f32 v[{32+2*i}:{33+2*i}], v[{32+2*i}:{33+2*i}], v[50:51]")
    for i in range(8): E(f"v_cvt_pk_bf16_f32 v{24+i}, v{32+2*i}, v{33+2*i}")
    E("WAITVM @need=ht0,ht1")
    E("s_barrier")
    P.extend(reads(0)); P.extend(reads(1))
    E(f"s_mov_b32 s38, {WS_XN}")
    E(f"buffer_store_dwordx4 v[24:27], v23, s[{SO}:{SO+3}], s38 offen sc1")
    E(f"s_mov_b32 s38, {WS_XN + 1024}")
    E("s_mov_b32 exec_hi, 0xffff")
    E(f"buffer_store_dwordx4 v[28:31], v23, s[{SO}:{SO+3}], s38 offen sc1")
    E("s_mov_b32 exec_hi, -1")
    E("s_lshl_b32 s38, s2, 9")
    E(f"s_add_u32 s38, s38, {WS_FLAG}")
    E("s_cmp_eq_u32 s3, 0")
    E(f"s_cselect_b32 s38, s38, {OOB}")
    E("s_mov_b32 exec_hi, 0")
    E(f"buffer_store_dwordx4 v[64:67], v1, s[{SO}:{SO+3}], s38 offen sc1")
    E("s_mov_b32 exec_hi, -1")
    if opt.get("tlb"):
        E("v_lshlrev_b32 v16, 21, v0")
        E("s_lshl_b32 s38, s2, 12"); E("s_lshl_b32 s30, s3, 10"); E("s_add_u32 s38, s38, s30")
        E(f"buffer_load_dword a253, v16, s[{SO}:{SO+3}], s38 offen")
        E("s_add_u32 s38, s38, 0x8000000")
        E(f"buffer_load_dword a252, v16, s[{SO}:{SO+3}], s38 offen")
    E("v_mov_b32 v0, v60"); E("v_mov_b32 v1, v61")
    P += ST.t(2) + cs('first')
    E(f"s_and_b32 s23, s25, {opt.get('hookmask', 3)}")
    E("s_add_u32 s23, s23, 1")
    E("s_mov_b32 s36, 0")
    E("s_cmp_eq_u32 s26, 0")
    stP = sched.State()
    pro = fin(P, stP)
    A.extend(sched.texts(pro))
    A("s_cbranch_scc0 L_firstV")

    def phase_mfmas(which, g, first=False):
        j = (g >> 2) & 1; p = g & 3
        hx = 0 if p < 2 else 1
        hw = [0, 1, 1, 0][p]
        bank = hw ^ j
        m = []
        od = opt.get("kvord", "xsz")
        if od == "x": idx = [(ti, tj, s_) for ti in range(4) for tj in range(4) for s_ in range(2)]
        elif od == "w": idx = [(ti, tj, s_) for tj in range(4) for ti in range(4) for s_ in range(2)]
        elif od == "xs": idx = [(ti, tj if ti % 2 == 0 else 3 - tj, s_) for ti in range(4) for tj in range(4) for s_ in range(2)]
        elif od == "xz": idx = [(ti, tj, s_ if tj % 2 == 0 else 1 - s_) for ti in range(4) for tj in range(4) for s_ in range(2)]
        elif od == "xsz": idx = [(ti, tj if ti % 2 == 0 else 3 - tj, s_ if tj % 2 == 0 else 1 - s_) for ti in range(4) for tj in range(4) for s_ in range(2)]
        elif od == "b": idx = [(a_, b_, s_) if which == 0 else (b_, a_, s_) for a_ in range(4) for b_ in range(4) for s_ in range(2)]
        elif od == "a": idx = [(a_, b_, s_) if which == 1 else (b_, a_, s_) for a_ in range(4) for b_ in range(4) for s_ in range(2)]
        seen = set()
        for (ti, tj, s_) in idx:
                    c_ = acc(which, hx, ti, hw, tj); X = fx(hx, ti, s_); W_ = fw(bank, tj, s_)
                    ci = "0" if (first and (ti, tj) not in seen) else None
                    seen.add((ti, tj))
                    m.append(mfma16(c_, W_, X, ci) if which == 0 else mfma16(c_, X, W_, ci))
        return m
    PF = ["global_load_dword a254, v[0:1], off", "v_lshl_add_u64 v[0:1], s[52:53], 0, v[0:1]"] if opt.get("wpf", 1) else []
    def drain_quad(hx, hw):
        cv = []; stv = []; src = []
        so = 37 if hx == 0 else 40
        for n in range(8):
            idx = (hx * 2 + hw) * 16 + 2 * n
            if idx >= 60:
                t0 = 212 + 16 * (n & 1); t1 = t0 + 8
                cv += [f"v_accvgpr_read_b32 v{t0+i}, a{64 + 4 * (idx - 60) + i}" for i in range(4)]
                cv += [f"v_accvgpr_read_b32 v{t1+i}, a{64 + 4 * (idx - 60) + 4 + i}" for i in range(4)]
            else:
                t0 = 16 + 4 * idx; t1 = t0 + 4
            cv += [f"v_cvt_pk_bf16_f32 v{t0}, v{t0}, v{t0+1}", f"v_cvt_pk_bf16_f32 v{t0+1}, v{t0+2}, v{t0+3}",
                   f"v_cvt_pk_bf16_f32 v{t0+2}, v{t1}, v{t1+1}", f"v_cvt_pk_bf16_f32 v{t0+3}, v{t1+2}, v{t1+3}"]
            if n == 0:
                stv.append(f"s_mul_i32 s{so}, s13, {hw}")
                stv.append(f"s_add_u32 s{so}, s{so}, s58")
                if hx: stv.append(f"s_add_u32 s{so}, s{so}, {16 * 32768}")
            elif n & 1: stv.append(f"s_add_u32 s{so}, s{so}, s59")
            else: stv.append(f"s_add_u32 s{so}, s{so}, s14")
            src.append(t0)
            d0 = t0 if hx == 0 else HOLD + (hw * 8 + n) * 4
            stv.append(f"buffer_store_dwordx4 {r(d0, 4)}, v1, s[{SO}:{SO+3}], s{so} offen sc1 @tag=kv{hx}")
        return cv, stv, src
    HOLD = 256 + 128
    NSA = opt.get('nsa', 2)
    cv00, st00, _ = drain_quad(0, 0); cv01, st01, _ = drain_quad(0, 1); cv11, st11, src11 = drain_quad(1, 1); cv10, st10, src10 = drain_quad(1, 0)
    st0 = st00 + st01
    kcut = [i for i, x in enumerate(st0) if x.startswith('buffer')][NSA - 1] + 1
    st0a, st0b = st0[:kcut], st0[kcut:]
    hold_mv = [f"v_accvgpr_write_b32 a{HOLD - 256 + (hw * 8 + n) * 4 + i}, v{(src11 if hw else src10)[n] + i}" for hw in (1, 0) for n in (6, 7, 0, 1, 2, 3, 4, 5) for i in range(4)]
    QV = 2; VF = 3; QD = 4
    REGION = [131072, 65536, 0, 98304, 32768]
    def region(sb): return REGION[sb % 5]
    QF = [FX[0], FW[0]]
    def qacc(b, k): return 20 + 64 * b + 8 * k
    def q_dma(sb, u):
        cb, kh = sb >> 1, sb & 1
        ks = kh * 7 + u
        return [f"s_add_u32 m0, s31, {region(sb) + u * 4096}", f"s_mov_b32 s35, {ks * 32 * 8192 + cb * 128}",
                f"buffer_load_dwordx4 v{QV}, s[{SQ}:{SQ+3}], s35 offen lds @tag=sb{sb}"]
    def q_dmas(sb, us): return sum((q_dma(sb, u) for u in us), [])
    def q_reads(sb, dtl):
        n = sb * 4 + dtl
        return [f"ds_read_b64_tr_b16 {r(QF[n & 1] + 4 * u + 2 * h2, 2)}, v{QD+dtl} offset:{u * 4096 + h2 * 512}" for u in range(7) for h2 in range(2)]
    q_setup = ["s_mov_b32 s13, s39", "s_mov_b32 s14, s51", "s_lshl_b32 s31, s3, 10", "s_lshl_b32 s30, s3, 3", "v_lshrrev_b32 v7, 3, v0", "v_add_u32 v7, s30, v7", "v_lshlrev_b32 v7, 13, v7",
               "s_lshl_b32 s30, s24, 9", "v_add_u32 v7, s30, v7", "v_bfe_u32 v8, v0, 4, 1", "s_lshl_b32 s30, s29, 1", "v_or_b32 v8, s30, v8",
               "v_lshlrev_b32 v8, 1, v8", "v_and_b32 v9, 7, v0", "v_xor_b32 v8, v8, v9", f"v_lshl_add_u32 v{QV}, v8, 4, v7"]
    q_setup2 = ["v_lshrrev_b32 v8, 4, v0", "v_lshlrev_b32 v8, 3, v8", "v_bfe_u32 v9, v0, 2, 2", "v_add_u32 v8, v8, v9", "v_lshlrev_b32 v8, 7, v8",
                "v_bfe_u32 v9, v0, 3, 2", "v_lshlrev_b32 v9, 5, v9", "v_add_u32 v8, v8, v9", "v_and_b32 v9, 3, v0", "v_lshl_add_u32 v8, v9, 3, v8",
                f"v_add_u32 v{QD}, {region(0)}, v8"] + [f"v_xor_b32 v{QD+d}, {d << 5}, v{QD}" for d in range(1, 4)] + \
               ["s_lshl_b32 s30, s3, 6", "v_add_u32 v8, s30, v0", "v_lshrrev_b32 v9, 4, v8", "v_min_u32 v9, 1, v9", "v_lshlrev_b32 v9, 30, v9",
                f"v_lshl_add_u32 v{VF}, v8, 8, v9", "v_mov_b32 v9, 1", "s_and_b32 s15, s22, 0xfffff000"]
    adv2 = ["s_add_u32 s33, s33, 256", f"s_add_u32 s34, s34, {128 * 8192}"]
    def steady(which, g, extra=None):
        m = phase_mfmas(which, g)
        su, d = dma_setup(g + 8)
        f = [(15, su[0]), (16, su[1])] + [(17 + 4 * i, d[i]) for i in range(4)]
        f += spread(reads(g + 2), 0, 16)
        return m, f
    for which in (0, 1):
        sfx = "K" if which == 0 else "V"
        lab = "L_loop" + sfx
        A.label("L_first" + sfx)
        st = stP.copy()
        m = []; fixed = []; vm = []; rd = []
        for g in range(8):
            o = 32 * g
            m += phase_mfmas(which, g, first=(g < 4))
            fixed += [(o + 5, f"WAITVM @need=ht{g+2}\ns_waitcnt lgkmcnt(0)\ns_barrier")]
            hts = [4 + 2 * g, 5 + 2 * g] if g < 4 else [g + 8]
            it = []
            for n in hts:
                if n == 8: it += adv2
                it += dma_block(n)
            vm.append((it, o, o + 30))
            rd.append((reads(g + 2), o + 6, o + 25))
        fixed += [(254, "WAITVM @need=ht10,ht11\ns_waitcnt lgkmcnt(0)\ns_barrier"), (255, "\n".join(adv2))]
        if PF: fixed += [(200, PF[0]), (201, PF[1])]
        for nm in CST:
            if nm.startswith('f') and nm[1:].isdigit(): fixed += [(32 * int(nm[1:]) + 1, x) for x in cs(nm)]
        L = sched.pack(m, vm + rd, fixed, VB)
        fi = fin(L, st, pro)
        A.extend(sched.texts(fi))
        A.extend(cs('roll'))
        A(".p2align 6")
        A.label(lab)
        body = []
        for g in range(8):
            m, f = steady(which, g)
            if g == 2 and PF: f += [(1, PF[0]), (3, PF[1])]
            if g == 7:
                f += [(26, adv2[0]), (27, adv2[1]), (28, "s_add_u32 s36, s36, 1"), (31, "s_cmp_eq_u32 s36, s23")]
            if g & 1: f += [(30, "s_waitcnt vmcnt(16) lgkmcnt(0)"), (30, "s_barrier")]
            else: f += [(30, "s_waitcnt lgkmcnt(0)")]
            body += sched.pack(m, [], f)
        st = sched.State()
        lp = sched.finish_loop(body, st, prev=fi, report=rep)
        A.extend(sched.texts(lp))
        A(f"s_cbranch_scc0 {lab}")
        A("s_cmp_eq_u32 s36, 5")
        A(f"s_cbranch_scc0 L_hook")
        st = sched.State()
        st.vm = [(set(), f"ht{n}") for n in range(52, 56) for _ in range(4)]
        L = ST.t(3) + cs('peel')
        xl = [f"buffer_load_dwordx4 {r(XH + (tt * 14 + ks) * 4, 4)}, v1, s[{SO}:{SO+3}], s{48 if tt == 0 else 36} offen offset:{ks * 128} sc1"
              for ks in range(14) for tt in range(2)]
        m = []; fixed = []; rd = []
        for g in range(48, 64):
            o = (g - 48) * 32
            if g < 56:
                mm, f = steady(which, g)
                m += mm; fixed += [(o + a_, b_) for a_, b_ in f]
            else:
                m += phase_mfmas(which, g)
                if g + 2 < 64: rd.append((reads(g + 2), o, o + 22))
            if g & 1 and g < 61: fixed += [(o + 30, f"WAITVM @need=ht{g+3},ht{g+4}\ns_waitcnt lgkmcnt(0)\ns_barrier")]
            elif g == 61: fixed += [(o + 30, "s_waitcnt lgkmcnt(0)\ns_barrier")]
        if PF: fixed += [(-1, PF[0])]
        fixed += [(-1, "s_lshl_b32 s38, s50, 4\ns_load_dwordx4 s[52:55], s[4:5], s38")]
        fixed += [(16, "v_mbcnt_lo_u32_b32 v1, -1, 0"), (18, "v_mbcnt_hi_u32_b32 v1, -1, v1"), (19, "v_bfe_u32 v0, v1, 1, 3"), (20, "v_mul_u32_u24 v0, 1792, v0"),
                  (22, "v_and_b32 v1, 0x31, v1"), (23, "v_mul_u32_u24 v1, 9, v1"), (24, "v_bfe_u32 v1, v1, 3, 3"), (26, "v_lshl_add_u32 v1, v1, 4, v0"),
                  (27, "v_mbcnt_lo_u32_b32 v0, -1, 0"), (28, "v_mbcnt_hi_u32_b32 v0, -1, v0"), (28, "s_add_u32 s36, s48, 14336"),
                  (30, "s_waitcnt lgkmcnt(0)\ns_and_b64 s[52:53], s[52:53], s[54:55]"),
                  (31, f"s_and_b32 s52, s52, s53\ns_cmp_eq_u32 s52, 0x01010101\ns_cbranch_scc0 {lab}_xspin\n{lab}_xspun:"),
                  (256 + 190, "v_lshlrev_b32 v1, 4, v0")]
        fixed += [(256 + 2, "v_lshlrev_b32 v6, 2, v0"), (256 + 4, "global_load_dword v3, v6, s[4:5] sc1 @tag=poll"),
                  (256 + 127, f"v_cmp_ne_u32 vcc, 0x01010101, v3"), (256 + 129, f"s_cbranch_vccnz {lab}_spin\n{lab}_spun:")]
        for nm in CST:
            if nm.startswith('p') and nm[1:].isdigit(): fixed += [(32 * (int(nm[1:]) - 48) + 1, x) for x in cs(nm)]
        o = 256; XA = opt.get('xa', 8)
        fixed += [(255, x) for x in cs('peel2')]
        fixed += [(o + 7 * 32 + 17, "WAITVM @need=sb0\ns_barrier")]
        xr = xl[XA:]
        n3 = opt.get("n3", 0)
        h_ = (len(xr) + 1) // 2
        seq = q_dmas(0, range(7)) + xr[:h_] + q_dmas(1, range(7)) + xr[h_:]
        vm = [(seq, o + 12, o + 189), (q_dmas(2, range(7)) + q_dmas(3, range(n3)), o + 192, o + 255)]
        streams = ([(xl[:XA], 33, o + 2)] if XA else []) + vm + [(st0a, o + 200, o + 250)] + rd
        streams.append((q_setup, o + 1, o + 11))
        streams.append((q_setup2, o + 131, o + 160))
        streams.append((codepf("L_q", 4, "v5", 10 + which), o + 50, o + 64))
        streams.append((q_reads(0, 0), o + 7 * 32 + 18, o + 256))
        streams.append((cv00, o + 163, o + 190))
        streams.append((cv01, o + 195, o + 226))
        streams.append((cv11[:24], o + 227, o + 256))
        L += sched.pack(m, streams, fixed, VB)
        pe = fin(L, st, lp)
        A.extend(sched.texts(pe))
        if which == 0: A("s_branch L_q")
        stq = st
    NEGM = 4; TMP = 12; ORA = 24
    S0 = 32; P0 = 64; LS = 96; ONES = 104; O0 = 128
    QR = 256; FR = 320; PARK = 256 + 192; PARTL = 256 + 128
    WV = 112; WD = 119; AVF = 25; AV1 = 26
    def S(kt, tt): return S0 + (kt * 2 + tt) * 4
    def Pf(b, ks, tt): return P0 + 16 * b + (ks * 2 + tt) * 4
    def O(dt, tt): return O0 + (dt * 2 + tt) * 4
    def Q(tt, ds): return QR + (tt * 8 + ds) * 4
    def F(bank, i): return FR + bank * 32 + i * 4
    SWS = SO
    def dma4(kind, slot, half, tag=""):
        sreg = 30 if kind == "K" else 31
        base = (0 if kind == "K" else 65536) + slot * 32768 + half * 4096
        su = [f"s_add_u32 m0, s32, {base}", f"s_add_u32 s35, s{sreg}, {half * 4096}"]
        d = [f"buffer_load_dwordx4 v1, s[{SWS}:{SWS+3}], s35 offen offset:{i*1024} sc1 lds" + (f" @tag={tag}" if tag else "") for i in range(4)]
        return su, d
    def dma_adv(kind):
        sreg = 30 if kind == "K" else 31; cnt = 33 if kind == "K" else 34; t = 20 if kind == "K" else 21
        return [f"s_sub_u32 s{cnt}, s{cnt}, 1", f"s_cmp_eq_u32 s{cnt}, s28\ns_cselect_b32 s{t}, s23, 0x8000",
                f"s_cmp_eq_u32 s{cnt}, s8\ns_cselect_b32 s{t}, s9, s{t}", f"s_add_u32 s{sreg}, s{sreg}, s{t}",
                f"s_cmp_gt_i32 s{cnt}, 0\ns_cselect_b32 s{sreg}, s{sreg}, {OOB}"]
    def dma_blk(kind, slot, tag=""):
        out = []
        for half in range(2):
            su, d = dma4(kind, slot, half, tag); out += su + d
        return out
    def signal(dw, sdata=None):
        return f"buffer_atomic_add v{{d}}, v{{f}}, s[{SWS}:{SWS+3}], s22 offen offset:{4*dw} sc1"
    A.label("L_q")
    L = ST.t(4) + cs('q')
    ng = 32
    def q_pack(cb):
        out = []
        for pr in range(2):
            for tt in range(2):
                a0 = qacc(cb & 1, (2 * pr) * 2 + tt); a1 = qacc(cb & 1, (2 * pr + 1) * 2 + tt)
                q_ = Q(tt, cb * 2 + pr) - 256
                out += [f"v_cvt_pk_bf16_f32 v{a0}, v{a0}, v{a0+1}", f"v_cvt_pk_bf16_f32 v{a0+1}, v{a0+2}, v{a0+3}",
                        f"v_cvt_pk_bf16_f32 v{a0+2}, v{a1}, v{a1+1}", f"v_cvt_pk_bf16_f32 v{a0+3}, v{a1+2}, v{a1+3}"]
                out += [f"v_accvgpr_write_b32 a{q_+i}, v{a0+i}" for i in range(4)]
        return out
    m = []; fixed = []; rstreams = []
    for n in range(ng):
        sb, dtl = n >> 2, n & 3
        cb, kh = sb >> 1, sb & 1
        for tt in range(2):
            for u in range(7):
                c_ = qacc(cb & 1, dtl * 2 + tt)
                m.append(mfma16(c_, QF[n & 1] + 4 * u, XH + (tt * 14 + kh * 7 + u) * 4, "0" if (kh == 0 and u == 0) else None))
        if n + 1 < ng:
            sb2, d2 = (n + 1) >> 2, (n + 1) & 3
            g0 = 14 * n - 1
            if d2 == 0:
                need = f"sb{sb2}" + (",kv0" if sb2 == opt.get("sigb", 5) else "")
                fixed += [(g0, f"WAITVM @need={need}"), (g0, "s_barrier")]
            if sb2 > 0:
                delta = (region(sb2) - region(sb2 - 1)) & 0xffffffff
                fixed += [(g0 - 1, f"v_add_u32 v{QD+d2}, {hex(delta)}, v{QD+d2}")]
            rstreams.append((q_reads(sb2, d2), 14 * n, 14 * n + 12))
    G = lambda n: 14 * n
    vm = [(q_dmas(3, range(opt.get('n3', 0), 7)), 2, 40), (q_dmas(4, range(7)), 56, 90)]
    for sb in (2, 3, 4): vm.append((q_dmas(sb + 3, range(7)), G(4 * sb), G(4 * sb) + 30))
    SIGB = opt.get("sigb", 5)
    gs = G(4 * SIGB - 1)
    fixed += [(gs, f"buffer_atomic_add v9, v{VF}, s[{SWS}:{SWS+3}], s15 offen sc1")]
    C_ = 9
    asu = [f"s_lshl_b32 s32, s3, 13", "s_lshl_b32 s30, s24, 20", "s_add_u32 s30, s30, s32", f"s_add_u32 s31, s30, {WS_V}",
           "s_lshl_b32 s21, s27, 1",
           "s_add_u32 s29, s21, 2",
           "s_sub_u32 s20, 32, s21", f"s_min_u32 s33, s20, {NA}",
           "s_sub_u32 s25, s20, s33",
           f"s_sub_i32 s20, {C_}, s29", "s_max_i32 s20, s20, 0", "s_min_u32 s20, s20, s25",
           "s_sub_u32 s21, s25, s20",
           "s_sub_u32 s28, s33, s29", "s_add_u32 s23, s20, 1", "s_mov_b32 s8, 2", "s_add_u32 s9, s21, 1",
           "s_sub_u32 s11, s28, 1",
           f"s_cmp_eq_u32 s26, 0\ns_cselect_b32 s28, s28, s21", f"s_cmp_eq_u32 s26, 0\ns_cselect_b32 s23, s23, s11",
           f"s_cmp_eq_u32 s26, 0\ns_cselect_b32 s8, s8, -1",
           "s_lshl_b32 s23, s23, 15", "s_lshl_b32 s9, s9, 15",
           "s_add_u32 s34, s29, s25",
           f"s_cmp_eq_u32 s26, 0\ns_cselect_b32 s29, s33, s29", f"s_cmp_eq_u32 s26, 0\ns_cselect_b32 s33, s33, s34", "s_mov_b32 s34, s33",
           "s_mov_b32 s10, 0x7fff", "s_mov_b32 s11, 0",
           "s_add_u32 s20, s6, s22\ns_addc_u32 s21, s7, 0"]
    fixed += [(G(19) + 1 + 2 * i, x) for i, x in enumerate(asu)]
    def qstore(cb):
        return [f"s_add_u32 s38, s41, {(tt * 8 + cb * 2 + pr) * 1024}\nbuffer_store_dwordx4 {r(Q(tt, cb * 2 + pr), 4)}, v1, s[{SWS}:{SWS+3}], s38 offen sc1 @tag=qs"
                for pr in range(2) for tt in range(2)]
    fixed += [(G(19) - 3, f"s_cmp_eq_u32 s26, 0\ns_cselect_b32 s41, s49, {OOB}")]
    gp = G(opt.get("pollg", 27))
    fixed += [(gp - 30, "s_load_dword s52, s[20:21], 0 glc")]
    fixed += [(gp - 2, "s_waitcnt lgkmcnt(0)"), (gp - 1, "s_cmp_ge_u32 s52, 16\ns_cbranch_scc0 L_spin1\nL_spun1:")]
    vm.append((dma_blk("K", 1, "k0") + dma_adv("K") + dma_blk("V", 1, "v0") + dma_adv("V"), gp + 1, G(32)))
    if opt.get("qst"):
        for k_, g_ in zip((8, 9, 1), opt["qst"]): fixed += [(G(g_) + 2, x) for x in ST.t(k_)]
    for nm in CST:
        if nm.startswith("g"): fixed += [(G(int(nm[1:])) + 2, x) for x in cs(nm)]
    streams = vm + [(st0b, 2, G(opt.get("st01end", 15))), (qstore(0), G(19) + 4, G(24)), (qstore(1), G(24), gp - 3)] + rstreams
    streams.append((cv11[24:] + cv10, 4, G(8)))
    for cb in range(3): streams.append((q_pack(cb), G(8 * cb + 8) + 3, G(8 * cb + 16) - 2))
    def xf(items):
        o = items
        if opt.get("xq_nost"): o = [x for x in o if "buffer_store" not in x]
        if opt.get("xq_nov"): o = [x for x in o if not x.startswith("v_")]
        if opt.get("xq_nord"): o = [x for x in o if not x.startswith("ds_")]
        if opt.get("xq_nodma"): o = [x for x in o if " lds" not in x]
        return o
    streams = [(xf(a_), b_, c_) for a_, b_, c_ in streams]
    streams = [x for x in streams if x[0]]
    L += sched.pack(m, streams, fixed, VB)
    L += q_pack(3)
    L += ST.t(5) + cs('qend')
    def kreads(slot, kt, bank):
        return [f"ds_read_b128 {r(F(bank, ds), 4)}, v1 offset:{slot * 32768 + (kt * 8 + ds) * 1024}" for ds in range(8)]
    def vreads(slot, grp, bank):
        return [f"ds_read_b128 {r(F(bank, d * 2 + ks), 4)}, v2 offset:{slot * 32768 + (ks * 16 + 4 * grp + d) * 1024}"
                for d in range(4) for ks in range(2)]
    def qk_group(kt, bank, cinit):
        m = []
        for tt in range(2):
            for ds in range(8):
                ci = None if ds else ("0" if cinit == 0 else NEGM + 4 * tt)
                m.append(mfma16(S(kt, tt), F(bank, ds), Q(tt, ds), ci))
        return m
    def pv_group(grp, bank, pb, zero=False):
        o = pv_group0(grp, bank, pb)
        if zero: o = [x if i & 1 else x.rsplit(',', 1)[0] + ', 0' for i, x in enumerate(o)]
        return o
    def pv_group0(grp, bank, pb):
        if opt.get("pvord", "z") == "z":
            return [mfma16(O(4 * grp + d, tt if d % 2 == 0 else 1 - tt), F(bank, d * 2 + (ks if tt == 0 else 1 - ks)), Pf(pb, ks if tt == 0 else 1 - ks, tt if d % 2 == 0 else 1 - tt)) for d in range(4) for tt in range(2) for ks in range(2)]
        if opt.get("pvord") == "n":
            return [mfma16(O(4 * grp + d, tt), F(bank, d * 2 + ks), Pf(pb, ks, tt)) for d in range(4) for ks in range(2) for tt in range(2)]
        return [mfma16(O(4 * grp + d, tt), F(bank, d * 2 + ks), Pf(pb, ks, tt)) for d in range(4) for tt in range(2) for ks in range(2)]
    def l_mfmas(pb, zero=False):
        return [mfma16(LS + 4 * tt, ONES, Pf(pb, ks, tt), "0" if (zero and ks == 0) else None) for tt in range(2) for ks in range(2)]
    def softmax(pb):
        out = []; n = 0
        for kt in range(4):
            for tt in range(2):
                t = TMP + 4 * (n % 3); s_ = S(kt, tt); d = Pf(pb, kt >> 1, tt) + 2 * (kt & 1)
                out += [f"v_exp_f32 v{t+i}, v{s_+i}" for i in range(4)]
                out += [f"v_cvt_pk_bf16_f32 v{d}, v{t}, v{t+1}", f"v_cvt_pk_bf16_f32 v{d+1}, v{t+2}, v{t+3}"]
                out += [f"v_or_b32 v{ORA}, v{d}, v{d+1}" if n == 0 else f"v_or3_b32 v{ORA}, v{ORA}, v{d}, v{d+1}"]
                n += 1
        return out
    def smtile(pb, n): return softmax(pb)[7 * n:7 * n + 7]
    def mask_code(base):
        L = [f"s_sub_u32 s38, {base}, s29", "s_lshl_b32 s38, s38, 6", "s_lshl_b32 s39, s3, 5", "s_sub_u32 s38, s39, s38",
             "v_add_u32 v12, s38, v3", "v_cvt_f32_i32 v12, v12", "v_add_f32 v12, 0.5, v12", f"v_mul_f32 v12, {hex(f2u(1e30))}, v12"]
        n = 0
        for dd in range(-1, 4):
            for rr in range(4):
                c = rr + 16 * dd
                t = 13 + (n % 4); n += 1
                L.append(f"v_add_f32 v{t}, {hex(f2u(-c * 1e30))}, v12")
                for tt in range(2):
                    kt = dd + tt
                    if 0 <= kt < 4: L.append(f"v_min_f32 v{S(kt, tt)+rr}, v{S(kt, tt)+rr}, v{t}")
        return L
    def rescale(init, pb):
        L = []
        for tt in range(2):
            m_ = 12 + 2 * tt
            regs = [S(kt, tt) + i for kt in range(4) for i in range(4)]
            L.append(f"v_max3_f32 v{m_}, v{regs[0]}, v{regs[1]}, v{regs[2]}")
            for k in range(3, 15, 2): L.append(f"v_max3_f32 v{m_}, v{m_}, v{regs[k]}, v{regs[k+1]}")
            L.append(f"v_max_f32 v{m_}, v{m_}, v{regs[15]}")
        for sw in ("v_permlane16_swap_b32", "v_permlane32_swap_b32"):
            for tt in range(2): L.append(f"v_mov_b32 v{13+2*tt}, v{12+2*tt}")
            for tt in range(2): L.append(f"{sw} v{12+2*tt}, v{13+2*tt}")
            for tt in range(2): L.append(f"v_max_f32 v{12+2*tt}, v{12+2*tt}, v{13+2*tt}")
        for tt in range(2):
            m_ = 12 + 2 * tt
            L.append(f"v_sub_f32 v{m_}, {hex(f2u(-B0))}, v{m_}")
            L.append(f"v_floor_f32 v{m_}, v{m_}")
            if not init: L.append(f"v_min_f32 v{m_}, 0, v{m_}")
            L.append(f"v_mov_b32 v{m_+1}, v{m_}")
        for tt in range(2):
            m_ = 12 + 2 * tt
            for i in range(2):
                a_ = NEGM + 4 * tt + 2 * i
                if init: L.append(f"v_pk_mov_b32 v[{a_}:{a_+1}], v[{m_}:{m_+1}], v[{m_}:{m_+1}]")
                else: L.append(f"v_pk_add_f32 v[{a_}:{a_+1}], v[{a_}:{a_+1}], v[{m_}:{m_+1}]")
            for kt in range(4):
                for i in range(2):
                    a_ = S(kt, tt) + 2 * i
                    L.append(f"v_pk_add_f32 v[{a_}:{a_+1}], v[{a_}:{a_+1}], v[{m_}:{m_+1}]")
        if not init:
            for tt in range(2):
                m_ = 12 + 2 * tt
                L.append(f"v_exp_f32 v{m_}, v{m_}")
                L.append(f"v_mov_b32 v{m_+1}, v{m_}")
                for rg in [O(dt, tt) + 2 * i for dt in range(16) for i in range(2)] + [LS + 4 * tt, LS + 4 * tt + 2]:
                    L.append(f"v_pk_mul_f32 v[{rg}:{rg+1}], v[{rg}:{rg+1}], v[{m_}:{m_+1}]")
        L += softmax(pb)
        return L
    zeroO = [f"v_mov_b32 v{i}, 0" for i in range(O0, O0 + 128)] + [f"v_mov_b32 v{i}, 0" for i in range(LS, LS + 8)]
    zeroOpk = [f"v_pk_mov_b32 v[{i}:{i+1}], 0, 0" for i in list(range(O0, O0 + 128, 2)) + list(range(LS, LS + 8, 2))]
    L += [f"v_mov_b32 v{AVF}, v{VF}", "v_add_u32 v2, 0x10000, v1", f"v_mov_b32 v{AV1}, 1"]
    L += ["WAITVM @need=k0", "s_barrier"]
    L += kreads(1, 0, 0)
    m = []; streams = []
    for kt in range(4): m += qk_group(kt, kt & 1, 0)
    streams.append((dma_blk("K", 0, "k1") + dma_adv("K"), 0, 34))
    streams.append((qstore(2), 33, 64))
    for kt in range(3): streams.append((kreads(1, kt + 1, (kt + 1) & 1), 16 * kt, 16 * kt + 11))
    setup = ["v_lshrrev_b32 v12, 4, v0", "v_lshlrev_b32 v12, 2, v12", "v_and_b32 v13, 15, v0", "v_sub_u32 v3, v13, v12"] + \
            [f"v_mov_b32 v{ONES+i}, 0x3f803f80" for i in range(4)]
    streams.append((hold_mv + setup, 0, 63))
    L += sched.pack(m, streams, [], VB)
    L += ["s_barrier"]
    def mixv(valu, vm, every):
        out = []; k = 0; groups = []; cur = []
        for x in vm:
            cur.append(x)
            if x.startswith("buffer"): groups.append(cur); cur = []
        if cur: groups[-1] += cur
        for i, x in enumerate(valu):
            out.append(x)
            if i % every == every - 1 and k < len(groups): out += groups[k]; k += 1
        for g in groups[k:]: out += g
        return out
    L += ["s_mov_b32 s36, 3", f"s_cmp_eq_u32 s26, 0\ns_cselect_b32 s37, 2, 3", "s_cmp_eq_u32 s25, 0\ns_cselect_b32 s37, 1, s37",
          "s_lshl_b32 s38, 1, s27", f"v_mov_b32 v{AV1}, s38", "s_mov_b32 s12, 0"]
    L += ST.t(6) + cs('qk0')
    qq = fin(L, stq, pe)
    A.extend(sched.texts(qq))
    A("s_cmp_lt_u32 s29, s36")
    A("s_cbranch_scc0 L_nomask0")
    emit(mask_code(2))
    A.label("L_nomask0")
    wvs = ["s_mov_b32 s39, 0x12492493"]
    for p in range(7):
        wvs += [f"v_add_u32 v28, {p * 64}, v0", "v_mul_hi_u32 v29, v28, s39", "v_mul_u32_u24 v30, 14, v29", "v_sub_u32 v28, v28, v30",
                "v_mul_u32_u24 v29, 896, v29", "v_lshl_add_u32 v28, v28, 4, v29", f"v_subrev_u32 v{WV+p}, {(p % 4) * 1024}, v28"]
    wvs += ["v_lshrrev_b32 v28, 3, v0", "v_mul_u32_u24 v29, 896, v28", "v_and_b32 v28, 6, v28", "v_and_b32 v30, 7, v0", "v_xor_b32 v28, v28, v30",
            "v_lshl_add_u32 v31, v28, 4, v29",
            "v_lshrrev_b32 v28, 2, v0", "v_lshlrev_b32 v28, 7, v28", "v_bfe_u32 v29, v0, 3, 2", "v_lshl_add_u32 v28, v29, 5, v28", "v_and_b32 v29, 3, v0",
            f"v_lshl_add_u32 v{WD}, v29, 3, v28"]
    L = mixv(rescale(True, 1), dma_blk("K", 1, "k2") + dma_adv("K"), 12)
    L += ["WAITVM @need=k1", "s_barrier"]
    L += kreads(0, 0, 0)
    L += ST.t(7) + cs('att')
    L += ["s_cmp_le_u32 s29, 4"]
    ini = fin(L, stq)
    A.extend(sched.texts(ini))
    A("s_cbranch_scc1 L_slow" if opt.get("pk", 1) else "s_branch L_slow")
    hs = st11 + st10
    def split_stores(lst, cnts):
        out = []; cur = []; k = 0; c = 0
        for x in lst:
            cur.append(x)
            if x.startswith("buffer"):
                c += 1
                if c == cnts[k]: out.append(cur); cur = []; c = 0; k += 1
        return out
    hit = ["\n".join(x[-2:]) if len(x) <= 2 else x for x in split_stores(hs, [1] * 16)]
    def pblock(j, stores, extra, after_bb):
        par = (j + 1) & 1; ks_ = par ^ 1
        m = []
        for kt in range(4): m += qk_group(kt, kt & 1, 1)
        m += l_mfmas(par, j == 0)
        for grp in range(4): m += pv_group(grp, grp & 1, par, j == 0)
        f = []
        su0, d0 = dma4("V", ks_, 0, f"v{j+1}"); su1, d1 = dma4("V", ks_, 1, f"v{j+1}")
        f += [(0, su0[0]), (1, su0[1])] + [(2 + 4 * i, d0[i]) for i in range(4)]
        f += [(16, su1[0]), (17, su1[1])] + [(18 + 4 * i, d1[i]) for i in range(4)]
        f += [(38, f"WAITVM @need=v{j}\ns_waitcnt lgkmcnt(0)\ns_barrier")]
        su0, d0 = dma4("K", ks_, 0, f"k{j+3}"); su1, d1 = dma4("K", ks_, 1, f"k{j+3}")
        f += [(37, su0[0]), (39, su0[1])] + [(40 + 11 * i, d0[i]) for i in range(4)]
        f += [(82, su1[0]), (83, su1[1])] + [(84 + 11 * i, d1[i]) for i in range(4)]
        for i, x in enumerate(stores):
            g = 44 + 11 * i
            if isinstance(x, list):
                f += [(g - 3 + k_, y) for k_, y in enumerate(x[:-1])] + [(g, x[-1])]
            else: f += [(g, x)]
        f += [(120, f"WAITVM @need=k{j+2}{after_bb[0]}\ns_waitcnt lgkmcnt(0)\ns_barrier")]
        f += [(130, y) for y in after_bb[1]]
        f += [(126, f"v_and_b32 v{ORA}, 0x40004000, v{ORA}"), (127, f"v_cmp_ne_u32 vcc, 0, v{ORA}")]
        st_ = []
        tl = [smtile(par ^ 1, t) for t in range(8)]
        at = [33 + 11 * t for t in range(8)]
        for t in range(8): st_.append((tl[t][:4], at[t], at[t] + 9))
        st_ += [(kreads(ks_, 1, 1), 0, 11), (kreads(ks_, 2, 0), 11, 22), (kreads(ks_, 3, 1), 24, 34), (vreads(par, 0, 0), 48, 64),
                (vreads(par, 1, 1), 66, 82), (vreads(par, 2, 0), 84, 98), (vreads(par, 3, 1), 100, 115), (kreads(par, 0, 0), 121, 130)]
        for t in range(8): st_.append((tl[t][4:], at[t] + 9, at[t] + 15))
        st_ += [(dma_adv("V") + ["s_sub_u32 s29, s29, 1", f"s_mov_b32 s12, {(j + 1) % 3}"], 46, 80), (dma_adv("K"), 121, 130)]
        if extra: st_.append((extra, 0, 33))
        return sched.pack(m, st_, f, VB, slack=4)
    q3 = qstore(3)
    sig3 = [f"s_cmp_eq_u32 s26, 0\ns_cselect_b32 s38, s15, {OOB}\nbuffer_atomic_add v{AV1}, v{AVF}, s[{SWS}:{SWS+3}], s38 offen offset:8 sc1"]
    plan = [(q3 + hit[:4], wvs[:21], (",qs", sig3)), (hit[4:12], wvs[21:42], ("", [])), (hit[12:], wvs[42:] + ["v_mov_b32 v28, 1"], (",kv1", [f"buffer_atomic_add v28, v{AVF}, s[{SWS}:{SWS+3}], s15 offen offset:4 sc1"]))]
    prevp = ini
    for j in range(3):
        A.label(f"L_pk{j}")
        A.extend(cs(f"k{j}"))
        pb_ = fin(pblock(j, *plan[j]), stq, prevp)
        A.extend(sched.texts(pb_)); prevp = pb_
        if j < 2: A(f"s_cbranch_vccnz L_rare{(j + 1) & 1}")
    A.extend(cs("k3"))
    A("s_mov_b32 s11, 4")
    A("s_sub_u32 s10, s29, 2")
    A("s_waitcnt lgkmcnt(0)")
    A("s_cbranch_vccnz L_rare1")
    A("s_branch L_top0")
    A.label("L_slow")
    k4 = [i for i, x in enumerate(st11) if x.startswith("buffer")][opt.get('hp', [6])[0] - 1]
    L = mixv(zeroOpk + wvs, st11[:k4 + 1], 18) + ["s_waitcnt lgkmcnt(0)"]
    if not opt.get("pk", 1): L += q3 + ["s_waitcnt vmcnt(0)", "s_barrier"] + sig3
    emit(L)
    A("s_branch L_top1")
    place = lambda m, f: sched.pack(m, [], f, False)
    def phaseA(par):
        ks_ = (par + 1) & 1
        m = []
        for kt in range(4): m += qk_group(kt, kt & 1, 1)
        f = []
        f += list(zip([0, 1, 3, 4, 5, 7, 8, 9], kreads(ks_, 1, 1)))
        f += list(zip([11, 12, 13, 15, 16, 17, 19, 20], kreads(ks_, 2, 0)))
        f += list(zip([24, 25, 27, 28, 29, 31, 32, 33], kreads(ks_, 3, 1)))
        su0, d0 = dma4("V", ks_, 0); su1, d1 = dma4("V", ks_, 1)
        f += [(0, su0[0]), (1, su0[1])] + [(2 + 4 * i, d0[i]) for i in range(4)]
        f += [(16, su1[0]), (17, su1[1])] + [(18 + 4 * i, d1[i]) for i in range(4)]
        f += list(zip([43, 45, 48, 50, 54], dma_adv("V")))
        t0 = smtile(par ^ 1, 0); t1 = smtile(par ^ 1, 1)
        f += list(zip([21, 23, 34, 35, 24, 38, 39], t0))
        f += [(38, "s_waitcnt vmcnt(16) lgkmcnt(0)"), (38, "s_barrier")]
        su0, d0 = dma4("K", ks_, 0)
        f += [(37, su0[0]), (39, su0[1])] + [(40 + 6 * i, d0[i]) for i in range(4)]
        f += list(zip([36, 37, 42, 44, 41, 47, 49], t1))
        f += [(47 + 2 * i, x) for i, x in enumerate(vreads(par, 0, 0))]
        f += [(62, "s_cmp_le_u32 s29, s36")]
        return place(m, f)
    def phaseB(par):
        mm = l_mfmas(par)
        for grp in range(4): mm += pv_group(grp, grp & 1, par)
        f = []
        for grp in range(3):
            f += [(5 + 16 * grp + 2 * i, x) for i, x in enumerate(vreads(par, grp + 1, (grp + 1) & 1))]
        f += [(56, "s_waitcnt vmcnt(16) lgkmcnt(0)"), (56, "s_barrier")]
        f += [(57 + i, x) for i, x in enumerate(kreads(par, 0, 0))]
        dg = [6, 20, 34, 48]
        eg = [g for g in range(0, 56, 2) if g not in dg]
        su1, d1 = dma4("K", (par + 1) & 1, 1)
        f += [(1, su1[0]), (2, su1[1])] + list(zip(dg, d1))
        f += list(zip([50, 58, 60, 62, 63], dma_adv("K")))
        for t in range(2, 8):
            x = smtile(par ^ 1, t); e = eg[4 * (t - 2):4 * (t - 2) + 4]
            f += list(zip(e, x[:4])) + [(e[1] + 1, x[4]), (e[3] + 1, x[5]), (e[3] + 3, x[6])]
        f += [(59, f"v_and_b32 v{ORA}, 0x40004000, v{ORA}"), (61, f"v_cmp_ne_u32 vcc, 0, v{ORA}")]
        f += [(0, "s_sub_u32 s29, s29, 1"), (66, "s_cmp_le_u32 s29, s10")]
        return place(mm, f)
    st = sched.State()
    whole = phaseA(0) + ["LBL_B0:"] + phaseB(0) + ["LBL_A1:"] + phaseA(1) + ["LBL_B1:"] + phaseB(1)
    lp = sched.texts(sched.finish_loop(whole, st, report=rep))
    iB0 = lp.index("LBL_B0:"); iA1 = lp.index("LBL_A1:"); iB1 = lp.index("LBL_B1:")
    seg = {("A", 0): lp[:iB0], ("B", 0): lp[iB0 + 1:iA1], ("A", 1): lp[iA1 + 1:iB1], ("B", 1): lp[iB1 + 1:]}
    A(".p2align 6")
    for par in range(2):
        A.label(f"L_top{par}")
        A.extend(seg[("A", par)])
        A(f"s_cbranch_scc1 L_mask{par}")
        A.label(f"L_B{par}")
        A.extend(seg[("B", par)])
        A(f"s_cbranch_scc1 L_endg{par}")
        A("s_cbranch_vccnz L_rare0" if par == 0 else "s_cbranch_vccz L_top0")
    PL = NA & 1
    L2PF = opt.get('l2pf', 0)
    HP = opt.get('hp', [6, 5, 5])
    hparts = split_stores(hs, HP)[1:]
    JS = len(hparts)
    for par in (1, 0):
        A.label(f"L_rare{par}")
        A("s_nop 7")
        emit(rescale(False, par ^ 1))
        A(f"s_cmp_eq_u32 s12, {1 if par == 1 else 2}")
        A(f"s_cbranch_scc1 L_pk{1 if par == 1 else 2}")
        A("s_cmp_eq_u32 s29, 1")
        A(f"s_cbranch_scc0 L_top{par ^ 1}")
        A.label(f"L_one{par}")
        if par == 1:
            A("s_cmp_eq_u32 s37, 3")
            A("s_cbranch_scc1 L_preswitch")
        A(f"s_branch L_last{par ^ 1}")
        A.label(f"L_endg{par}")
        A("s_cmp_ge_u32 s11, 100")
        A(f"s_cbranch_scc1 L_endh{par}")
        A("s_add_u32 s11, s11, 1")
        if L2PF:
            A("s_cmp_ge_u32 s11, 7")
            A(f"s_cbranch_scc1 L_l2pf{par}")
        for j in (5, 4, 2, 1, 0):
            if ((j + 1) & 1) != par or j == 3: continue
            A(f"s_cmp_eq_u32 s11, {j + 1}")
            A(f"s_cbranch_scc0 L_hk{j}_n")
            A.extend(cs(f"h{j}"))
            if opt.get('hst') and j in opt['hst']: A.extend(ST.t((8, 9, 1)[opt['hst'].index(j)]))
            if j < JS:
                emit(hparts[j])
            elif j == JS:
                A("v_mov_b32 v12, 1")
                A(f"buffer_atomic_add v12, v{AVF}, s[{SWS}:{SWS+3}], s15 offen offset:4 sc1")
            elif j == 4:
                A("s_add_u32 s38, s6, s22"); A("s_addc_u32 s39, s7, 0")
                A("s_load_dword s42, s[38:39], 4 glc")
                A("s_mov_b32 s10, 0x7fff")
            elif j == 5:
                if L2PF:
                    A("s_cmp_eq_u32 s26, 0")
                    A("s_cselect_b32 s10, 1, s10")
                    A("s_cselect_b32 s11, 100, s11")
                else:
                    A("s_mov_b32 s10, 1")
                    A("s_mov_b32 s11, 100")
                A("s_mov_b32 s38, s42")
                A("s_cmp_ge_u32 s38, 16")
                A("s_cbranch_scc0 L_spin2")
                A.label("L_spun2")
                A.extend(cs("h5e"))
            A.label(f"L_hk{j}_n")
        A.label(f"L_hkend{par}")
        A("s_cmp_le_u32 s29, 1")
        A(f"s_cbranch_scc1 L_endh{par}")
        A(f"s_cbranch_vccnz L_rare{par}")
        A(f"s_branch L_top{par ^ 1}")
        if L2PF:
            A.label(f"L_l2pf{par}")
            A("s_lshl_b32 s38, s27, 2"); A("s_add_u32 s38, s38, s3")
            A("v_mul_u32_u24 v12, 86, v0"); A("v_lshrrev_b32 v12, 8, v12")
            A("v_mul_u32_u24 v13, 3, v12"); A("v_sub_u32 v13, v0, v13"); A("v_lshlrev_b32 v13, 7, v13"); A("v_min_u32 v13, 220, v13")
            for j in range(6, 12):
                if ((j + 1) & 1) != par: continue
                A(f"s_cmp_eq_u32 s11, {j + 1}")
                A(f"s_cbranch_scc0 L_pf{j}_n")
                if j == 6:
                    A("s_mul_i32 s38, s38, 7168"); A("s_mul_i32 s39, s24, 229376"); A("s_add_u32 s38, s38, s39")
                    A("v_min_u32 v12, 55, v0"); A("v_lshlrev_b32 v12, 7, v12")
                    A(f"buffer_load_dword v27, v12, s[{SWO}:{SWO+3}], s38 offen")
                elif j in (7, 8):
                    A(f"s_load_dwordx2 s[20:21], s[0:1], {56 if j == 7 else 64}")
                    A("s_mul_i32 s38, s38, 14"); A("v_min_u32 v12, 13, v12"); A("v_add_u32 v12, s38, v12")
                    A("v_mul_u32_u24 v12, 3584, v12"); A("s_mul_i32 s39, s24, 224"); A("v_add3_u32 v12, v12, v13, s39")
                    A("s_waitcnt lgkmcnt(0)")
                    A(f"global_load_dword v27, v12, s[20:21]")
                else:
                    A(f"s_load_dwordx2 s[20:21], s[0:1], 72")
                    A("s_mul_i32 s38, s38, 56"); A(f"v_add_u32 v12, {(j - 9) * 21}, v12"); A("v_min_u32 v12, 55, v12"); A("v_add_u32 v12, s38, v12")
                    A("v_mul_u32_u24 v12, 896, v12"); A("s_and_b32 s39, s24, 3"); A("s_mul_i32 s39, s39, 224"); A("v_add3_u32 v12, v12, v13, s39")
                    A("s_waitcnt lgkmcnt(0)")
                    A(f"global_load_dword v27, v12, s[20:21]")
                    if j == 11:
                        A("s_mov_b32 s10, 1"); A("s_mov_b32 s11, 100")
                A(f"s_branch L_hkend{par}")
                A.label(f"L_pf{j}_n")
            A(f"s_branch L_hkend{par}")
        A.label(f"L_endh{par}")
        if par == 0:
            A("s_cmp_eq_u32 s29, 0")
            A("s_cbranch_scc1 L_switch")
        A(f"s_cbranch_vccnz L_rare{par}")
        A(f"s_branch L_one{par}")
        A.label(f"L_mask{par}")
        A.extend(cs(f"m{par}"))
        if par == 1:
            A("s_lshl_b32 s38, s37, 2")
            A("s_add_u32 s38, s38, s29")
            A("s_cmp_eq_u32 s38, 14")
            A("s_cbranch_scc1 L_getq")
            A.label("L_gotq")
        A("s_nop 7")
        emit(codepf(f"L_last{PL ^ 1}", 13, "v27", 20 + par))
        emit(mask_code(3) + smtile(par ^ 1, 0) + smtile(par ^ 1, 1))
        A(f"s_branch L_B{par}")
    def vpoll(lab, dw, test, done, va=12, vd=13):
        A.label(lab)
        A("s_mov_b32 s39, 0")
        A("s_add_u32 s20, s6, s22"); A("s_addc_u32 s21, s7, 0")
        A.label(lab + "_l")
        A(f"s_load_dword s38, s[20:21], {4*dw} glc")
        A("s_waitcnt lgkmcnt(0)")
        A(test)
        A(f"s_cbranch_scc1 {done}")
        A("s_add_u32 s39, s39, 1")
        A(f"s_cmp_gt_u32 s39, {SPINMAX}")
        A(f"s_cbranch_scc1 {done}")
        A(f"s_sleep {opt.get('sleep', 2)}")
        A(f"s_branch {lab}_l")
    A.label("L_getq")
    A("s_add_u32 s20, s6, s22"); A("s_addc_u32 s21, s7, 0")
    A("s_load_dword s38, s[20:21], 8 glc")
    A("s_waitcnt lgkmcnt(0)")
    A("s_bitcmp1_b32 s38, s27")
    A("s_cbranch_scc1 L_getq2")
    vpoll("L_getq_p", 2, "s_bitcmp1_b32 s38, s27", "L_getq2")
    A.label("L_getq2")
    A("s_mov_b32 s38, s49")
    for n in range(16):
        if n and n % 4 == 0: A("s_add_u32 s38, s38, 4096")
        A(f"buffer_load_dwordx4 {r(QR + 4 * n, 4)}, v1, s[{SWS}:{SWS+3}], s38 offen offset:{(n % 4) * 1024} sc1")
    A("s_branch L_gotq")
    A.label("L_preswitch")
    for i in range(8): A(f"v_mov_b32 v{NEGM+i}, 0")
    A("s_mov_b32 s36, 0")
    A(f"s_cmp_le_u32 s11, {JS}")
    A("s_cbranch_scc1 L_presw2")
    A("s_waitcnt vmcnt(4)")
    A("s_branch L_top0")
    A.label("L_presw2")
    A(f"s_waitcnt vmcnt({4 + min(HP[1:])})")
    A("s_branch L_top0")
    CT = 32
    def ctx(tt, ds): return CT + (tt * 8 + ds) * 4
    def pack_plain(mode):
        L = [f"v_rcp_f32 v{12+2*tt}, v{LS+4*tt}" for tt in range(2)] + [f"v_mov_b32 v{13+2*tt}, v{12+2*tt}" for tt in range(2)]
        n = 0
        for tt in range(2):
            for ds in range(8):
                dst = ctx(tt, ds) if mode == "ctx" else O(2 * ds, tt)
                for h in range(2):
                    o = O(2 * ds + h, tt)
                    for i in range(2):
                        if mode != "store": L.append(f"v_pk_mul_f32 v[{o+2*i}:{o+2*i+1}], v[{o+2*i}:{o+2*i+1}], v[{12+2*tt}:{13+2*tt}]")
                    for i in range(2):
                        L.append(f"v_cvt_pk_bf16_f32 v{dst+2*h+i}, v{o+2*i}, v{o+2*i+1}")
                if mode == "park":
                    L += [f"v_accvgpr_write_b32 a{PARK - 256 + 4 * n + i}, v{dst+i}" for i in range(4)]
                if mode == "store":
                    if n and n % 4 == 0: L.append("s_add_u32 s41, s41, 4096")
                    L.append(f"buffer_store_dwordx4 v[{dst}:{dst+3}], v1, s[{SWS}:{SWS+3}], s41 offen offset:{(n % 4) * 1024} sc1 @tag=ps")
                n += 1
        return L
    A.label("L_switch")
    if not (opt.get("qst") or opt.get("hst")): A.extend(ST.t(8))
    A("s_nop 7")
    emit(pack_plain("park") + zeroOpk + rescale(True, 1) + ["s_mov_b32 s29, s25", "s_mov_b32 s37, 0"] + (ST.t(9) if not (opt.get("qst") or opt.get("hst")) else []))
    A("s_cmp_eq_u32 s29, 1")
    A("s_cbranch_scc0 L_top1")
    A("s_branch L_last1")
    OREG = [0, 32768, 131072, 65536, 98304]
    def oregion(sb): return OREG[sb % 5]
    WOV = 31
    def w_dma(sb):
        out = []
        for p in range(8):
            out.append(f"s_add_u32 m0, s32, {oregion(sb) + p * 1024}")
            out.append(f"s_add_u32 s35, s48, {p * 7168 + sb * 128}")
            out.append(f"buffer_load_dwordx4 v{WOV}, s[{SWO}:{SWO+3}], s35 offen lds @tag=wb{sb}")
        return out
    def lastB(par, vmem):
        mm = l_mfmas(par)
        for grp in range(4): mm += pv_group(grp, grp & 1, par)
        streams = [(vmem, 0, 67)]
        for grp in range(3): streams.append((vreads(par, grp + 1, (grp + 1) & 1), 4 + 16 * grp, 4 + 16 * grp + 12))
        return sched.pack(mm, streams, [], VB)
    mix = mixv
    dm = [w_dma(sb) for sb in range(7)]
    def psrc(n):
        q_ = CT + 4 * n
        if P0 + 16 * PL <= q_ < P0 + 16 * PL + 16: return [120, 124, 16, 20][(q_ - P0 - 16 * PL) // 4]
        return q_
    pl = [f"buffer_load_dwordx4 v[108:111], v1, s[{SWS}:{SWS+3}], s42 offen sc1"]
    for n in range(16):
        if n and n % 4 == 0: pl.append("s_add_u32 s41, s41, 4096")
        pl.append(f"buffer_load_dwordx4 {r(psrc(n), 4)}, v1, s[{SWS}:{SWS+3}], s41 offen offset:{(n % 4) * 1024} sc1")
    for par in (PL ^ 1, PL):
        A.label(f"L_last{par}")
        if NA <= 18 and par != PL:
            A("s_endpgm"); continue
        A.extend(ST.t(10) + cs('last'))
        L = ["s_add_u32 s20, s6, s22", "s_addc_u32 s21, s7, 0", "s_load_dword s54, s[20:21], 12 glc"] + (tailmod.pre_setup()[0] if opt.get("fuse", 1) else []) + [
             "s_lshl_b32 s41, s24, 3", "s_add_u32 s41, s41, s27", "s_lshl_b32 s42, s41, 12", "s_lshl_b32 s38, s3, 10", "s_add_u32 s42, s42, s38",
             f"s_add_u32 s42, s42, {WS_PART + (8 << 20)}", "s_lshl_b32 s41, s41, 16", "s_lshl_b32 s38, s3, 14", "s_add_u32 s41, s41, s38",
             f"s_add_u32 s41, s41, {WS_PART}",
             "s_mul_i32 s43, s3, 7168", "s_mul_i32 s48, s24, 229376", f"s_mul_i32 s38, s3, {64 * 896}", "s_add_u32 s48, s48, s38",
             "s_lshl_b32 s51, s24, 7", "s_lshl_b32 s38, s50, 3", "s_add_u32 s51, s51, s38", "s_lshl_b32 s38, s3, 1", "s_add_u32 s51, s51, s38",
             "s_mul_i32 s51, s51, 14336", f"s_add_u32 s51, s51, {WS_Y}",
             "s_waitcnt vmcnt(0) lgkmcnt(0)", "s_barrier"] + vreads(par, 0, 0)
        stL = sched.State()
        l0 = fin(L, stL)
        A.extend(sched.texts(l0))
        if par == PL:
            A("s_cmp_eq_u32 s37, 2")
            A("s_cselect_b32 s38, s54, 0")
            A("s_bitcmp1_b32 s38, s27")
            A("s_cbranch_scc1 L_lastC")
        stN = stL.copy()
        L = lastB(par, dm[0] + dm[1])
        L += ["s_nop 5"]
        ln = fin(L, stN, l0)
        A.extend(sched.texts(ln))
        if par != PL: A("s_branch L_fin1")
    A("s_cmp_eq_u32 s37, 0")
    A("s_cbranch_scc1 L_pub")
    A("s_cmp_eq_u32 s37, 2")
    A("s_cbranch_scc1 L_late")
    A.label("L_fin1")
    st1 = stN.copy()
    emit(pack_plain("ctx"), st1, ln)
    A("s_branch L_oproj")
    A.label("L_pub")
    st0 = stN.copy()
    L = [f"v_mov_b32 v108, v{NEGM}", f"v_mov_b32 v109, v{LS}", f"v_mov_b32 v110, v{NEGM+4}", f"v_mov_b32 v111, v{LS+4}",
         f"buffer_store_dwordx4 v[108:111], v1, s[{SWS}:{SWS+3}], s42 offen sc1 @tag=ps"]
    L += pack_plain("store")
    L += [f"v_accvgpr_read_b32 v{CT+i}, a{PARK-256+i}" for i in range(64)]
    L += ["WAITVM @need=ps", "s_barrier", f"buffer_atomic_add v{AV1}, v{AVF}, s[{SWS}:{SWS+3}], s15 offen offset:12 sc1"]
    emit(L, st0, ln)
    A("s_branch L_oproj")
    cb = []
    for tt in range(2):
        nb, lb = 108 + 2 * tt, 109 + 2 * tt
        iv = 12 + 2 * tt; rh, rl = 104 + 2 * tt, 105 + 2 * tt
        cb += [f"v_sub_f32 v{rh}, v{NEGM+4*tt}, v{nb}", f"v_min_f32 v{rh}, {hex(f2u(64.0))}, v{rh}", f"v_max_f32 v{rh}, {hex(f2u(-120.0))}, v{rh}",
               f"v_cvt_i32_f32 v{rh}, v{rh}", f"v_ldexp_f32 v{rh}, 1.0, v{rh}", f"v_lshrrev_b32 v{rl}, 16, v{rh}",
               f"v_fma_f32 v{iv}, v{rh}, v{lb}, v{LS+4*tt}", f"v_rcp_f32 v{iv}, v{iv}", "s_nop 0", f"v_mov_b32 v{iv+1}, v{iv}"]
    for tt in range(2):
        iv = 12 + 2 * tt; rh, rl = 104 + 2 * tt, 105 + 2 * tt
        for ds in range(8):
            regs = [(O(2 * ds + h, tt) + 2 * i, psrc(tt * 8 + ds) + 2 * h + i, ctx(tt, ds) + 2 * h + i) for h in range(2) for i in range(2)]
            for o, p_, c_ in regs:
                cb += [f"v_dot2_f32_bf16 v{o}, v{p_}, v{rl}, v{o}", f"v_dot2_f32_bf16 v{o+1}, v{p_}, v{rh}, v{o+1}"]
            for o, p_, c_ in regs: cb.append(f"v_pk_mul_f32 v[{o}:{o+1}], v[{o}:{o+1}], v[{iv}:{iv+1}]")
            for o, p_, c_ in regs: cb.append(f"v_cvt_pk_bf16_f32 v{c_}, v{o}, v{o+1}")
    A.label("L_late")
    vpoll("L_part_p", 3, "s_bitcmp1_b32 s38, s27", "L_late2")
    A.label("L_late2")
    emit(pl + cb, sched.State())
    A("s_branch L_oproj")
    A.label("L_lastC")
    stC = stL.copy()
    L = lastB(PL, pl) + mix(cb, dm[0] + dm[1], 16)
    emit(L, stC, l0)
    A.label("L_oproj")
    st = sched.State()
    st.vm = [(set(), f"wb{sb}") for sb in range(2) for _ in range(8)]
    def ya(t, tt): return 128 + ((t >> 1) % 8) * 16 + tt * 8 + (t & 1) * 4
    def wf(n, u): return FR + (n & 1) * 32 + u * 4
    groups = [(sb, mt) for sb in range(7) for mt in range(4)]
    OD = [WD, 120, 121, 122]
    def w_reads(n):
        sb, mt = groups[n]
        return [f"ds_read_b64_tr_b16 {r(wf(n, u) + 2 * h2, 2)}, v{OD[mt]} offset:{u * 4096 + h2 * 2048}" for u in range(8) for h2 in range(2)]
    def y_drain(pair):
        out = []
        for tt in range(2):
            a0 = ya(2 * pair, tt)
            out += [f"v_cvt_pk_bf16_f32 v{a0+i}, v{a0+2*i}, v{a0+2*i+1}" for i in range(4)]
            out += [f"s_add_u32 s38, s51, {tt * 14336 + pair * 1024}\n"
                    f"buffer_store_dwordx4 v[{a0}:{a0+3}], v1, s[{SWS}:{SWS+3}], s38 offen" + opt.get("yflag", " sc1") + " @tag=ys"]
        return out
    L = ST.t(11) + cs('oproj')
    L += [f"v_xor_b32 v{OD[d]}, {d << 5}, v{WD}" for d in range(1, 4)]
    L += ["WAITVM @need=wb0", "s_barrier"] + w_reads(0)
    m = []; fixed = []; rs_ = []; vm = []
    tail = []
    barr = set()
    for n, (sb, mt) in enumerate(groups):
        for tt in range(2):
            for u in range(8):
                m.append(mfma16(ya(n, tt), wf(n, u), ctx(tt, u), "0" if u == 0 else None))
        if n + 1 < len(groups):
            sb2, m2 = groups[n + 1]
            if m2 == 0:
                fixed += [(16 * n - 1, f"WAITVM @need=wb{sb2}\ns_barrier")]; barr.add(16 * n - 1)
            if sb2 > 0:
                fixed += [(16 * n - 2, f"v_add_u32 v{OD[m2]}, {hex((oregion(sb2) - oregion(sb2 - 1)) & 0xffffffff)}, v{OD[m2]}")]
            rs_.append((w_reads(n + 1), 16 * n, 16 * n + 14))
    SC = opt.get("ysp", 9); LEAD = opt.get("olead", 70)
    drc = []
    loads = []
    for sb in range(2, 7):
        pre = []
        for x in dm[sb]:
            if x.startswith("s_"): pre.append(x)
            else:
                loads.append((0 if sb < 5 else 64 * (sb - 3) - 14, 64 * sb - 17 - LEAD, pre, x)); pre = []
    stores = []
    for p in range(14):
        yd = y_drain(p)
        for tt in range(2): stores.append((32 * p + 24 + 8 * tt + 4, p, yd[5 * tt:5 * tt + 4], yd[5 * tt + 4]))
    t_ = 2; li = 0; si = 0
    while (li < len(loads) or si < len(stores)) and t_ < 447:
        if t_ in barr or t_ + 1 in barr: t_ += 1; continue
        canl = li < len(loads) and loads[li][0] <= t_
        cans = si < len(stores) and stores[si][0] + 5 <= t_
        urgent = canl and any(t_ + SC + 4 * (k - li) > loads[k][1] for k in range(li, min(li + 16, len(loads))))
        if canl and (urgent or not cans):
            e_, d_, pre, x = loads[li]; li += 1
            fixed += [(t_ - 2 + k, y) for k, y in enumerate(pre)] + [(t_, x)]; t_ += 4
        elif cans:
            r_, p, cv, x = stores[si]; si += 1
            assert t_ < 32 * (p + 8) - 2
            fixed.append((t_, x)); drc.append((cv, max(r_, t_ - 12), t_)); t_ += SC
        else: t_ += 1
    assert li == len(loads)
    for r_, p, cv, x in stores[si:]: tail += cv + [x]
    if VB: print("oproj stores left for tail:", len(stores) - si)
    low = []
    if opt.get("fuse", 1):
        lowv = [(codepf("L_tail", 12, "v13", 30), 250, 290)]
        tld, ts1, ts2, txl = tailmod.pre_setup(opt.get('remap', 0))
        low = [(ts1, 8, 200), (ts2, 200, 400)]
        low = lowv + [(ts1, 60, 180), (ts2[:-9], 180, 392), (ts2[-9:], 392, 408)]
        vm.append((txl, 300, 380))
        fixed += [(410, "s_load_dword s36, s[20:21], 16 glc")]
    if opt.get("x_nord"): rs_ = []
    for nm in CST:
        if nm.startswith("o") and nm[1:].isdigit(): fixed += [(int(nm[1:]), x) for x in cs(nm)]
    if opt.get("x_noy"): fixed = [x for x in fixed if "buffer_store" not in x[1]]
    L += sched.pack(m, vm + rs_ + drc + low, fixed, VB)
    L += tail
    L += ST.t(12) + cs('oend')
    oo = fin(L, st)
    A.extend(sched.texts(oo))
    if opt.get("x_twice"):
        A("s_cmp_eq_u32 s2, s2") if False else None
        A("s_bitcmp1_b32 s3, 8"); A("s_cbranch_scc1 L_tw_done")
        A("s_bitset1_b32 s3, 8")
        A(f"v_subrev_u32 v{WD}, {oregion(6)}, v{WD}")
        A("s_waitcnt vmcnt(0) lgkmcnt(0)"); A("s_barrier")
        A("s_branch L_oproj")
        A.label("L_tw_done")
        A("s_bitset0_b32 s3, 8")
    tcold = None
    if opt.get("fuse", 1):
        A.label("L_tail")
        tcold = tailmod.gen_tail(A, opt, ST0, cs, rep, st, oo, SPINMAX)
    if ST.en:
        A("s_waitcnt vmcnt(0)")
        A.extend(ST.t(13) + cs('end'))
        if opt.get("dbgout") is not None:
            A("s_waitcnt lgkmcnt(0)")
            A(f"s_cmp_eq_u32 s2, {opt['dbgout']}"); A("s_cbranch_scc0 L_end")
            A("s_cmp_eq_u32 s3, 0"); A("s_cbranch_scc0 L_end")
            A("v_mov_b32 v0, 0")
            for i in range(1, 14):
                A(f"s_sub_u32 s38, s{60+2*i}, s60"); A("v_mov_b32 v1, s38"); A(f"global_store_dword v0, v1, s[4:5] offset:{4*i}")
            A("s_sub_u32 s38, s94, s88"); A("v_mov_b32 v1, s38"); A(f"global_store_dword v0, v1, s[4:5] offset:0")
        else:
            ST.write(A, 6, 0)
    A.label("L_end")
    A("s_endpgm")
    A.label("L_hook")
    A("s_mov_b32 s23, 5")
    A("s_cmp_eq_u32 s3, 0")
    A("s_cbranch_scc0 L_hook_ret")
    A("s_add_u32 s20, s4, s2")
    A("s_addc_u32 s21, s5, 0")
    A("s_mov_b32 exec_lo, 0")
    A("s_mov_b32 exec_hi, 0x80000000")
    A("v_readlane_b32 s38, v0, 63")
    A("v_readlane_b32 s30, v1, 63")
    A("v_mov_b32 v0, 0")
    A("v_mov_b32 v1, 1")
    A("global_store_byte v0, v1, s[20:21] sc1")
    A("s_nop 1")
    A("v_mov_b32 v0, s38")
    A("v_mov_b32 v1, s30")
    A("s_mov_b64 exec, -1")
    A.label("L_hook_ret")
    A("s_cmp_eq_u32 s26, 0")
    A("s_cbranch_scc1 L_loopK")
    A("s_branch L_loopV")
    for which in (0, 1):
        lab = "L_loopK" if which == 0 else "L_loopV"
        A.label(lab + "_spin")
        A("s_mov_b32 s30, 0")
        A.label(lab + "_spin_l")
        A("s_add_u32 s30, s30, 1")
        A(f"s_cmp_gt_u32 s30, {SPINMAX}")
        A(f"s_cbranch_scc1 {lab}_spun")
        A("s_sleep 1")
        A("global_load_dword v3, v6, s[4:5] sc1")
        A("s_waitcnt vmcnt(0)")
        A("v_cmp_ne_u32 vcc, 0x01010101, v3")
        A("s_nop 4")
        A(f"s_cbranch_vccnz {lab}_spin_l")
        A(f"s_branch {lab}_spun")
        A.label(lab + "_xspin")
        A("s_mov_b32 s30, 0")
        A.label(lab + "_xspin_l")
        A("s_add_u32 s30, s30, 1")
        A(f"s_cmp_gt_u32 s30, {SPINMAX}")
        A(f"s_cbranch_scc1 {lab}_xspun")
        A("s_sleep 16")
        A("s_load_dwordx4 s[52:55], s[4:5], s38 glc")
        A("s_waitcnt lgkmcnt(0)")
        A("s_and_b64 s[52:53], s[52:53], s[54:55]")
        A("s_and_b32 s52, s52, s53")
        A("s_cmp_eq_u32 s52, 0x01010101")
        A(f"s_cbranch_scc0 {lab}_xspin_l")
        A(f"s_branch {lab}_xspun")
    vpoll("L_spin1", 0, "s_cmp_ge_u32 s38, 16", "L_spun1", 8, 8)
    vpoll("L_spin2", 1, "s_cmp_ge_u32 s38, 16", "L_spun2")
    if tcold: tcold(A)
    if opt.get("report"):
        for x in rep: print("HAZ", x)
    return kernel_header(name) + A.text() + kernel_desc(name, vgpr=512, accum=256)
```

```python
import re

REG = re.compile(r"^(-|\|)?(v|a|s)(\d+|\[(\d+):(\d+)\])\|?$")
def regset(tok):
    tok = tok.strip()
    if tok in ("vcc",): return {("s", 106), ("s", 107)}
    if tok in ("exec",): return {("s", 126), ("s", 127)}
    if tok == "m0": return {("s", 124)}
    if tok.startswith("abs(") or tok.startswith("neg("): tok = tok[4:-1]
    m = REG.match(tok)
    if not m: return set()
    f = m.group(2)
    if m.group(4) is not None:
        lo, hi = int(m.group(4)), int(m.group(5))
    else:
        lo = hi = int(m.group(3))
    if f == "a": return {("v", 256 + i) for i in range(lo, hi + 1)}
    return {(f, i) for i in range(lo, hi + 1)}

TRANS = ("v_exp_f32", "v_log_f32", "v_rcp_f32", "v_rsq_f32", "v_sqrt_f32", "v_sin_f32", "v_cos_f32")
class Ins:
    __slots__ = ("text", "op", "kind", "w", "rd", "srcC", "srcAB", "tag", "need", "passes")
    def __init__(self, text):
        self.tag = None; self.need = None
        if "@" in text:
            text, ann = text.split("@", 1)
            ann = ann.strip()
            for part in ann.split():
                k_, v_ = part.split("=")
                if k_ == "tag": self.tag = v_
                if k_ == "need": self.need = v_.split(",")
        self.text = text.strip()
        t = self.text.split(";")[0].strip()
        sp = t.split(None, 1)
        self.op = sp[0] if sp else ""
        ops = [x.strip() for x in sp[1].split(",")] if len(sp) > 1 else []
        ops2 = []
        for o in ops:
            ops2.append(o.split()[0] if o and not o.startswith("hwreg") else o)
        ops = ops2
        op = self.op
        self.w = set(); self.rd = set(); self.srcC = set(); self.srcAB = set(); self.passes = 0
        R = regset
        if op.endswith(":") or op.startswith("."):
            self.kind = "label"
        elif op == "WAITVM":
            self.kind = "waitvm"
        elif op.startswith("v_mfma"):
            self.kind = "mfma"; self.w = R(ops[0]); self.srcAB = R(ops[1]) | R(ops[2]); self.srcC = R(ops[3])
            self.rd = self.srcAB | self.srcC
            self.passes = 4 if "16x16x32" in op else 8
        elif op.startswith("ds_read") or op.startswith("ds_bpermute") or op.startswith("ds_swizzle"):
            self.kind = "ds"; self.w = R(ops[0])
            for o in ops[1:]: self.rd |= R(o)
        elif op.startswith("ds_"):
            self.kind = "ds"
            for o in ops: self.rd |= R(o)
        elif op.startswith("buffer_load") or op.startswith("global_load"):
            if " lds" in t or "_lds_" in op:
                self.kind = "dma"
                for o in ops: self.rd |= R(o)
                self.rd |= R("m0")
            else:
                self.kind = "vload"; self.w = R(ops[0])
                for o in ops[1:]: self.rd |= R(o)
        elif op.startswith("buffer_store") or op.startswith("global_store"):
            self.kind = "vstore"
            for o in ops: self.rd |= R(o)
        elif op.startswith("buffer_atomic") or op.startswith("global_atomic"):
            ret = " sc0" in t
            if ret and op.startswith("global"):
                self.kind = "vload"; self.w = R(ops[0])
                for o in ops[1:]: self.rd |= R(o)
            elif ret:
                self.kind = "vload"; self.w = R(ops[0])
                for o in ops: self.rd |= R(o)
            else:
                self.kind = "vstore"
                for o in ops: self.rd |= R(o)
        elif op.startswith("buffer_wbl2") or op.startswith("buffer_inv"):
            self.kind = "vstore"
        elif op.startswith("s_waitcnt"):
            self.kind = "wait"
        elif op.startswith("s_load") or op.startswith("s_memtime") or op.startswith("s_memrealtime") or op.startswith("s_buffer_load"):
            self.kind = "smem"; self.w = R(ops[0])
            for o in ops[1:]: self.rd |= R(o)
        elif op == "s_nop":
            self.kind = "nop"
        elif op.startswith("s_cbranch") or op in ("s_branch", "s_endpgm", "s_barrier", "s_setprio", "s_sleep", "s_setpc_b64"):
            self.kind = "ctl"
            if "vcc" in op: self.rd = R("vcc")
            if "exec" in op: self.rd = R("exec")
        elif op.startswith("s_"):
            self.kind = "salu"
            if op.startswith("s_cmp") or op.startswith("s_bitcmp"):
                for o in ops: self.rd |= R(o)
            else:
                self.w = R(ops[0])
                for o in ops[1:]: self.rd |= R(o)
                if "saveexec" in op: self.w |= R("exec"); self.rd |= R("exec")
                if op in ("s_addk_i32", "s_mulk_i32"): self.rd |= self.w
        elif op.startswith("v_"):
            self.kind = "valu"
            if op.startswith("v_cmp"):
                self.w = R(ops[0])
                if op.startswith("v_cmpx"): self.w |= R("exec")
                for o in ops[1:]: self.rd |= R(o)
            elif (op.startswith("v_permlane") and "swap" in op) or op.startswith("v_swap"):
                self.w = R(ops[0]) | R(ops[1]); self.rd = set(self.w)
            elif op.startswith("v_add_co") or op.startswith("v_addc_co") or op.startswith("v_sub_co"):
                self.w = R(ops[0]) | R(ops[1])
                for o in ops[2:]: self.rd |= R(o)
            else:
                self.w = R(ops[0])
                for o in ops[1:]: self.rd |= R(o)
                if op.startswith("v_fmac") or op.startswith("v_dot2c") or op.startswith("v_writelane") or "_dpp" in op:
                    self.rd |= self.w
                if op.startswith("v_cndmask") and len(ops) == 3: self.rd |= R("vcc")
        else:
            raise ValueError("unknown instr: " + self.text)
    def states(self):
        if self.kind in ("label", "waitvm"): return 0
        if self.kind == "nop": return int(self.text.split()[1], 0) + 1
        return 1

def parse(lines):
    out = []
    for l in lines:
        for x in l.split("\n"):
            x = x.strip()
            if x and not x.startswith(";"):
                out.append(Ins(x))
    return out

def parse_wait(text):
    vm = re.search(r"vmcnt\((\d+)\)", text); lg = re.search(r"lgkmcnt\((\d+)\)", text)
    return (int(vm.group(1)) if vm else None, int(lg.group(1)) if lg else None)

class State:
    def __init__(self):
        self.lg = []
        self.vm = []
        self.sm = set()
        self.age = []
    def copy(self):
        s = State(); s.lg = list(self.lg); s.vm = list(self.vm); s.sm = set(self.sm); s.age = list(self.age); return s

COAL = 6
def insert_waits(ins, st=None):
    if st is None: st = State()
    out = []
    for x in ins:
        if x.kind == "mfma":
            st.age = [a + 1 for a in st.age]
        st.age = st.age[len(st.age) - len(st.lg):] if st.lg else []
        needlg = None; needvm = None
        touch = x.rd | x.w
        if x.kind == "waitvm":
            idx = -1
            for i, (d, tag) in enumerate(st.vm):
                if tag in x.need: idx = i
            if idx >= 0:
                n = len(st.vm) - 1 - idx
                n = min(n, 63)
                out.append(Ins(f"s_waitcnt vmcnt({n})"))
                st.vm = st.vm[len(st.vm) - n:] if n else []
            continue
        if x.kind == "wait":
            vm, lg = parse_wait(x.text)
            if vm is not None and len(st.vm) > vm: st.vm = st.vm[len(st.vm) - vm:] if vm else []
            if lg is not None:
                if len(st.lg) > lg: st.lg = st.lg[len(st.lg) - lg:] if lg else []
                if lg == 0: st.sm = set()
            out.append(x); continue
        for i, d in enumerate(st.lg):
            if d & touch: needlg = len(st.lg) - 1 - i
        smemhit = bool(st.sm & touch)
        if smemhit: needlg = 0
        for i, (d, tag) in enumerate(st.vm):
            if d & touch: needvm = len(st.vm) - 1 - i
        if needlg is not None or needvm is not None:
            t = "s_waitcnt"
            if needvm is not None:
                needvm = min(needvm, 63)
                t += f" vmcnt({needvm})"; st.vm = st.vm[len(st.vm) - needvm:] if needvm else []
            pos = len(out)
            if needlg is not None:
                young = sum(1 for a in st.age if a < COAL)
                needlg = min(needlg, 15, young) if len(st.age) == len(st.lg) else min(needlg, 15)
                keep = needlg
                if x.kind == "mfma" and needvm is None:
                    p = len(out); nds = 0
                    while p > 0 and out[p - 1].kind in ("ds", "valu", "dma", "vload", "vstore", "salu"):
                        if out[p - 1].kind == "ds": nds += 1
                        p -= 1
                    if p > 0 and out[p - 1].kind == "mfma" and needlg - nds >= 0:
                        pos = p; needlg -= nds
                t += f" lgkmcnt({needlg})"; st.lg = st.lg[len(st.lg) - keep:] if keep else []
                st.age = st.age[len(st.age) - keep:] if keep else []
                if keep == 0 and needlg == 0: st.sm = set()
            out.insert(pos, Ins(t))
        if x.kind == "ds":
            st.lg.append(set(x.w)); st.age.append(0)
        elif x.kind == "smem":
            st.sm |= set(x.w)
        elif x.kind in ("vload", "vstore", "dma"): st.vm.append((set(x.w), x.tag))
        out.append(x)
    return out

def required(p, c):
    n = 0
    isv = lambda S: {r for r in S if r[0] == "v"}
    iss = lambda S: {r for r in S if r[0] == "s"}
    if p.kind == "mfma":
        big = {4: 8, 8: 12}[p.passes]
        if c.kind == "mfma":
            if p.w & c.srcAB: n = max(n, big)
            if p.w & c.srcC and not (p.w == c.srcC and p.passes == c.passes): n = max(n, big - 2)
            if p.w & c.w and not (p.w == c.srcC and p.passes == c.passes): n = max(n, big - 2)
        elif c.kind in ("valu", "ds", "vload", "vstore", "dma"):
            if p.w & (c.rd | c.w): n = max(n, big)
        if c.kind == "valu" and p.srcC & c.w: n = max(n, {4: 3, 8: 7}[p.passes])
    if p.kind == "valu":
        if c.kind == "mfma" and isv(p.w) & c.rd: n = max(n, 2)
        if c.kind == "mfma" and ("s", 126) in p.w: n = max(n, 4)
        if c.kind == "valu":
            if p.op.replace("_e32", "").replace("_e64", "") in TRANS and p.w & c.rd: n = max(n, 1)
            if c.op.startswith("v_permlane") and isv(p.w) & c.rd: n = max(n, 2)
            if (c.op.startswith("v_readlane") or c.op.startswith("v_readfirstlane")) and isv(p.w) & c.rd: n = max(n, 1)
            if "_dpp" in c.op and isv(p.w) & c.rd: n = max(n, 2)
            if "_dpp" in c.op and ("s", 126) in p.w: n = max(n, 5)
            if iss(p.w) & c.rd: n = max(n, 4 if c.op.startswith("v_readlane") or c.op.startswith("v_writelane") else 2)
            if p.op.startswith("v_dot2") and p.w & (c.rd | c.w) and not (c.op == p.op): n = max(n, 3)
            if p.op.startswith("v_dot2") and c.op == p.op and p.w & c.rd:
                n = max(n, 3)
                toks = [t.strip().split()[0] for t in c.text.split(None, 1)[1].split(",")]
                ab = regset(toks[1]) | regset(toks[2])
                if not (p.w & ab): n = 0 if n == 3 else n
            if "_sdwa" in p.op and p.w & (c.rd | c.w): n = max(n, 1)
        if p.op.startswith("v_dot2") and c.kind in ("ds", "vload", "vstore", "mfma") and p.w & (c.rd | c.w): n = max(n, 3)
        if c.kind in ("vload", "vstore", "dma") and iss(p.w) & c.rd: n = max(n, 5)
        if c.kind == "ctl" and iss(p.w) & c.rd: n = max(n, 5 if False else 0)
    if p.kind == "salu":
        if ("s", 124) in p.w and c.kind == "dma": n = max(n, 1)
    if p.kind == "vstore" and ("x4" in p.op or "x3" in p.op):
        if isv(p.rd) & c.w and c.kind in ("valu", "mfma", "ds", "vload"): n = max(n, 2)
    return n

def pad_hazards(ins, prev=None, report=None):
    hist = list(prev or [])[-24:]
    out = []
    for x in ins:
        if x.kind not in ("label", "waitvm"):
            need = 0; d = 0
            for p in reversed(hist):
                rq = required(p, x)
                if rq - d > need: need = rq - d; why = p
                d += p.states()
                if d >= 20: break
            if need > 0:
                if report is not None: report.append((need, why.text, x.text))
                while need > 0:
                    k = min(need, 16)
                    nop = Ins(f"s_nop {k - 1}")
                    out.append(nop); hist.append(nop); need -= k
        out.append(x); hist.append(x)
        if len(hist) > 48: hist = hist[-24:]
    return out

def finish(lines, st=None, prev=None, report=None):
    ins = parse(lines)
    ins = insert_waits(ins, st)
    ins = pad_hazards(ins, prev, report)
    return ins

def finish_loop(body, st, prev=None, report=None):
    ins = parse(body)
    s1 = st.copy()
    first = insert_waits(ins, s1)
    s2 = s1.copy()
    second = insert_waits(parse(body), s2)
    s3 = st.copy()
    chk = insert_waits(parse([x.text + (f" @tag={x.tag}" if x.tag else "") for x in second]), s3)
    s4 = s3.copy()
    chk2 = insert_waits(parse([x.text + (f" @tag={x.tag}" if x.tag else "") for x in chk]), s4)
    assert len(chk2) == len(chk)
    res = chk
    a = pad_hazards(res, prev, report)
    b = pad_hazards(a, a, report)
    st.lg = s4.lg; st.vm = s4.vm; st.sm = s4.sm; st.age = s4.age
    return b

def texts(ins):
    return [x.text for x in ins]


def vcost(text):
    op = text.split()[0]
    if op.startswith("s_") or op == "WAITVM" or op.endswith(":"): return (1, 0, 0)
    if op.startswith("ds_"): return (0, 1, 1)
    if op.startswith("buffer_") or op.startswith("global_"): return (0, 2, 1)
    if op.replace("_e32", "").replace("_e64", "") in TRANS: return (0, 2, 2)
    return (0, 1, 2)

STCOST = 8
def gcost(item):
    sc = vc = 0; cl = None
    for x in item.split("\n"):
        a_, b_, c_ = vcost(x)
        if x.endswith(":"): a_ = 0
        sc += a_; vc += b_
        if cl is None: cl = c_
    return sc, vc, cl

def pack(mfmas, streams, fixed=None, verbose=False, slack=8):
    n = len(mfmas)
    gaps = [[] for _ in range(n + 1)]
    used = [[0, 0] for _ in range(n + 1)]
    busy = [0] * (n + 40)
    def pathcost(it):
        c = 0
        for x in it.split("\n"):
            if x.startswith("buffer_store_dwordx4"): c += STCOST
            elif x.startswith("buffer_atomic") or x.startswith("buffer_load_dwordx2"): c += 2
            elif x.startswith("buffer_") or x.startswith("global_"): c += 4
        return c
    def put(g, it):
        sc, vc, cl = gcost(it)
        gaps[g + 1].append(it); used[g + 1][0] += sc; used[g + 1][1] += vc
        for k in range(pathcost(it)): busy[max(g, 0) + k] += 1
    for g, t in (fixed or []): put(g, t)
    over = 0
    for items, g0, g1 in streams:
        g1 = min(g1, n)
        wt = [max(gcost(x)[1], 0.25) for x in items]
        tot = sum(wt); acc = 0.0
        lastg = g0 - 1; lastcl = -1
        for x, w_ in zip(items, wt):
            sc, vc, cl = gcost(x)
            want = g0 + int(acc / tot * (g1 - g0))
            acc += w_
            lo = max(lastg if cl >= lastcl else lastg + 1, want, g0)
            lo = min(lo, g1 - 1)
            if lo == lastg and cl < lastcl:
                gl = gaps[lastg + 1]
                idx = max(i for i, y in enumerate(gl) if y is lastit)
                gl[idx] = gl[idx] + "\n" + x; lastit = gl[idx]
                used[lastg + 1][0] += sc; used[lastg + 1][1] += vc; over += 1
                continue
            pc = pathcost(x)
            hi = min(max(lo, want + (slack if not pc else 3 * slack)), g1 - 1)
            best = None
            for g in range(lo, hi + 1):
                u = used[g + 1]
                if vc: ok = (u[1] + vc <= 2) and (u[0] + sc + u[1] + vc <= 3)
                else: ok = (u[0] + sc + u[1] <= 2) or (u[0] == 0 and sc == 1)
                if ok and pc and any(busy[g + k] for k in range(pc)): ok = False
                if ok: best = g; break
            if best is None:
                hi = min(max(lo, want + slack), g1 - 1)
                best = min(range(lo, hi + 1), key=lambda g: (sum(busy[g + k] for k in range(pc)) * 2 + used[g + 1][0] + used[g + 1][1], g))
                over += 1
            put(best, x)
            lastit = x; lastg = best; lastcl = cl
    out = []
    for it in gaps[0]: out += it.split("\n")
    est = 0
    for i, m in enumerate(mfmas):
        out.append(m)
        for it in sorted(gaps[i + 1], key=lambda x: gcost(x)[2]): out += it.split("\n")
        u = used[i + 1]
        est += max(0, max(u[1] - 2, u[0] + u[1] - 3)) * 4
    if verbose: print(f"pack: n={n} overflow {over} est extra clk {est} path overlap {sum(max(0, b - 1) for b in busy)} path used {sum(busy)}")
    return out
```

```python
from common import *
import sched, math, struct
def f2u(x): return struct.unpack("<I", struct.pack("<f", x))[0]
OOB = 0x70000000

def mixv(valu, vm, every, start=0):
    out = []; k = 0; groups = []; cur = []
    for x in vm:
        cur.append(x)
        if "buffer_" in x: groups.append(cur); cur = []
    if cur: groups[-1] += cur
    for i, x in enumerate(valu):
        out.append(x)
        if i >= start and (i - start) % every == every - 1 and k < len(groups): out += groups[k]; k += 1
    for g in groups[k:]: out += g
    return out

SO = 16; SW13 = 8; SW2 = 12; SXO = 52; SOUT = 56
WV, WD, VF, ONE = 2, 9, 10, 11
W2V, W2D = 16, 23
REG = [65536, 98304, 0, 32768, 131072]
STATS = 28672
def region(sb): return REG[sb % 5]
def w_dma(sb):
    out = []
    for p in range(7):
        if p % 4 == 0:
            out.append(f"s_add_u32 m0, s43, {region(sb) + p * 1024}")
            out.append(f"s_add_u32 s35, s49, {sb * 64 * 3584}")
        out.append(f"buffer_load_dwordx4 v{WV+p}, s[{SW13}:{SW13+3}], s35 offen offset:{(p % 4) * 1024} lds @tag=fb{sb}")
    return out

def pre_setup(remap=1):
    ld = ["s_load_dwordx2 s[8:9], s[0:1], 56", "s_load_dwordx2 s[100:101], s[0:1], 64", "s_load_dwordx2 s[12:13], s[0:1], 72",
          "s_load_dwordx2 s[56:57], s[0:1], 80", "s_load_dwordx2 s[52:53], s[0:1], 0"]
    L = []; F = L.append
    if remap:
        F("s_and_b32 s30, s24, 12"); F("s_and_b32 s39, s24, 1"); F("s_lshl_b32 s39, s39, 1"); F("s_or_b32 s30, s30, s39")
        F("s_and_b32 s39, s50, 1"); F("s_or_b32 s30, s30, s39")
        F("s_and_b32 s31, s50, 8"); F("s_and_b32 s39, s24, 2"); F("s_lshl_b32 s39, s39, 1"); F("s_or_b32 s31, s31, s39")
        F("s_bfe_u32 s39, s50, 0x20001"); F("s_or_b32 s31, s31, s39")
    else:
        F("s_mov_b32 s30, s24"); F("s_mov_b32 s31, s50")
    L += ["s_cmp_lt_u32 s3, 2\ns_cselect_b32 s8, s8, s100\ns_cselect_b32 s9, s9, s101"]
    for d, nb in ((SXO, 2048 * 448 * 2), (SW13, 448 * 1792 * 2), (SW2, 448 * 1792 * 2), (SOUT, 2048 * 448 * 2)):
        L += [f"s_and_b32 s{d+1}, s{d+1}, 0xffff", f"s_mov_b32 s{d+2}, {nb}", f"s_mov_b32 s{d+3}, 0x00020000"]
    F("s_lshl_b32 s25, s31, 3"); F("s_lshr_b32 s39, s30, 1"); F("s_add_u32 s25, s25, s39")
    F("s_and_b32 s26, s30, 1")
    F("v_and_b32 v14, 7, v0"); F("v_bfe_u32 v15, v0, 3, 2"); F("v_lshrrev_b32 v26, 5, v0")
    F("s_lshl_b32 s39, s25, 4"); F("s_lshl_b32 s37, s26, 3"); F("s_add_u32 s39, s39, s37")
    F("v_add_u32 v106, s39, v14"); F("v_mul_u32_u24 v106, 896, v106"); F("v_lshl_add_u32 v106, v15, 3, v106"); F("v_lshl_add_u32 v106, v26, 5, v106")
    F("s_lshl_b32 s37, s3, 6"); F("v_add_u32 v106, s37, v106")
    F(f"s_cmp_lt_u32 s3, 2\ns_cselect_b32 s28, 0, {OOB}\ns_cselect_b32 s29, 1.0, 0")
    n1 = len(L)
    F("s_mul_i32 s27, s25, 14336"); F("s_lshl_b32 s39, s26, 7"); F("s_add_u32 s27, s27, s39"); F("s_lshl_b32 s39, s3, 10"); F("s_add_u32 s27, s27, s39")
    F(f"s_add_u32 s27, s27, {WS_Y}")
    F("v_lshlrev_b32 v27, 4, v14"); F("v_lshl_add_u32 v27, v15, 8, v27")
    F("s_mov_b32 s39, 1835008"); F("v_mad_u32_u24 v104, v26, s39, v27")
    F(f"s_mov_b32 s37, {WS_HN - WS_H}"); F("v_sub_u32 v105, 1, v26"); F("v_mad_u32_u24 v105, v105, s37, v27")
    F("v_lshlrev_b32 v107, 4, v14"); F(f"v_add_u32 v107, {STATS}, v107")
    F("s_lshl_b32 s39, s3, 2"); F("v_add_u32 v108, s39, v107")
    F("s_mov_b32 s33, 0x00003f80"); F("s_mov_b32 s34, 0x3f800000")
    F("v_and_b32 v14, 0x40000000, v25"); F(f"v_lshl_add_u32 v{VF}, v0, 12, v14"); F("s_lshl_b32 s39, 1, s24"); F(f"v_mov_b32 v{ONE}, s39")
    F("s_lshl_b32 s39, s3, 2"); F("s_lshl_b32 s41, 15, s39")
    F("s_mov_b32 s37, 0x12492493"); F("s_and_b32 s39, s30, 1"); F("s_lshl_b32 s39, s39, 1")
    for p in range(7):
        L += [f"v_add_u32 v14, {p * 64}, v0", "v_mul_hi_u32 v15, v14, s37", "v_mul_u32_u24 v26, 14, v15", "v_sub_u32 v14, v14, v26",
              "v_add_u32 v14, s39, v14", "v_subrev_u32 v26, 14, v14", "v_min_u32 v14, v14, v26",
              "v_mul_u32_u24 v15, 3584, v15", "v_lshl_add_u32 v14, v14, 4, v15", f"v_subrev_u32 v{WV+p}, {(p % 4) * 1024}, v14"]
    L += ["s_and_b32 s39, s3, 1", f"s_mul_i32 s49, s39, {32 * 3584}", "s_mul_i32 s39, s30, 224", "s_add_u32 s49, s49, s39"]
    L += ["v_lshrrev_b32 v14, 2, v0", "v_mul_u32_u24 v14, 224, v14", "v_and_b32 v15, 3, v0", f"v_lshl_add_u32 v14, v15, 3, v14",
          f"v_add_u32 v{WD}, {region(0)}, v14", f"v_add_u32 v{W2D}, s43, v14", f"v_add_u32 v{W2D+1}, 0x10000, v{W2D}", f"v_add_u32 v{W2D+2}, 0x20000, v{W2D}"]
    L += [f"v_mov_b32 v{W2V+p}, v{112+p}" for p in range(7)]
    L += ["s_lshl_b32 s23, s50, 8", f"s_add_u32 s23, s23, {WS_FLAG}", f"s_lshl_b32 s22, s30, 4\ns_add_u32 s22, s22, s31\ns_lshl_b32 s22, s22, 8", f"s_add_u32 s22, s22, {WS_FLAG}", "s_add_u32 s20, s6, s22\ns_addc_u32 s21, s7, 0"]
    L += ["s_and_b32 s39, s30, 3", "s_mul_i32 s39, s39, 224", f"s_mul_i32 s42, s3, {14 * 32 * 896}", "s_add_u32 s42, s42, s39"]
    xl = [f"buffer_load_dwordx2 v[{96+2*q}:{97+2*q}], v106, s[{SXO}:{SXO+3}], {'s28' if q == 3 else '0'} offen offset:{q*256}" for q in range(4)]
    return ld, L[:n1], L[n1:], xl

def gen_tail(A, opt, ST, cs, rep, st, prev, SPINMAX):
    VB = opt.get("verbose")
    T = (lambda i: ST.t(i) + cs(f"T{i}")) if opt.get("tst") else (lambda i: cs(f"T{i}"))
    spins = []
    def poll(dw, n):
        spins.append((dw, n))
        return [f"s_load_dword s38, s[20:21], {16+4*dw} glc", "s_waitcnt lgkmcnt(0)", "s_andn2_b32 s38, s41, s38", f"s_cbranch_scc1 L_tspin{n}", f"L_tspun{n}:"]
    def sig(dw): return f"buffer_atomic_add v{ONE}, v{VF}, s[{SO}:{SO+3}], s23 offen offset:{16+4*dw} sc1"
    USLOT = [3, 4, 2, 3, 4, 2, 3, 4, 0, 1, 2, 3, 4, 0]
    quads = [256 + 176 + 4 * i for i in range(20)] + [152 + 4 * i for i in range(26)]
    def w2f(u, mt):
        if u < 6: return quads[u * 7 + mt]
        if u < 9: return 256 + (u - 6) * 28 + mt * 4
        return quads[(u - 9) * 7 + mt]
    def w2_dma(u):
        out = []
        for p in range(7):
            if p % 4 == 0:
                out.append(f"s_add_u32 m0, s43, {REG[USLOT[u]] + p * 1024}")
                out.append(f"s_add_u32 s35, s42, {u * 32 * 896}")
            out.append(f"buffer_load_dwordx4 v{W2V+p}, s[{SW2}:{SW2+3}], s35 offen offset:{(p % 4) * 1024} lds @tag=wu{u}")
        return out
    def w2_reads(u):
        a_ = REG[USLOT[u]]; b = W2D + (a_ >> 16); o = a_ & 0xffff
        return [f"ds_read_b64_tr_b16 {r(w2f(u, mt) + 2 * h2, 2)}, v{b} offset:{o + h2 * 16 * 224 + mt * 32}" for mt in range(7) for h2 in range(2)]
    def rd_only(u): return [f"WAITVM @need=wu{u}"] + w2_reads(u)
    L = []; E = L.append
    YB = 128; AC = 32
    def yissue(n, chk=True):
        o = ([f"s_cmp_lg_u32 s37, 0\ns_cbranch_scc0 L_ypoll{n}\nL_ygot{n}:"] if chk else []) + ["s_ff1_i32_b32 s36, s37", "s_bitset0_b32 s37, s36", "s_bitset0_b32 s51, s36",
             "s_mul_i32 s36, s36, 1835008", "s_add_u32 s36, s36, s27"]
        for q in range(4):
            y = YB + (n * 4 + q) * 4
            if q == 3: o.append(f"s_add_u32 s36, s36, s28")
            o.append(f"s_add_u32 s38, s36, {q * 4096}")
            o.append(f"buffer_load_dwordx4 v[{y}:{y+3}], v104, s[{SO}:{SO+3}], s38 offen sc1" + opt.get("ylflag", ""))
        return o
    def yacc(k):
        o = []
        for q in range(4):
            for d in range(4):
                y = YB + (k * 4 + q) * 4 + d; a_ = AC + q * 8 + 2 * d
                if k == 0: o += [f"v_lshlrev_b32 v{a_}, 16, v{y}", f"v_and_b32 v{a_+1}, 0xffff0000, v{y}"]
                else: o += [f"v_dot2_f32_bf16 v{a_}, v{y}, s33, v{a_}", f"v_dot2_f32_bf16 v{a_+1}, v{y}, s34, v{a_+1}"]
        return o
    LAG = opt.get("ylag", 4)
    untag = lambda lst: [x.split(" @")[0] for x in lst]
    NX = 3
    H = ["s_mov_b32 s51, 0x5555", "s_lshr_b32 s37, s36, 1", "s_and_b32 s37, s37, s36", "s_and_b32 s37, s37, s51", "s_bcnt1_i32_b32 s38, s37",
         f"s_cmp_ge_u32 s38, {NX}", "s_cselect_b32 s40, 1, 0"]
    h = sched.finish(H, st, prev, rep); A.extend(sched.texts(h))
    A("s_cbranch_scc1 L_tfast" if opt.get("two", 1) else "s_mov_b32 s40, 0")
    stx = st.copy()
    X = sum((yissue(n, False) for n in range(NX)), []) + ["WAITVM @need=ys", "s_barrier", sig(0)] + T(1)
    xcode = sched.texts(sched.finish(X, stx, h, rep))
    L += w_dma(0) + ["WAITVM @need=ys", "s_barrier", sig(0)] + T(1)
    for n in range(NX): L += yissue(n)
    L += ["L_tjoin:"]
    for n in range(NX, 8):
        L += yissue(n)
        if n >= LAG - 1 and n < 7: L += yacc(n - LAG + 1)
    L += T(2)
    E(f"s_sub_u32 s27, s27, {WS_Y}")
    L += ["s_mov_b32 s24, s30", "s_mov_b32 s50, s31", "s_lshl_b32 s23, s50, 8", f"s_add_u32 s23, s23, {WS_FLAG}", "s_lshl_b32 s38, 1, s24", f"v_mov_b32 v{ONE}, s38"]
    E("s_cmp_eq_u32 s40, 1\ns_cbranch_scc1 L_tfb0\nL_tfb0r:")
    rest = sum((yacc(k) for k in range(8 - LAG, 8)), [])
    L += mixv(rest, w_dma(1), 15)
    prev = None
    L += T(3)
    V = []; E = V.append
    R = 64; U = 112
    for q in range(4):
        for j in range(4): E(f"v_permlane32_swap_b32 v{AC+q*8+j}, v{AC+q*8+4+j}")
    for q in range(4):
        for j in range(2): E(f"v_pk_add_f32 v[{R+4*q+2*j}:{R+4*q+2*j+1}], v[{AC+q*8+2*j}:{AC+q*8+2*j+1}], v[{AC+q*8+4+2*j}:{AC+q*8+4+2*j+1}]")
    for d in range(8): E(f"v_cvt_pk_bf16_f32 v{32+d}, v{R+2*d}, v{R+2*d+1}")
    for d in range(8):
        E(f"v_lshlrev_b32 v{R+2*d}, 16, v{96+d}"); E(f"v_and_b32 v{R+2*d+1}, 0xffff0000, v{96+d}")
    for d in range(8):
        E(f"v_dot2_f32_bf16 v{R+2*d}, v{32+d}, s33, v{R+2*d}"); E(f"v_dot2_f32_bf16 v{R+2*d+1}, v{32+d}, s34, v{R+2*d+1}")
    def hreg(d): return 80 + 4 * (d >> 1) + 2 + (d & 1)
    def nreg(d): return 80 + 4 * (d >> 1) + (d & 1)
    for d in range(8): E(f"v_cvt_pk_bf16_f32 v{hreg(d)}, v{R+2*d}, v{R+2*d+1}")
    for d in range(8):
        E(f"v_lshlrev_b32 v{R+2*d}, 16, v{hreg(d)}"); E(f"v_and_b32 v{R+2*d+1}, 0xffff0000, v{hreg(d)}")
    def cross(x, off):
        E(f"v_add_f32_dpp v{x}, v{x}, v{x} row_ror:8 row_mask:0xf bank_mask:0xf")
        for sw in ("v_permlane16_swap_b32", "v_permlane32_swap_b32"):
            E(f"v_mov_b32 v12, v{x}"); E(f"{sw} v{x}, v12"); E(f"v_add_f32 v{x}, v{x}, v12")
        E(f"ds_write_b32 v108, v{x} offset:{off}")
        E("s_waitcnt lgkmcnt(0)"); E("s_barrier")
        E(f"ds_read_b128 v[12:15], v107 offset:{off}")
        E("v_pk_add_f32 v[12:13], v[12:13], v[14:15]")
        E(f"v_add_f32 v{x}, v12, v13")
    E(f"v_pk_add_f32 v[32:33], v[{R}:{R+1}], v[{R+2}:{R+3}]")
    for d in range(2, 8): E(f"v_pk_add_f32 v[32:33], v[32:33], v[{R+2*d}:{R+2*d+1}]")
    E("v_add_f32 v32, v32, v33")
    cross(32, 0)
    E(f"v_mul_f32 v32, {hex(f2u(-1.0/448))}, v32"); E("v_mov_b32 v33, v32")
    E("v_mul_f32 v34, s29, v32"); E("v_mov_b32 v35, v34")
    for d in range(8):
        m_ = 32 if d < 6 else 34
        E(f"v_pk_add_f32 v[{R+2*d}:{R+2*d+1}], v[{R+2*d}:{R+2*d+1}], v[{m_}:{m_+1}]")
    E(f"v_pk_mul_f32 v[36:37], v[{R}:{R+1}], v[{R}:{R+1}]")
    for d in range(1, 8): E(f"v_pk_fma_f32 v[36:37], v[{R+2*d}:{R+2*d+1}], v[{R+2*d}:{R+2*d+1}], v[36:37]")
    E("v_add_f32 v36, v36, v37")
    cross(36, 256)
    E(f"v_mov_b32 v37, {hex(f2u(1e-5))}"); E(f"v_fmac_f32 v37, {hex(f2u(1.0/448))}, v36"); E("v_rsq_f32 v36, v37"); E("v_mov_b32 v37, v36")
    for d in range(8): E(f"v_pk_mul_f32 v[{R+2*d}:{R+2*d+1}], v[{R+2*d}:{R+2*d+1}], v[36:37]")
    for d in range(8): E(f"v_cvt_pk_bf16_f32 v{nreg(d)}, v{R+2*d}, v{R+2*d+1}")
    E(f"s_add_u32 s36, s27, {WS_H}")
    for q in range(4):
        for j in range(2): E(f"v_permlane32_swap_b32 v{80+4*q+j}, v{80+4*q+2+j}")
    L += mixv(V, w2_dma(0) + w2_dma(1)[:6], 15)
    E = L.append
    for q in range(4):
        if q == 3: E("s_add_u32 s36, s36, s28")
        E(f"s_add_u32 s38, s36, {q * 4096}")
        E(f"buffer_store_dwordx4 v[{80+4*q}:{83+4*q}], v105, s[{SO}:{SO+3}], s38 offen sc1 @tag=hs")
    L += w2_dma(1)[6:] + w2_dma(2)
    L += ["s_lshl_b32 s25, s50, 3", "s_lshl_b32 s38, s3, 1", "s_add_u32 s25, s25, s38",
          "s_mul_i32 s36, s25, 14336", f"s_add_u32 s36, s36, {WS_HN}",
          "s_lshr_b32 s37, s25, 1", f"s_mul_i32 s37, s37, {8 * 14336}", "s_lshr_b32 s38, s24, 1", "s_mul_i32 s38, s38, 14336", "s_add_u32 s37, s37, s38",
          f"s_add_u32 s37, s37, {WS_H1}", "s_and_b32 s38, s24, 1", "s_lshl_b32 s39, s38, 13", "s_add_u32 s26, s37, s39",
          "s_lshl_b32 s38, s38, 10", "s_add_u32 s27, s37, s38", "s_add_u32 s27, s27, 6144",
          "s_and_b32 s28, s24, 3", "s_lshr_b32 s29, s24, 2", "s_lshl_b32 s38, s50, 2", "s_add_u32 s29, s29, s38",
          f"s_mul_i32 s34, s29, {8 * 14336}", f"s_mul_i32 s38, s3, {2 * 14336}", "s_add_u32 s34, s34, s38", f"s_add_u32 s34, s34, {WS_H1}"]
    L += ["WAITVM @need=hs", "s_barrier", sig(1)]
    L += T(4)
    L += rd_only(0) + rd_only(1) + ["s_waitcnt lgkmcnt(0)"] + w2_dma(3) + w2_dma(4) + rd_only(2)
    XH = 256 + 64
    def xh(tt, ks): return XH + (tt * 14 + ks) * 4
    def xload(ks): return [f"s_add_u32 s38, s36, {tt * 14336 + ks * 1024}\nbuffer_load_dwordx4 {r(xh(tt, ks), 4)}, v1, s[{SO}:{SO+3}], s38 offen sc1" for tt in range(2)]
    def ac(mat, ft, tt): return 32 + ((mat * 7 + ft) * 2 + tt) * 4
    def wf(n, u): return 256 + (n & 3) * 16 + u * 4
    groups = [(sb, ft) for sb in range(7) for ft in range(7)]
    def w_pre(n):
        sb, ft = groups[n]
        if ft or sb == 0: return []
        pre = [f"WAITVM @need=fb{sb}\ns_barrier"] if sb >= 2 else []
        return pre + [f"v_add_u32 v{WD}, {hex((region(sb) - region(sb - 1)) & 0xffffffff)}, v{WD}"]
    def w_reads(n):
        sb, ft = groups[n]
        return [f"ds_read_b64_tr_b16 {r(wf(n, u) + 2 * h2, 2)}, v{WD} offset:{u * 7168 + h2 * 16 * 224 + ft * 32}" for u in range(4) for h2 in range(2)]
    L += w_reads(0) + w_reads(1)
    L += poll(1, 1)
    L += T(5)
    for ks in range(4): L += xload(ks)
    L += w_dma(2) + rd_only(3) + rd_only(4) + ["s_waitcnt lgkmcnt(0)"]
    NL2E = hex(f2u(-math.log2(math.e)))
    def epi(ft, pk):
        out = []
        for tt in range(2):
            g = ac(0, ft, tt); u = ac(1, ft, tt); t = 144 + tt * 4
            d = ac(0, ft & ~1, tt) + 2 * (ft & 1) if ft < 6 else 28 + 2 * tt
            if pk: out += [f"v_pk_mul_f32 v[{t+2*i}:{t+2*i+1}], v[{g+2*i}:{g+2*i+1}], s[30:31]" for i in range(2)]
            else: out += [f"v_mul_f32 v{t+i}, s30, v{g+i}" for i in range(4)]
            out += [f"v_exp_f32 v{t+i}, v{t+i}" for i in range(4)]
            if pk:
                out += [f"v_pk_mul_f32 v[{u+2*i}:{u+2*i+1}], v[{g+2*i}:{g+2*i+1}], v[{u+2*i}:{u+2*i+1}]" for i in range(2)]
                out += [f"v_pk_add_f32 v[{t+2*i}:{t+2*i+1}], v[{t+2*i}:{t+2*i+1}], 1.0 op_sel_hi:[1,0]" for i in range(2)]
            else:
                out += [f"v_mul_f32 v{u+i}, v{g+i}, v{u+i}" for i in range(4)]
                out += [f"v_add_f32 v{t+i}, 1.0, v{t+i}" for i in range(4)]
            out += [f"v_rcp_f32 v{t+i}, v{t+i}" for i in range(4)]
            if pk: out += [f"v_pk_mul_f32 v[{u+2*i}:{u+2*i+1}], v[{u+2*i}:{u+2*i+1}], v[{t+2*i}:{t+2*i+1}]" for i in range(2)]
            else: out += [f"v_mul_f32 v{u+i}, v{u+i}, v{t+i}" for i in range(4)]
            out += [f"v_cvt_pk_bf16_f32 v{d}, v{u}, v{u+1}", f"v_cvt_pk_bf16_f32 v{d+1}, v{u+2}, v{u+3}"]
            if ft < 6 and ft & 1:
                j = (ft >> 1) * 2 + tt; d0 = ac(0, ft - 1, tt)
                out.append(f"s_add_u32 s38, s26, {j * 1024}\nbuffer_store_dwordx4 v[{d0}:{d0+3}], v1, s[{SO}:{SO+3}], s38 offen sc1 @tag=h1s")
        if ft == 6: out.append(f"buffer_store_dwordx4 v[28:31], v1, s[{SO}:{SO+3}], s27 offen sc1 @tag=h1s")
        return out
    m = []; fixed = []; rs_ = []
    for n, (sb, ft) in enumerate(groups):
        for mat in range(2):
            for tt in range(2):
                for k in range(2):
                    m.append(mfma16(ac(mat, ft, tt), wf(n, mat * 2 + k), xh(tt, 2 * sb + k), "0" if (sb == 0 and k == 0) else None))
        if n + 2 < len(groups):
            fixed += [(8 * n - 1, x) for x in w_pre(n + 2)]
            rs_.append((w_reads(n + 2), 8 * n, 8 * n + 7))
    fixed += [(2, f"s_mov_b32 s30, {NL2E}"), (3, f"s_mov_b32 s31, {NL2E}")]
    for nm in opt.get("cst", []):
        if nm.startswith("u") and nm[1:].isdigit(): fixed += [(int(nm[1:]), x) for x in cs(nm)]
    xs = lambda a_, b_: sum((xload(ks) for ks in range(a_, b_)), [])
    vm = [(xs(4, 6) + w_dma(3) + xs(6, 8) + w_dma(4) + xs(8, 10), 0, 110), (w_dma(5) + xs(10, 12), 112, 160), (w_dma(6) + xs(12, 14), 168, 216),
          (w2_dma(5), 224, 262), (w2_dma(6), 280, 318), (w2_dma(7), 336, 374)]
    L += sched.pack(m, vm + rs_ + [(epi(0, False)[:34], 336 + 11, 392)], fixed, VB)
    L += T(6)
    e = epi(0, False)[34:]
    for ft in range(1, 7): e += epi(ft, True)
    L += ["s_barrier"]
    L += mixv(e, w2_dma(8) + w2_dma(9), 16)
    L += T(7)
    L += rd_only(5) + rd_only(6) + rd_only(7)
    L += ["s_and_b32 s25, s3, 1", "s_lshr_b32 s26, s3, 1", "s_mul_i32 s38, s28, 7", "s_add_u32 s26, s26, s38",
          "s_lshl_b32 s27, s29, 1", "s_add_u32 s27, s27, s25",
          "s_mul_i32 s36, s27, 14336", f"s_add_u32 s36, s36, {WS_H}", "s_lshr_b32 s38, s26, 1", "s_lshl_b32 s38, s38, 10", "s_add_u32 s36, s36, s38",
          "s_and_b32 s38, s26, 1", "s_lshl_b32 s38, s38, 3", "s_add_u32 s36, s36, s38",
          "s_lshl_b32 s27, s27, 4", "v_and_b32 v12, 15, v0", "v_add_u32 v12, s27, v12", "v_mul_u32_u24 v12, 896, v12",
          "v_lshrrev_b32 v13, 4, v0", "v_lshl_add_u32 v12, v13, 3, v12", "s_lshl_b32 s38, s26, 5", "v_add_u32 v12, s38, v12"]
    L += ["s_waitcnt lgkmcnt(0)"] + w2_dma(10)
    L += ["WAITVM @need=h1s", "s_barrier", sig(2)]
    L += T(8)
    L += rd_only(8) + w2_dma(11) + w2_dma(12) + ["s_waitcnt lgkmcnt(0)"] + w2_dma(13)
    L += [f"buffer_load_dwordx2 v[{2+2*k}:{3+2*k}], v1, s[{SO}:{SO+3}], s36 offen offset:{k*1024} sc1" for k in range(4)]
    L += poll(2, 2)
    L += T(9)
    hq = {}
    av = [256 + 84 + 4 * i for i in range(23)] + [104]
    vv = [88, 92, 96, 100]
    for u in range(14):
        for tt in range(2): hq[u, tt] = vv.pop(0) if u in (3, 10) else av.pop(0)
    def hload(u):
        return [f"s_add_u32 s38, s34, {(u * 2 + tt) * 1024}\nbuffer_load_dwordx4 {r(hq[u, tt], 4)}, v1, s[{SO}:{SO+3}], s38 offen sc1" for tt in range(2)]
    NH = opt.get("t3h", 6)
    for u in range(NH): L += hload(u)
    def a3(mt, tt): return 32 + (mt * 2 + tt) * 4
    m = []; fixed = []; rs_ = []
    for u in range(11):
        if u in (3, 10):
            fixed += [(14 * u - 3, f"v_swap_b32 v{hq[u, 0]+2}, v{hq[u, 1]}"), (14 * u - 3, f"v_swap_b32 v{hq[u, 0]+3}, v{hq[u, 1]+1}")]
        m += [mfma16(a3(mt, tt), w2f(u, mt), hq[u, tt], "0" if u == 0 else None) for mt in range(7) for tt in range(2)]
    for mt in range(7):
        for tt in range(2):
            m += [mfma16(a3(mt, tt), w2f(u, mt), hq[u, tt]) for u in (11, 12, 13)]
    for u in range(9, 14):
        g = 14 * (u - 4)
        fixed += [(g - 1, f"WAITVM @need=wu{u}")]
        rs_.append((w2_reads(u), g, g + 13))
    fixed += [(150, "v_add_u32 v13, s43, v1"), (153, "s_waitcnt lgkmcnt(0)")]
    wr = [f"ds_write_b128 v13, v[{32+4*t_}:{35+4*t_}] offset:{(t_ // 7) * 32768 + (t_ % 7) * 1024}" for t_ in range(14)]
    nin = 11
    fixed += [(154 + 3 * t_ + 2 + 8, wr[t_]) for t_ in range(nin)]
    L += sched.pack(m, [(sum((hload(u) for u in range(NH, 14)), []), 0, opt.get("t3e", 66))] + rs_, fixed, VB)
    L += T(10)
    L += wr[nin:]
    D7 = 32768 - 7168
    L += ["s_lshl_b32 s38, s3, 10", "v_add_u32 v15, s38, v1", f"s_cmp_eq_u32 s3, 3\ns_cselect_b32 s38, {D7}, 0", "v_add_u32 v14, s38, v15"]
    L += ["s_waitcnt lgkmcnt(0)", "s_barrier"]
    for k in range(4):
        for w in range(4):
            if k == 1: reg, off = 14, 4096
            else: reg, off = 15, k * 4096 + (D7 if k >= 2 else 0)
            L.append(f"ds_read_b128 v[{128+(k*4+w)*4}:{131+(k*4+w)*4}], v{reg} offset:{off + w * 7168}")
    L += ["s_mov_b32 s33, 0x00003f80", "s_mov_b32 s34, 0x3f800000"]
    for k in range(4):
        b = 128 + k * 16
        for i in range(2):
            L += [f"v_lshlrev_b32 v{32+4*k+2*i}, 16, v{2+2*k+i}", f"v_and_b32 v{33+4*k+2*i}, 0xffff0000, v{2+2*k+i}"]
        for w in range(1, 4):
            for i in range(2): L.append(f"v_pk_add_f32 v[{b+2*i}:{b+2*i+1}], v[{b+2*i}:{b+2*i+1}], v[{b+4*w+2*i}:{b+4*w+2*i+1}]")
        L += [f"v_cvt_pk_bf16_f32 v{b+4}, v{b}, v{b+1}", f"v_cvt_pk_bf16_f32 v{b+5}, v{b+2}, v{b+3}"]
        for i in range(2):
            L += [f"v_dot2_f32_bf16 v{32+4*k+2*i}, v{b+4+i}, s33, v{32+4*k+2*i}", f"v_dot2_f32_bf16 v{33+4*k+2*i}, v{b+4+i}, s34, v{33+4*k+2*i}"]
    for k in range(4):
        b = 128 + k * 16
        L += [f"v_cvt_pk_bf16_f32 v{b+4}, v{32+4*k}, v{33+4*k}", f"v_cvt_pk_bf16_f32 v{b+5}, v{34+4*k}, v{35+4*k}"]
        if k == 3: L += [f"s_cmp_lt_u32 s3, 2\ns_cselect_b32 s38, 0, {OOB}"]
        L.append(f"buffer_store_dwordx2 v[{b+4}:{b+5}], v12, s[{SOUT}:{SOUT+3}], {'s38' if k == 3 else '0'} offen offset:{k*64}")
    A.extend(sched.texts(sched.finish(L, st, prev, rep)))
    def cold(A):
        A.label("L_tfast")
        A.extend(xcode)
        A("s_branch L_tjoin")
        A.label("L_tfb0")
        A.extend(sched.texts(sched.finish(untag(w_dma(0)))))
        A("s_branch L_tfb0r")
        for n in range(8):
            A.label(f"L_ypoll{n}")
            A("s_mov_b32 s39, 0")
            A.label(f"L_ypoll{n}_l")
            A(f"s_load_dword s38, s[20:21], 16 glc")
            A("s_add_u32 s39, s39, 1")
            A("s_waitcnt lgkmcnt(0)")
            A("s_lshr_b32 s37, s38, 1")
            A("s_and_b32 s37, s37, s38")
            A(f"s_cmp_gt_u32 s39, {SPINMAX}")
            A("s_cselect_b32 s37, -1, s37")
            A("s_and_b32 s37, s37, s51")
            A(f"s_cbranch_scc1 L_ygot{n}")
            A(f"s_sleep {opt.get('sleep', 2)}")
            A(f"s_branch L_ypoll{n}_l")
        for dw, n in spins:
            A.label(f"L_tspin{n}")
            A("s_mov_b32 s39, 0")
            A.label(f"L_tspin{n}_l")
            A("s_add_u32 s39, s39, 1")
            A(f"s_cmp_gt_u32 s39, {SPINMAX}")
            A(f"s_cbranch_scc1 L_tspun{n}")
            A(f"s_load_dword s38, s[20:21], {16+4*dw} glc")
            A("s_waitcnt lgkmcnt(0)")
            A("s_andn2_b32 s38, s41, s38")
            A(f"s_cbranch_scc0 L_tspun{n}")
            A(f"s_sleep {opt.get('sleep', 2)}")
            A(f"s_branch L_tspin{n}_l")
    return cold
```
